```python
import torch

def _softmax(x, axis=-1):
    return torch.softmax(x, dim=axis)
def _gelu(x):
    return torch.nn.functional.gelu(x, approximate="tanh")
def _silu(x):
    return torch.nn.functional.silu(x)
def _sigmoid(x):
    return torch.sigmoid(x)
def _layernorm(x, axis=-1, eps=1e-5):
    m = x.mean(dim=axis, keepdim=True)
    v = x.var(dim=axis, keepdim=True, unbiased=False)
    return (x - m) / torch.sqrt(v + eps)
def _scatter_add(tgt, idx, src, axis=0):
    return tgt.clone().index_add_(axis, idx, src)
def _segment_sum(src, seg, n):
    out = torch.zeros((n,) + src.shape[1:], dtype=src.dtype)
    return out.index_add_(0, seg, src)
def _pad(x, pw):
    flat = tuple(v for pair in reversed(pw) for v in pair)
    return torch.nn.functional.pad(x, flat)

kernel_name = 'parallel_sum__linear_kernel_hedgehog__glu_gated_glu__prompt'

def setup_inputs():

    _w = (lambda a: (lambda t: t.to(torch.bfloat16) if t.is_floating_point() else t)(torch.as_tensor(a)))
    def _A_setup():
        B, S, D, H = 1, 2048, 512, 32
        Dh = D // H
        return {
            "x": _w((lambda *s: torch.randn(*s, dtype=torch.bfloat16) * 0.05)(B, S, D)),
            "wqkv": _w((lambda *s: torch.randn(*s, dtype=torch.bfloat16) * 0.4)(D, 3 * D)),
            "w_phi": _w((lambda *s: torch.randn(*s, dtype=torch.bfloat16) * 0.4)(H, Dh, Dh) * (Dh ** -0.5)),
            "wo": _w((lambda *s: torch.randn(*s, dtype=torch.bfloat16) * 0.1)(D, D)),
        }
    _A_in = _A_setup()

    def _B_setup():
        B, S, D, F = 1, 2048, 512, 1792
        return {
            "x": _w((lambda *s: torch.randn(*s, dtype=torch.bfloat16) * 0.05)(B, S, D)),
            "w_gate": _w((lambda *s: torch.randn(*s, dtype=torch.bfloat16) * 0.05)(D, F)),
            "w_up": _w((lambda *s: torch.randn(*s, dtype=torch.bfloat16) * 0.05)(D, F)),
            "w_down": _w((lambda *s: torch.randn(*s, dtype=torch.bfloat16) * 0.05)(F, D)),
        }
    _B_in = _B_setup()

    return {
        "A_x": _A_in["x"],
        "A_wqkv": _A_in["wqkv"],
        "A_w_phi": _A_in["w_phi"],
        "A_wo": _A_in["wo"],
        "B_x": _B_in["x"],
        "B_w_gate": _B_in["w_gate"],
        "B_w_up": _B_in["w_up"],
        "B_w_down": _B_in["w_down"],
    }

def reference(A_x, A_wqkv, A_w_phi, A_wo, B_x, B_w_gate, B_w_up, B_w_down):
    def _A_ref(x, wqkv, w_phi, wo):
        B, S, D = x.shape
        H = 32; Dh = D // H
        qkv = (lambda x, *d: x.permute(*d))((x @ wqkv).reshape(B, S, 3, H, Dh), 2, 0, 3, 1, 4)
        q, k, v = qkv[0], qkv[1], qkv[2]
        pq = torch.einsum("bhsd,hdf->bhsf", q, w_phi)
        pk = torch.einsum("bhsd,hdf->bhsf", k, w_phi)
        phi_q = torch.concatenate([_softmax(pq, axis=-1), _softmax(-pq, axis=-1)], axis=-1)
        phi_k = torch.concatenate([_softmax(pk, axis=-1), _softmax(-pk, axis=-1)], axis=-1)
        kv = torch.einsum("bhsf,bhsd->bhfd", phi_k, v)
        z  = torch.einsum("bhsf->bhf", phi_k)
        num = torch.einsum("bhqf,bhfd->bhqd", phi_q, kv)
        den = torch.einsum("bhqf,bhf->bhq", phi_q, z)[..., None] + 1e-6
        o = num / den
        return (lambda x, *d: x.permute(*d))(o, 0, 2, 1, 3).reshape(B, S, D) @ wo

    def _B_ref(x, w_gate, w_up, w_down):
        g = torch.einsum("bsd,df->bsf", x, w_gate)
        u = torch.einsum("bsd,df->bsf", x, w_up)
        h = _sigmoid(g) * u
        return torch.einsum("bsf,fd->bsd", h, w_down)

    x = A_x
    xn = _layernorm(x, axis=-1)
    return x + _A_ref(xn, A_wqkv, A_w_phi, A_wo) + _B_ref(xn, B_w_gate, B_w_up, B_w_down)
```

```python
import re, copy

_REG = re.compile(r"^(-?)(?:abs\()?([vsa])(\d+)\)?$")
_RNG = re.compile(r"^(-?)([vsa])\[(\d+):(\d+)\]$")

TRANS = ("v_exp_f32", "v_log_f32", "v_rcp_f32", "v_rsq_f32", "v_sqrt_f32", "v_sin_f32", "v_cos_f32")


def regs_of(op):
    op = op.strip()
    m = _REG.match(op)
    if m:
        return [(m.group(2), int(m.group(3)))]
    m = _RNG.match(op)
    if m:
        return [(m.group(2), i) for i in range(int(m.group(3)), int(m.group(4)) + 1)]
    if op in ("vcc",):
        return [("x", "vcc")]
    if op in ("vcc_lo", "vcc_hi"):
        return [("x", "vcc")]
    if op in ("exec", "exec_lo", "exec_hi"):
        return [("x", "exec")]
    if op == "m0":
        return [("x", "m0")]
    return []


class Ins:
    __slots__ = ("text", "op", "kind", "rd", "wr", "tok", "waitfor", "srcc", "ab", "data", "cost", "pin")

    def __init__(self, text, tok=None, waitfor=None):
        self.text = text
        self.tok = tok
        self.waitfor = waitfor
        self.srcc = set()
        self.ab = set()
        self.data = set()
        self.pin = False
        t = text.split(";")[0].strip()
        if t.endswith(":") or t.startswith(".") or t == "":
            self.op = ""; self.kind = "label"; self.rd = set(); self.wr = set(); self.cost = 0
            return
        parts = t.split(None, 1)
        op = parts[0]
        base = re.sub(r"_(e32|e64|dpp|sdwa)$", "", op)
        self.op = base
        rest = parts[1] if len(parts) > 1 else ""
        ops = [o.strip() for o in rest.split(",")] if rest else []
        if ops:
            last = ops[-1].split()
            mods = last[1:]
            ops[-1] = last[0] if last else ""
        else:
            mods = []
        R = lambda lst: set(r for o in lst for r in regs_of(o))
        rd, wr = set(), set()
        self.cost = 1
        if base == "WAIT":
            self.kind = "wait"
        elif base.startswith("v_mfma"):
            self.kind = "mfma"; wr = R(ops[:1]); rd = R(ops[1:]); self.srcc = R(ops[3:4]); self.ab = R(ops[1:3]); self.cost = 2
        elif base.startswith("v_cmp"):
            self.kind = "valu"; wr = R(ops[:1]); rd = R(ops[1:])
        elif base.startswith("v_permlane"):
            self.kind = "valu"; wr = R(ops); rd = R(ops)
        elif base in ("v_readfirstlane_b32", "v_readlane_b32"):
            self.kind = "valu"; wr = R(ops[:1]); rd = R(ops[1:])
        elif base.startswith("v_"):
            self.kind = "valu"; wr = R(ops[:1]); rd = R(ops[1:])
            if base in ("v_fmac_f32", "v_dot2c_f32_bf16"):
                rd |= wr
            if base in TRANS:
                self.cost = 2
            if base in ("v_cndmask_b32",) and len(ops) == 3:
                rd.add(("x", "vcc"))
        elif base.startswith("ds_read"):
            self.kind = "ds"; wr = R(ops[:1]); rd = R(ops[1:])
        elif base.startswith("ds_"):
            self.kind = "ds"; rd = R(ops)
        elif base.startswith("buffer_load") or base.startswith("global_load"):
            self.kind = "vmem"
            if "lds" in mods:
                rd = R(ops); rd.add(("x", "m0"))
            else:
                wr = R(ops[:1]); rd = R(ops[1:])
        elif base.startswith("buffer_store") or base.startswith("global_store"):
            self.kind = "vmem"; rd = R(ops)
            self.data = R(ops[:1]) if base.startswith("buffer") else R(ops[1:2])
        elif base.startswith("s_load") or base in ("s_memtime", "s_memrealtime"):
            self.kind = "smem"; wr = R(ops[:1]); rd = R(ops[1:])
        elif base in ("s_waitcnt", "s_nop", "s_barrier", "s_setprio", "s_sleep", "s_endpgm", "s_branch") or base.startswith("s_cbranch"):
            self.kind = "sopp"
        elif base.startswith("s_cmp"):
            self.kind = "salu"; rd = R(ops)
        elif base.startswith("s_"):
            self.kind = "salu"; wr = R(ops[:1]); rd = R(ops[1:])
            if "saveexec" in base:
                wr.add(("x", "exec")); rd.add(("x", "exec"))
        else:
            raise ValueError("unknown instruction: " + text)
        self.rd, self.wr = rd, wr

    def states(self):
        if self.kind in ("label",):
            return 0
        if self.op == "s_nop":
            return int(self.text.split()[1], 0) + 1
        return 1


class Prog:
    def __init__(self):
        self.ins = []

    def __call__(self, text, tok=None):
        i = Ins(text, tok=tok)
        self.ins.append(i)
        return i

    def wait(self, *toks):
        self.ins.append(Ins("WAIT", waitfor=list(toks)))

    def extend(self, other):
        self.ins.extend(other.ins if isinstance(other, Prog) else other)

    def label(self, name):
        self.ins.append(Ins(name + ":"))


class State:
    def __init__(self):
        self.lq = []
        self.vq = []
        self.hist = []
        self.done = set()

    def copy(self):
        s = State()
        s.lq = list(self.lq); s.vq = list(self.vq); s.hist = list(self.hist); s.done = set(self.done)
        return s


def _need(prev, cur):
    n = 0
    vw = {r for r in prev.wr if r[0] in "va"}
    sw = {r for r in prev.wr if r[0] == "s" or r == ("x", "vcc")}
    touch = cur.rd | cur.wr
    if prev.kind == "valu":
        isdot = prev.op.startswith("v_dot")
        if cur.kind == "mfma" and vw & cur.rd:
            n = max(n, 3 if isdot else 2)
        if isdot and cur.kind in ("valu", "ds", "vmem") and vw & touch:
            if not (cur.op == prev.op and not (vw & (cur.rd - cur.wr))):
                n = max(n, 3)
        if prev.op in TRANS and cur.kind in ("valu", "ds", "vmem") and vw & cur.rd:
            n = max(n, 1)
        if cur.op.startswith("v_permlane") and vw & cur.rd:
            n = max(n, 2)
        if "dpp" in cur.text.split()[0] and vw & cur.rd:
            n = max(n, 2)
        if cur.op in ("v_readfirstlane_b32", "v_readlane_b32") and vw & cur.rd:
            n = max(n, 1)
        if sw:
            if cur.kind == "valu" and sw & cur.rd:
                n = max(n, 4 if cur.op in ("v_readlane_b32",) else 2)
            if cur.kind == "vmem" and sw & cur.rd:
                n = max(n, 5)
            if cur.kind in ("salu", "sopp") and (sw & cur.rd or cur.op.startswith("s_cbranch_vcc")):
                n = max(n, 5 if cur.op.startswith("s_cbranch_vcc") else 1)
        if ("x", "exec") in prev.wr:
            n = max(n, 5)
    elif prev.kind == "mfma":
        passes = 8 if "32x32x16" in prev.op else 4
        d = vw
        full = {8: 12, 4: 8}[passes]
        if cur.kind == "mfma":
            if d & cur.ab:
                n = max(n, full)
            if d & cur.srcc and not (cur.srcc == d and cur.op == prev.op):
                n = max(n, {8: 10, 4: 6}[passes])
            if d & cur.wr and not (cur.srcc == d and cur.op == prev.op):
                n = max(n, full)
        elif cur.kind in ("valu", "ds", "vmem"):
            if d & touch:
                n = max(n, full)
            if cur.kind == "valu" and prev.srcc & cur.wr:
                n = max(n, {8: 7, 4: 3}[passes])
    elif prev.kind == "salu":
        if ("x", "m0") in prev.wr and ("x", "m0") in cur.rd:
            n = max(n, 1)
    elif prev.kind == "vmem":
        if len(prev.data) >= 3 and prev.data & cur.wr:
            n = max(n, 2)
    return n


def finalize(prog, state=None, log=None):
    st = state.copy() if state else State()
    out = []
    stats = {"nop": 0, "autowait": 0}

    def emit(i):
        out.append(i)
        st.hist.append(i)
        if len(st.hist) > 40:
            del st.hist[0]

    def do_wait(nl, nv):
        parts = []
        if nv is not None:
            assert nv <= 63
            parts.append(f"vmcnt({nv})")
            while len(st.vq) > nv:
                x = st.vq.pop(0)
                if x.tok: st.done.add(x.tok)
        if nl is not None:
            nl = min(nl, 15)
            parts.append(f"lgkmcnt({nl})")
            while len(st.lq) > nl:
                x = st.lq.pop(0)
                if x.tok: st.done.add(x.tok)
        if parts:
            emit(Ins("s_waitcnt " + " ".join(parts)))

    for i in prog.ins:
        if i.kind == "label":
            emit(i); continue
        if i.kind == "wait":
            nl = nv = None
            for tk in i.waitfor:
                found = False
                for q, nm in ((st.lq, "l"), (st.vq, "v")):
                    idx = [k for k, x in enumerate(q) if x.tok == tk]
                    if idx:
                        found = True
                        n = len(q) - 1 - max(idx)
                        if nm == "l": nl = n if nl is None else min(nl, n)
                        else: nv = n if nv is None else min(nv, n)
                if not found:
                    assert tk in st.done, f"wait on unknown token {tk}"
            do_wait(nl, nv)
            continue
        if i.op == "s_waitcnt":
            m = re.search(r"vmcnt\((\d+)\)", i.text)
            nv = int(m.group(1)) if m else None
            m = re.search(r"lgkmcnt\((\d+)\)", i.text)
            nl = int(m.group(1)) if m else None
            useless = (nv is None or len(st.vq) <= nv) and (nl is None or len(st.lq) <= nl)
            if useless and not i.pin:
                continue
            do_wait(nl, nv)
            continue
        touch = i.rd | i.wr
        nl = nv = None
        for k, x in enumerate(st.lq):
            if x.wr & touch:
                n = 0 if x.kind == "smem" or any(y.kind == "smem" for y in st.lq) else len(st.lq) - 1 - k
                nl = n if nl is None else min(nl, n)
        for k, x in enumerate(st.vq):
            if x.wr & touch:
                n = len(st.vq) - 1 - k
                nv = n if nv is None else min(nv, n)
        if nl is not None or nv is not None:
            stats["autowait"] += 1
            do_wait(nl, nv)
        if i.kind == "vmem" and len(st.vq) >= 63:
            do_wait(None, 62)
        dist = 0
        need = 0
        for p in reversed(st.hist):
            if dist >= 20:
                break
            r = _need(p, i)
            if r - dist > need:
                need = r - dist
            dist += p.states()
        if need > 0:
            stats["nop"] += need
            emit(Ins(f"s_nop {need-1}"))
        emit(i)
        if i.kind in ("ds", "smem"):
            st.lq.append(i)
            if i.kind == "smem":
                st.lq.append(i)
        elif i.kind == "vmem":
            st.vq.append(i)
    if log is not None:
        log.append(stats)
    return out, st


def text_of(inss):
    return "\n".join(("" if i.kind == "label" else "  ") + i.text for i in inss) + "\n"
```

```python
import sys, math
from asmlib import *

NAME = "parallel_sum__linear_kernel_hedgehog__glu_gated_glu__prompt"

class Cfg:
    stamps = False
    map84 = True
    LA = 5
    cap = 3
    spin = 1 << 16
    skew = True
    codepf = True

H_OFF = 0
KVP_OFF = 0xA00000
KVREC = 4352
FLAGH_OFF = 0xB00000
FLAGKV_OFF = 0xB10000
STAMP_OFF = 0xC00000
WS_BYTES = 0x1000000

SLOT = 16384
XBASE = 4 * SLOT
PHI = 6 * SLOT
VIMG = 8 * SLOT
SCR = 9 * SLOT
WPHI = SCR
KVF = SCR + 2048
ZL = SCR + 10240
LFLAG = SCR + 10752
LDS_BYTES = 10 * SLOT

SX, SWS, SDBG, SQKV, SG, SU, SD, SO, SPHI, SOUT = [f"s[{b}:{b+3}]" for b in range(28, 68, 4)]
sW, sRB, sJ, sTYPE, sROT, sR2, sC2, sNONCE = [f"s{i}" for i in range(68, 76)]
sT0, sT1, sT2, sT3, sT4, sT5 = [f"s{i}" for i in range(76, 82)]
sMASK = "s[82:83]"
sMASK2 = "s[84:85]"
sCNT = "s86"
sHI = "s87"
sC1 = "s3"
sC2K = "s26"
sC3 = "s27"

LOG2E = 0x3FB8AA3B
NLOG2E = 0xBFB8AA3B

def v(a, n=1):
    return f"v{a}" if n == 1 else f"v[{a}:{a+n-1}]"

def srd(P, name, plo, nbytes):
    b = int(name[2:name.index(":")])
    P(f"s_mov_b32 s{b}, s{plo}")
    P(f"s_mov_b32 s{b+1}, s{plo+1}")
    P(f"s_mov_b32 s{b+2}, {nbytes:#x}")
    P(f"s_mov_b32 s{b+3}, 0x20000")

_lbl = [0]
def newlabel(p):
    _lbl[0] += 1
    return f"L_{p}_{_lbl[0]}"

class Stamps:
    def __init__(self, cfg, regs):
        self.cfg = cfg; self.regs = regs; self.n = 0; self.names = []
    def __call__(self, P, name):
        if not self.cfg.stamps: return
        assert self.n < len(self.regs), "too many stamps"
        P("s_memtime s[100:101]")
        i = P("s_waitcnt lgkmcnt(0)"); i.pin = True
        P(f"s_mov_b32 {self.regs[self.n]}, s100")
        self.n += 1; self.names.append(name)
    def fork(self):
        s = Stamps(self.cfg, self.regs); s.n = self.n; s.names = list(self.names); return s
    def dump(self, P, role):
        if not self.cfg.stamps: return
        P(f"s_lshl_b32 {sT0}, s2, 3")
        P(f"s_add_u32 {sT0}, {sT0}, {sW}")
        P(f"s_add_u32 {sT0}, {sT0}, {4*role}")
        P(f"s_lshl_b32 {sT0}, {sT0}, 6")
        P(f"s_add_u32 {sT0}, {sT0}, {STAMP_OFF}")
        P("v_mov_b32 v12, 0")
        for k in range(self.n):
            P(f"v_mov_b32 v13, {self.regs[k]}")
            P(f"buffer_store_dword v13, v12, {SWS}, {sT0} offen offset:{4*k}")
            P("s_nop 1")


def poll_global(P, cfg, vflag, vaddr, srdname, soff, need, maxv, smask, tok=None):
    L, OK = newlabel("poll"), newlabel("ok")
    P(f"s_mov_b32 {sCNT}, {cfg.spin}")
    P(f"s_add_u32 {sT5}, {sNONCE}, {need}")
    P(f"v_subrev_u32 {vflag}, {sT5}, {vflag}")
    P.label(L)
    P(f"v_cmp_lt_u32 vcc, {maxv-need}, {vflag}")
    P("s_nop 1")
    P(f"s_and_b64 vcc, vcc, {smask}")
    P(f"s_cbranch_scc0 {OK}")
    P("s_sleep 1")
    P.ins.append(Ins(f".raw"))
    P.ins[-1].text = f"  buffer_load_dword {vflag}, {vaddr}, {srdname}, {soff} offen sc1\n  s_waitcnt vmcnt(0)\n  v_subrev_u32 {vflag}, {sT5}, {vflag}\n  s_sub_u32 {sCNT}, {sCNT}, 1\n  s_cbranch_scc0 {L}"
    P.label(OK)


def poll_nonce(P, cfg, vtmp):
    L, OK = newlabel("np"), newlabel("nok")
    P(f"s_mov_b32 {sCNT}, {cfg.spin}")
    P(f"v_readfirstlane_b32 {sNONCE}, {vtmp}")
    P.label(L)
    P("s_nop 0")
    P(f"s_cmp_lg_u32 {sNONCE}, 0")
    P(f"s_cbranch_scc1 {OK}")
    P("s_sleep 1")
    P.ins.append(Ins(".raw"))
    P.ins[-1].text = f"  buffer_load_dword {vtmp}, off, {SDBG}, 0 sc1\n  s_waitcnt vmcnt(0)\n  v_readfirstlane_b32 {sNONCE}, {vtmp}\n  s_sub_u32 {sCNT}, {sCNT}, 1\n  s_cbranch_scc0 {L}"
    P.label(OK)
    P("s_nop 1")


def poll_lds(P, cfg, vtmp4, vaddr, off):
    L, OK = newlabel("lp"), newlabel("lok")
    P(f"s_mov_b32 {sCNT}, {cfg.spin}")
    i = P("s_waitcnt lgkmcnt(0)")
    P.label(L)
    P.ins.append(Ins(".raw"))
    P.ins[-1].text = (f"  ds_read_b128 {v(vtmp4,4)}, {vaddr} offset:{off}\n  s_waitcnt lgkmcnt(0)\n"
                      f"  v_and_b32 {v(vtmp4)}, {v(vtmp4)}, {v(vtmp4+1)}\n  v_and_b32 {v(vtmp4+2)}, {v(vtmp4+2)}, {v(vtmp4+3)}\n"
                      f"  v_and_b32 {v(vtmp4)}, {v(vtmp4)}, {v(vtmp4+2)}\n  s_nop 0\n  v_readfirstlane_b32 {sT5}, {v(vtmp4)}\n  s_nop 1\n"
                      f"  s_cmp_lg_u32 {sT5}, 0\n  s_cbranch_scc1 {OK}\n  s_sleep 1\n  s_sub_u32 {sCNT}, {sCNT}, 1\n  s_cbranch_scc0 {L}")
    P.label(OK)


def weave(groups, tasks, cap):
    q = []
    for rel, dl, lst in tasks:
        for i in lst:
            q.append((i, rel, dl))
    out = []
    n = len(groups)
    for gi, grp in enumerate(groups):
        while q and q[0][2] <= gi:
            out.append(q.pop(0)[0])
        out.extend(grp)
        extra = sum(1 for i in grp[1:] if i.kind in ("sopp", "wait", "salu"))
        budget = max(cap - extra, 1)
        acc = 0
        for (i, rel, dl) in q:
            acc += i.cost
            if dl <= n and dl > gi:
                budget = max(budget, math.ceil(acc / (dl - gi)))
        valu_done = False
        while q and q[0][1] <= gi and budget > 0:
            i = q[0][0]
            if i.kind in ("ds", "vmem") and valu_done:
                break
            if i.cost > budget and valu_done:
                break
            q.pop(0)
            out.append(i)
            budget -= i.cost
            if i.kind == "valu":
                valu_done = True
    rest = [x[0] for x in q]
    return out, rest


X0 = 128
def XR(t): return X0 + 4 * t
SET = [32 + 16 * i for i in range(6)]
FR0 = 12
TA = [4, 5, 6, 7]
vL16, vRS, vMR = 1, 2, 3

def p1_taddr(P, kind):
    for t in range(4):
        if kind == "pair":
            hh, tt = t >> 1, t & 1
            P(f"v_lshlrev_b32 v10, 5, v9")
            P(f"v_xor_b32 v10, {((2*tt) ^ hh) * 32}, v10")
            P(f"v_xor_b32 v{TA[t]}, v10, v8")
            if hh:
                P(f"v_add_u32 v{TA[t]}, 8192, v{TA[t]}")
        else:
            P(f"v_mul_u32_u24 v10, {8192+32}, v9")
            P(f"v_xor_b32 v10, {t*32}, v10")
            P(f"v_xor_b32 v{TA[t]}, v10, v8")


def sigmoid_task(S, ks_sreg, ks_imm, tok):
    P = Prog()
    for i in range(8): P(f"v_mul_f32 v{S+i}, {sC1}, v{S+i}")
    for i in range(8): P(f"v_exp_f32 v{S+i}, v{S+i}")
    for i in range(8): P(f"v_add_f32 v{S+i}, 1.0, v{S+i}")
    for i in range(8): P(f"v_rcp_f32 v{S+i}, v{S+i}")
    for i in range(8): P(f"v_mul_f32 v{S+8+i}, v{S+8+i}, v{S+i}")
    for k in range(4): P(f"v_cvt_pk_bf16_f32 v{S+k}, v{S+8+2*k}, v{S+9+2*k}")
    P(f"buffer_store_dwordx4 {v(S,4)}, v{vL16}, {SWS}, {ks_sreg} offen offset:{ks_imm} sc1", tok=tok)
    return P.ins


def flag_task(toks, val):
    P = Prog()
    P(f"s_add_u32 {sT0}, {sNONCE}, {val}")
    P(f"v_mov_b32 v11, {sT0}")
    P.wait(*toks)
    P(f"buffer_store_dword v11, off, {SWS}, s88 sc1")
    return P.ins


def softmax_core(P, Pr, T, tmp, sC2K=sC2K):
    mx, mn, s1, s2 = tmp, tmp + 1, tmp + 2, tmp + 3
    P(f"v_max3_f32 v{mx}, v{Pr}, v{Pr+1}, v{Pr+2}")
    P(f"v_min3_f32 v{mn}, v{Pr}, v{Pr+1}, v{Pr+2}")
    for k in range(3, 15, 2):
        P(f"v_max3_f32 v{mx}, v{mx}, v{Pr+k}, v{Pr+k+1}")
        P(f"v_min3_f32 v{mn}, v{mn}, v{Pr+k}, v{Pr+k+1}")
    P(f"v_max_f32 v{mx}, v{mx}, v{Pr+15}")
    P(f"v_min_f32 v{mn}, v{mn}, v{Pr+15}")
    P(f"v_mul_f32 v{mx}, {sC2K}, v{mx}")
    P(f"v_mul_f32 v{mn}, {sC2K}, v{mn}")
    for k in range(16):
        P(f"v_fma_f32 v{T+k}, v{Pr+k}, {sC2K}, -v{mx}")
        P(f"v_fma_f32 v{Pr+k}, -v{Pr+k}, {sC2K}, v{mn}")
    for k in range(16):
        P(f"v_exp_f32 v{T+k}, v{T+k}")
        P(f"v_exp_f32 v{Pr+k}, v{Pr+k}")
    P(f"v_add_f32 v{s1}, v{T}, v{T+1}")
    P(f"v_add_f32 v{s2}, v{Pr}, v{Pr+1}")
    for k in range(2, 16):
        P(f"v_add_f32 v{s1}, v{s1}, v{T+k}")
        P(f"v_add_f32 v{s2}, v{s2}, v{Pr+k}")


def wphi_frags(P, lane, F, A, t0, t1):
    P(f"v_and_b32 v{t0}, 1, v{lane}")
    P(f"v_lshlrev_b32 v{t0}, 9, v{t0}")
    P(f"v_lshrrev_b32 v{t1}, 5, v{lane}")
    P(f"v_lshl_add_u32 v{t0}, v{t1}, 7, v{t0}")
    P(f"v_bfe_u32 v{t1}, v{lane}, 2, 2")
    P(f"v_lshl_add_u32 v{t0}, v{t1}, 5, v{t0}")
    P(f"v_bfe_u32 v{t1}, v{lane}, 4, 1")
    P(f"v_lshl_add_u32 v{t0}, v{t1}, 4, v{t0}")
    P(f"v_bfe_u32 v{t1}, v{lane}, 1, 1")
    P(f"v_lshl_add_u32 v{t0}, v{t1}, 3, v{t0}")
    P(f"v_add_u32 v{t0}, {WPHI}, v{t0}")
    for p in range(2):
        P(f"ds_read_b64_tr_b16 {v(F+4*p,2)}, v{t0} offset:{p*1024}")
        P(f"ds_read_b64_tr_b16 {v(F+4*p+2,2)}, v{t0} offset:{p*1024+256}")
    P(f"s_mov_b32 s82, 0x0f0f0f0f")
    P(f"s_mov_b32 s83, 0x0f0f0f0f")
    for p in range(2):
        for k in range(4):
            P(f"v_cndmask_b32 v{A+8*p+k}, 0, v{F+4*p+k}, {sMASK}")
            P(f"v_cndmask_b32 v{A+8*p+4+k}, v{F+4*p+k}, 0, {sMASK}")


def gen(cfg):
    segs = []
    log = []
    LA = cfg.LA

    P = Prog()
    P("s_cmp_ge_u32 s2, 256")
    P("s_cbranch_scc1 L_end")
    P("s_load_dwordx16 s[4:19], s[0:1], 0")
    P("s_load_dwordx4 s[20:23], s[0:1], 64")
    P("s_load_dwordx2 s[24:25], s[0:1], 80")
    if cfg.stamps:
        P("s_memtime s[98:99]")
    if cfg.codepf:
        P("s_getpc_b64 s[100:101]")
        P.label("L_pcref")
        P(f"s_lshr_b32 {sT0}, s2, 3")
        P(f"s_lshl_b32 {sT0}, {sT0}, 11")
        P(f"s_min_u32 {sT0}, {sT0}, L_codeend-L_pcref-2048")
        P(f"s_add_u32 s100, s100, {sT0}")
        P("s_addc_u32 s101, s101, 0")
        P("v_lshlrev_b32 v1, 2, v0")
        P("global_load_dword v252, v1, s[100:101]")
    P("v_lshrrev_b32 v1, 6, v0")
    P("v_and_b32 v0, 63, v0")
    P(f"v_readfirstlane_b32 {sT4}, v1")
    P(f"s_and_b32 {sT0}, s2, 7")
    P(f"s_lshr_b32 {sT1}, s2, 3")
    if cfg.map84:
        P(f"s_and_b32 {sRB}, {sT0}, 1")
        P(f"s_lshl_b32 {sRB}, {sRB}, 3")
        P(f"s_lshr_b32 {sT2}, {sT1}, 2")
        P(f"s_add_u32 {sRB}, {sRB}, {sT2}")
        P(f"s_bfe_u32 {sTYPE}, {sT1}, 0x10001")
        P(f"s_and_b32 {sJ}, {sT0}, 6")
        P(f"s_and_b32 {sT2}, {sT1}, 1")
        P(f"s_add_u32 {sJ}, {sJ}, {sT2}")
        P(f"s_and_b32 {sT2}, {sT1}, 3")
        P(f"s_lshl_b32 {sT2}, {sT2}, 1")
        P(f"s_add_u32 {sROT}, {sRB}, {sT2}")
        P(f"s_and_b32 {sROT}, {sROT}, 7")
    else:
        P(f"s_and_b32 {sRB}, {sT0}, 3")
        P(f"s_lshl_b32 {sRB}, {sRB}, 2")
        P(f"s_lshr_b32 {sT2}, {sT1}, 3")
        P(f"s_add_u32 {sRB}, {sRB}, {sT2}")
        P(f"s_bfe_u32 {sTYPE}, {sT1}, 0x10002")
        P(f"s_and_b32 {sJ}, {sT0}, 4")
        P(f"s_and_b32 {sT3}, {sT1}, 3")
        P(f"s_add_u32 {sJ}, {sJ}, {sT3}")
        P(f"s_lshl_b32 {sT2}, {sT2}, 1")
        P(f"s_add_u32 {sROT}, {sT1}, {sT2}")
        P(f"s_and_b32 {sROT}, {sROT}, 7")
    P(f"s_lshl_b32 {sR2}, {sT0}, 2")
    P(f"s_lshr_b32 {sT2}, {sT1}, 3")
    P(f"s_add_u32 {sR2}, {sR2}, {sT2}")
    P(f"s_and_b32 {sC2}, {sT1}, 7")
    P(f"s_and_b32 {sW}, {sT4}, 3")
    P(f"v_lshlrev_b32 v{vL16}, 4, v0")
    P(f"s_cmp_ge_u32 {sT4}, 4")
    P("s_cbranch_scc1 L_p2")
    pro, st0 = finalize(P, None, log)
    segs.append(pro)

    stamp_regs = [f"s{i}" for i in range(6, 21)]
    P = Prog()
    ST = Stamps(cfg, stamp_regs)
    if cfg.stamps:
        ST.regs = ["s98"] + stamp_regs; ST.n = 1; ST.names = ["start"]
    P("v_lshrrev_b32 v36, 3, v0")
    P("v_lshlrev_b32 v36, 10, v36")
    P("v_lshrrev_b32 v37, 4, v0")
    P("v_and_b32 v38, 7, v0")
    P("v_xor_b32 v38, v38, v37")
    P("v_lshl_add_u32 v32, v38, 4, v36")
    P("v_xor_b32 v33, 64, v32")
    P(f"v_add_u32 v33, {8*1024-1024}, v33")
    P(f"v_add_u32 v34, {16*1024-2048}, v32")
    P(f"v_add_u32 v35, {16*1024-2048}, v33")
    P(f"s_lshl_b32 {sT0}, {sRB}, 2")
    P(f"s_add_u32 {sT0}, {sT0}, {sW}")
    P(f"s_lshl_b32 {sT1}, {sT0}, 15")
    P(f"s_mul_i32 {sT2}, {sW}, 24576")
    P(f"s_add_u32 {sT2}, {sT2}, {XBASE}")
    P("s_waitcnt lgkmcnt(0)")
    srd(P, SX, 4, 2048 * 1024)
    def xdma(b):
        P(f"s_add_u32 {sT3}, {sROT}, {b}")
        P(f"s_and_b32 {sT3}, {sT3}, 7")
        P(f"s_lshl_b32 {sT3}, {sT3}, 7")
        P(f"s_add_u32 {sT3}, {sT3}, {sT1}")
        P(f"s_add_u32 m0, {sT2}, {(b % 6) * 4096}")
        for q in range(4):
            P(f"buffer_load_dwordx4 v{32+q}, {SX}, {sT3} offen offset:{q*1024} lds", tok=f"x{b}")
    for b in range(6):
        xdma(b)
    srd(P, SWS, 24, WS_BYTES)
    srd(P, SDBG, 22, 256)
    P(f"s_mul_i32 s27, {sT0}, {144*1024}")
    P(f"s_lshr_b32 {sT4}, {sT0}, 1")
    P(f"s_lshl_b32 {sT4}, {sT4}, 7")
    P(f"s_lshl_b32 {sT5}, {sTYPE}, 6")
    P(f"s_add_u32 {sT4}, {sT4}, {sT5}")
    P(f"s_lshl_b32 {sT5}, {sJ}, 3")
    P(f"s_add_u32 {sT4}, {sT4}, {sT5}")
    P(f"s_and_b32 {sT5}, {sW}, 1")
    P(f"s_lshl_b32 {sT5}, {sT5}, 2")
    P(f"s_add_u32 {sT4}, {sT4}, {sT5}")
    P(f"s_add_u32 s88, {sT4}, {FLAGH_OFF}")
    P(f"s_mov_b32 {sHI}, 0xffff0000")
    P(f"s_mov_b32 {sC1}, {NLOG2E:#x}")
    P(f"s_mov_b32 {sC2K}, {LOG2E:#x}")
    P("v_and_b32 v36, 31, v0")
    P("v_lshlrev_b32 v37, 7, v36")
    P("v_bfe_u32 v38, v0, 1, 3")
    P("v_lshrrev_b32 v39, 5, v0")
    P("v_xor_b32 v38, v38, v39")
    P("v_lshl_add_u32 v37, v38, 4, v37")
    P(f"v_add_u32 v40, {sT2}, v37")
    for t in range(1, 4):
        P(f"v_xor_b32 v{40+t}, {32*t}, v40")
    P("v_lshrrev_b32 v8, 5, v0")
    P("v_lshlrev_b32 v8, 10, v8")
    P("v_bfe_u32 v9, v0, 2, 2")
    P("v_lshl_add_u32 v8, v9, 7, v8")
    P("v_bfe_u32 v9, v0, 3, 1")
    P("v_lshl_add_u32 v8, v9, 6, v8")
    P("v_and_b32 v9, 3, v0")
    P("v_lshl_add_u32 v8, v9, 3, v8")
    P("v_bfe_u32 v9, v0, 4, 1")
    p1_taddr(P, "gu")
    Lsk = newlabel("ta")
    P(f"s_cmp_eq_u32 {sTYPE}, 1")
    P(f"s_cbranch_scc1 {Lsk}")
    p1_taddr(P, "pair")
    P.label(Lsk)
    P("v_mov_b32 v44, 0x3f803f80")
    for k in range(4): P(f"v_mov_b32 v{48+k}, 0")
    for b in range(8):
        P.wait(f"x{b}")
        for t in range(4):
            P(f"ds_read_b128 {v(XR(4*b+t),4)}, v{40+t} offset:{(b%6)*4096}", tok=f"xr{b}")
        if b >= 1:
            bb = b - 1
            if bb + 6 < 8:
                P.wait(f"xr{bb}")
                xdma(bb + 6)
            for r in range(16):
                reg = XR(4 * bb) + r
                P(f"v_dot2c_f32_bf16 v{48+(r&1)}, v{reg}, v44")
                P(f"v_dot2c_f32_bf16 v{50+(r&1)}, v{reg}, v{reg}")
    P(f"buffer_load_dword v11, off, {SDBG}, 0 sc1")
    for r in range(16):
        reg = XR(28) + r
        P(f"v_dot2c_f32_bf16 v{48+(r&1)}, v{reg}, v44")
        P(f"v_dot2c_f32_bf16 v{50+(r&1)}, v{reg}, v{reg}")
    ST(P, "xdone")
    P("s_barrier")
    sched = []
    def add_pass4(stage0, sets, skew):
        if skew:
            order = []
            for tp in (0, 2):
                for c in (0, 1):
                    for tl in (tp, tp + 1):
                        for kk in range(4): order.append((c, kk, tl))
            for c in range(2, 8):
                for kk in range(4):
                    for tl in range(4): order.append((c, kk, tl))
        else:
            order = [(c, kk, tl) for c in range(8) for kk in range(4) for tl in range(4)]
        for (c, kk, tl) in order:
            sched.append((stage0 + c, kk * 2048, tl, sets[tl], 4 * c + kk, c == 0 and kk == 0))
    add_pass4(0, SET[0:4], False)
    add_pass4(8, [SET[4], SET[5], SET[0], SET[1]], cfg.skew)
    for cc in range(4):
        for hh in range(2):
            for kk in range(4):
                for tl in range(2):
                    sched.append((16 + cc, kk * 2048, 2 * hh + tl, SET[2 + tl], 8 * cc + 4 * hh + kk, cc == 0 and hh == 0 and kk == 0))
    NM = len(sched)
    assert NM == 320
    pass_of = lambda n: 0 if n < 128 else (1 if n < 256 else 2)
    last_read_of_stage = {}
    for n, e in enumerate(sched): last_read_of_stage[e[0]] = n

    def reads(n):
        stage, off, tl, S, xt, first = sched[n]
        fb = FR0 + 4 * (n % LA)
        o = (stage % 4) * SLOT + off
        return [Ins(f"ds_read_b64_tr_b16 {v(fb,2)}, v{TA[tl]} offset:{o}", tok=f"fr{n}a"),
                Ins(f"ds_read_b64_tr_b16 {v(fb+2,2)}, v{TA[tl]} offset:{o+512}", tok=f"fr{n}")]
    for n in range(LA):
        P.extend(reads(n))
    P("v_add_f32 v48, v48, v49")
    P("v_add_f32 v50, v50, v51")
    P("v_mov_b32 v49, v48")
    P("v_mov_b32 v51, v50")
    P("v_permlane32_swap_b32 v48, v49")
    P("v_permlane32_swap_b32 v50, v51")
    P("v_add_f32 v48, v48, v49")
    P("v_add_f32 v50, v50, v51")
    P("v_mul_f32 v48, 0x3b000000, v48")
    P("v_mul_f32 v50, 0x3b000000, v50")
    P("v_fma_f32 v50, -v48, v48, v50")
    P("v_max_f32 v50, 0, v50")
    P("v_add_f32 v50, 0x3727c5ac, v50")
    P(f"v_rsq_f32 v{vRS}, v50")
    P(f"v_mul_f32 v{vMR}, v48, v{vRS}")

    def ln_task(t):
        Q = Prog()
        tb = 96 + 8 * (t & 3)
        for d in range(4):
            Q(f"v_lshlrev_b32 v{tb+2*d}, 16, v{XR(t)+d}")
            Q(f"v_and_b32 v{tb+2*d+1}, {sHI}, v{XR(t)+d}")
        for d in range(8):
            Q(f"v_fma_f32 v{tb+d}, v{tb+d}, v{vRS}, -v{vMR}")
        for d in range(4):
            Q(f"v_cvt_pk_bf16_f32 v{XR(t)+d}, v{tb+2*d}, v{tb+2*d+1}")
        return Q.ins
    P.extend(ln_task(0))

    passed = [0]
    def group(n, pre_reads=None):
        stage, off, tl, S, xt, first = sched[n]
        fb = FR0 + 4 * (n % LA)
        g = []
        c = "0" if first else v(S, 16)
        g.append(Ins(f"v_mfma_f32_32x32x16_bf16 {v(S,16)}, {v(fb,4)}, {v(XR(xt),4)}, {c}"))
        m = n + LA
        if m < NM:
            ns = sched[m][0]
            if ns > passed[0]:
                assert ns == passed[0] + 1
                if ns >= 2:
                    g.append(Ins("WAIT", waitfor=[f"fr{last_read_of_stage[ns-2]}"]))
                if pre_reads and ns in pre_reads:
                    g.extend(pre_reads[ns])
                g.append(Ins("s_barrier"))
                passed[0] = ns
            g.extend(reads(m))
        if n % 2 == 1 and n + 2 < NM:
            g.append(Ins("WAIT", waitfor=[f"fr{n+2}"]))
        return g

    NA = 128 - LA
    groups = [group(n) for n in range(NA)]
    tasks = [(4 * (t - 1) - 4 if t > 1 else 0, min(4 * t, NA), ln_task(t)) for t in range(1, 32)]
    body, rest = weave(groups, tasks, cfg.cap)
    P.extend(body); P.extend(rest)
    poll_nonce(P, cfg, "v11")
    ST(P, "passA")
    P(f"s_cmp_eq_u32 {sTYPE}, 1")
    P("s_cbranch_scc1 L_p1t2")
    p1a, stA = finalize(P, st0, log)
    segs.append(p1a)
    passedA = passed[0]

    first_use = {}
    last_use = {}
    for n, e in enumerate(sched):
        first_use.setdefault((pass_of(n), e[3]), n)
        last_use[(pass_of(n), e[3])] = n

    def p1_rest(typ):
        P = Prog()
        S2 = ST.fork()
        passed[0] = passedA
        if typ == 1: P.label("L_p1t2")
        else: p1_taddr(P, "gu")
        if typ == 1:
            P(f"s_lshl_b32 {sT1}, {sJ}, 13")
            P(f"s_add_u32 {sT1}, {sT1}, s27")
            P(f"s_add_u32 {sT2}, {sT1}, 4096")
            P(f"s_lshl_b32 {sT3}, {sJ}, 12")
            P(f"s_add_u32 {sT3}, {sT3}, s27")
            P(f"s_add_u32 {sT3}, {sT3}, {112*1024}")
        else:
            P(f"s_mul_i32 {sT1}, {sJ}, 6144")
            P(f"s_add_u32 {sT1}, {sT1}, s27")
            P(f"s_add_u32 {sT1}, {sT1}, {64*1024}")
            P(f"s_and_b32 {sT3}, {sJ}, 1")
            P(f"s_lshl_b32 {sT2}, {sT3}, 11")
            P(f"s_add_u32 {sT2}, {sT2}, {sT1}")
            P(f"s_xor_b32 {sT3}, {sT3}, 1")
            P(f"s_lshl_b32 {sT3}, {sT3}, 12")
            P(f"s_add_u32 {sT3}, {sT3}, {sT1}")
        base = NA
        NB_ = 256 - LA
        pre = {}
        tasks = []
        R = lambda n: n - base
        if typ == 1:
            for i in range(4):
                S = SET[i]
                dl = first_use.get((1, S), first_use.get((2, S)))
                tasks.append((R(last_use[(0, S)]) + 2, min(R(dl), NB_ - base), sigmoid_task(S, sT1, 1024 * i, f"hA{i}")))
            tasks.append((R(250 - LA), NB_ - base, flag_task(["hA3"], 1)))
        else:
            Q = Prog()
            Q(f"s_lshl_b32 {sT4}, {sW}, 11")
            Q(f"s_add_u32 {sT4}, {sT4}, {PHI}")
            Q(f"v_add_u32 v10, {sT4}, v{vL16}")
            for i in range(2):
                S = SET[i]
                for k in range(8): Q(f"v_cvt_pk_bf16_f32 v{S+k}, v{S+2*k}, v{S+2*k+1}")
                Q(f"ds_write_b128 v10, {v(S,4)} offset:{(2*i)*8192}")
                Q(f"ds_write_b128 v10, {v(S+4,4)} offset:{(2*i+1)*8192}")
            tasks.append((R(last_use[(0, SET[1])]) + 2, R(first_use[(1, SET[0])]) - 1, Q.ins))
            Q = Prog()
            Q(f"v_and_b32 v10, 31, v0")
            Q(f"v_lshlrev_b32 v10, 6, v10")
            Q(f"v_bfe_u32 v11, v0, 1, 2")
            Q(f"v_lshl_add_u32 v10, v11, 4, v10")
            Q(f"v_and_b32 v11, 32, v0")
            Q(f"v_xor_b32 v10, v10, v11")
            Q(f"s_add_u32 {sT4}, {sT4}, {VIMG-PHI}")
            Q(f"v_add_u32 v10, {sT4}, v10")
            Q(f"v_xor_b32 v11, 16, v10")
            for i in range(2):
                S = SET[2 + i]
                for k in range(8): Q(f"v_cvt_pk_bf16_f32 v{S+k}, v{S+2*k}, v{S+2*k+1}")
                Q(f"ds_write_b128 v10, {v(S,4)} offset:{i*8192}")
                Q(f"ds_write_b128 v11, {v(S+4,4)} offset:{i*8192}", tok=f"evac{i}")
            tasks.append((R(last_use[(0, SET[3])]) + 2, R(128 + 22), Q.ins))
            pre[10] = [Ins("WAIT", waitfor=["evac1"])]
        groups = [group(n, pre) for n in range(base, NB_)]
        body, rest = weave(groups, tasks, cfg.cap)
        P.extend(body); P.extend(rest)
        S2(P, "passB")
        p1_taddr(P, "pair")
        base = NB_
        tasks = []
        setsB = [SET[4], SET[5], SET[0], SET[1]]
        for i in range(4):
            tasks.append((last_use[(1, setsB[i])] - base + 2, 10**6, sigmoid_task(setsB[i], sT2, 1024 * i, f"hB{i}")))
        groups = [group(n) for n in range(base, NM)]
        body, rest = weave(groups, tasks, cfg.cap + 1)
        P.extend(body)
        P(f"s_lshl_b32 {sT4}, {sW}, 2")
        P(f"s_add_u32 {sT4}, {sT4}, {LFLAG}")
        P(f"v_mov_b32 v10, {sT4}")
        P(f"v_mov_b32 v8, 1")
        P(f"ds_write_b32 v10, v8")
        P.extend(rest)
        S2(P, "passC")
        if typ == 0:
            for i in range(2):
                P.extend(sigmoid_task(SET[2 + i], sT3, 1024 * i, f"hC{i}"))
            P.extend(flag_task(["hB3"], 2))
            P.extend(flag_task(["hC1"], 3))
        else:
            QF = 128
            A = 144
            F = 160
            PP = [176, 192]
            TT = [208, 224]
            TM = [168, 172]
            wphi_frags(P, 0, F, A, 10, 11)
            for i in range(2):
                S = SET[2 + i]
                for k in range(8): P(f"v_cvt_pk_bf16_f32 v{QF+8*i+k}, v{S+2*k}, v{S+2*k+1}")
            for p in range(2):
                P(f"v_mfma_f32_32x32x16_bf16 {v(PP[p],16)}, {v(A+8*p,4)}, {v(QF+8*p,4)}, 0")
                P(f"v_mfma_f32_32x32x16_bf16 {v(PP[p],16)}, {v(A+8*p+4,4)}, {v(QF+8*p+4,4)}, {v(PP[p],16)}")
            softmax_core(P, PP[0], TT[0], TM[0])
            P.extend(flag_task(["hB3"], 2))
            softmax_core(P, PP[1], TT[1], TM[1])
            S2(P, "exps")
            P(f"v_mov_b32 v10, {LFLAG}")
            poll_lds(P, cfg, 12, "v10", 16)
            S2(P, "kvready")
            P("v_lshrrev_b32 v10, 5, v0")
            P("v_lshlrev_b32 v10, 7, v10")
            P(f"v_add_u32 v10, {ZL}, v10")
            P(f"v_add_u32 v11, {KVF}, v{vL16}")
            for p in range(2):
                for k in range(8):
                    P(f"ds_read_b128 {v(32+32*p+4*k,4)}, v10 offset:{p*256+16*k}")
            for p in range(2):
                for jj in range(4):
                    P(f"ds_read_b128 {v(96+16*p+4*jj,4)}, v11 offset:{p*4096+jj*1024}")
            for p in range(2):
                Z = 32 + 32 * p
                mx, mn, s1, s2 = TM[p], TM[p] + 1, TM[p] + 2, TM[p] + 3
                P(f"v_rcp_f32 v{s1}, v{s1}")
                P(f"v_rcp_f32 v{s2}, v{s2}")
                P(f"v_mul_f32 v{mx}, v{TT[p]}, v{Z}")
                P(f"v_mul_f32 v{mn}, v{PP[p]}, v{Z+16}")
                for k in range(1, 16):
                    P(f"v_fmac_f32 v{mx}, v{TT[p]+k}, v{Z+k}")
                    P(f"v_fmac_f32 v{mn}, v{PP[p]+k}, v{Z+16+k}")
                P(f"v_mul_f32 v{mx}, v{mx}, v{s1}")
                P(f"v_fmac_f32 v{mx}, v{mn}, v{s2}")
                P(f"v_add_f32 v{mx}, 0x358637bd, v{mx}")
                P(f"v_rcp_f32 v{mx}, v{mx}")
                P(f"v_mul_f32 v{s1}, v{s1}, v{mx}")
                P(f"v_mul_f32 v{s2}, v{s2}, v{mx}")
                for k in range(16):
                    P(f"v_mul_f32 v{TT[p]+k}, v{TT[p]+k}, v{s1}")
                    P(f"v_mul_f32 v{PP[p]+k}, v{PP[p]+k}, v{s2}")
                for k in range(8):
                    P(f"v_cvt_pk_bf16_f32 v{TT[p]+k}, v{TT[p]+2*k}, v{TT[p]+2*k+1}")
                    P(f"v_cvt_pk_bf16_f32 v{PP[p]+k}, v{PP[p]+2*k}, v{PP[p]+2*k+1}")
                O = 128 + 16 * p
                srcs = [TT[p], TT[p] + 4, PP[p], PP[p] + 4]
                for jj in range(4):
                    c = "0" if jj == 0 else v(O, 16)
                    P(f"v_mfma_f32_32x32x16_bf16 {v(O,16)}, {v(96+16*p+4*jj,4)}, {v(srcs[jj],4)}, {c}")
            for p in range(2):
                O = 128 + 16 * p
                for k in range(8): P(f"v_cvt_pk_bf16_f32 v{O+k}, v{O+2*k}, v{O+2*k+1}")
                P(f"buffer_store_dwordx4 {v(O,4)}, v{vL16}, {SWS}, {sT3} offen offset:{2048*p} sc1")
                P(f"buffer_store_dwordx4 {v(O+4,4)}, v{vL16}, {SWS}, {sT3} offen offset:{2048*p+1024} sc1", tok=f"o{p}")
            P.extend(flag_task(["o1"], 4))
        S2(P, "end")
        S2.dump(P, 0)
        P("s_endpgm")
        r, _ = finalize(P, stA, log)
        return r, S2.names
    p1t1, names_p1t1 = p1_rest(0)
    p1t2, names_p1t2 = p1_rest(1)
    segs.append(p1t1); segs.append(p1t2)

    VW = [2, 3, 4, 5]; VB = [6, 7]; TB = [8, 9]; VA = [10, 11]
    ACC = 16; RING = 80; B2R = 112
    sJ0, sJ1 = "s88", "s89"
    sKK = ["s90", "s91", "s92", "s93"]
    sHB2 = "s27"
    p2_stamp_regs = [f"s{i}" for i in range(6, 21)]

    P = Prog()
    P.label("L_p2")
    ST2 = Stamps(cfg, p2_stamp_regs)
    if cfg.stamps:
        ST2.regs = ["s98"] + p2_stamp_regs; ST2.n = 1; ST2.names = ["start"]
    P("v_lshrrev_b32 v12, 3, v0")
    P("v_and_b32 v13, 7, v0")
    P("v_lshlrev_b32 v13, 4, v13")
    P("v_bfe_u32 v14, v0, 4, 1")
    P("v_lshlrev_b32 v14, 6, v14")
    P("v_xor_b32 v13, v13, v14")
    def wvoff(P, pitch, kind="norm"):
        P(f"s_lshl_b32 {sT0}, {sW}, 4")
        P(f"v_add_u32 v14, {sT0}, v12")
        P(f"v_mul_u32_u24 v14, {pitch}, v14")
        if kind == "norm":
            P(f"v_add_u32 v{VW[0]}, v14, v13")
            P(f"v_xor_b32 v15, 32, v13")
            P(f"v_add_u32 v{VW[2]}, v14, v15")
        else:
            P(f"v_lshrrev_b32 v15, 1, v13")
            P(f"v_and_b32 v15, 32, v15")
            P(f"v_add_u32 v14, v14, v15")
            P(f"v_and_b32 v15, 16, v13")
            P(f"v_add_u32 v{VW[0]}, v14, v15")
            P(f"v_mov_b32 v{VW[2]}, v{VW[0]}")
        P(f"v_add_u32 v{VW[1]}, {8*pitch-1024}, v{VW[0]}")
        P(f"v_add_u32 v{VW[3]}, {8*pitch-1024}, v{VW[2]}")
    P("s_waitcnt lgkmcnt(0)")
    srd(P, SQKV, 6, 512 * 3072)
    srd(P, SG, 14, 512 * 3584)
    srd(P, SU, 16, 512 * 3584)
    P(f"s_cmp_eq_u32 {sTYPE}, 1")
    P("s_cbranch_scc1 L_p2t2")
    p2pro, st2 = finalize(P, st0, log)
    segs.append(p2pro)

    def p2_rest(typ):
        P = Prog()
        S2 = ST2.fork()
        if typ == 1: P.label("L_p2t2")
        sCL, sCR = "s3", "s26"
        sM0 = "s87"

        def set_pass(ps):
            if typ == 0:
                if ps == 0:
                    wvoff(P, 3072)
                    P(f"s_lshl_b32 {sCL}, {sJ}, 7")
                    P(f"s_add_u32 {sCR}, {sCL}, 2048")
                    P(f"s_add_u32 {sCL}, {sCL}, 1024")
                elif ps == 1:
                    wvoff(P, 3584)
                    P(f"s_mul_i32 {sCL}, {sJ}, 192")
                    P(f"s_and_b32 {sT0}, {sJ}, 1")
                    P(f"s_lshl_b32 {sT0}, {sT0}, 6")
                    P(f"s_add_u32 {sCL}, {sCL}, {sT0}")
                    P(f"s_add_u32 {sCL}, {sCL}, 2048")
                    P(f"s_mov_b32 {sCR}, {sCL}")
                else:
                    wvoff(P, 3584, "c")
                    P(f"s_mul_i32 {sCL}, {sJ}, 192")
                    P(f"s_and_b32 {sT0}, {sJ}, 1")
                    P(f"s_xor_b32 {sT0}, {sT0}, 1")
                    P(f"s_lshl_b32 {sT0}, {sT0}, 7")
                    P(f"s_add_u32 {sCL}, {sCL}, {sT0}")
                    P(f"s_add_u32 {sCL}, {sCL}, 2048")
                    P(f"s_mov_b32 {sCR}, {sCL}")
            else:
                if ps == 0:
                    wvoff(P, 3584)
                    P(f"s_lshl_b32 {sCL}, {sJ}, 8")
                    P(f"s_mov_b32 {sCR}, {sCL}")
                elif ps == 1:
                    P(f"s_add_u32 {sCL}, {sCL}, 128")
                    P(f"s_mov_b32 {sCR}, {sCL}")
                else:
                    wvoff(P, 3072)
                    P(f"s_lshl_b32 {sCL}, {sJ}, 7")
                    P(f"s_mov_b32 {sCR}, {sCL}")

        def wchunk(s):
            ps = 0 if s < 8 else (1 if s < 16 else 2)
            if s in (0, 8, 16): set_pass(ps)
            isqkv = (typ == 0 and ps == 0) or (typ == 1 and ps == 2)
            pitch = 3072 if isqkv else 3584
            for side in range(2):
                b = (s & 7) if ps < 2 else 2 * (s - 16) + side
                if side == 0 or ps == 2:
                    P(f"s_add_u32 {sT0}, {sROT}, {b}")
                    P(f"s_and_b32 {sT0}, {sT0}, 7")
                    P(f"s_mul_i32 {sT0}, {sT0}, {64*pitch}")
                P(f"s_add_u32 {sT1}, {sT0}, {sCR if side else sCL}")
                P(f"s_add_u32 m0, {sM0}, {(s % 4) * SLOT + side * 8192}")
                if typ == 0 and ps == 2:
                    for mat in range(2):
                        mk = 0x33333333 if (mat ^ side) == 0 else 0xcccccccc
                        P(f"s_mov_b32 exec_lo, {mk:#x}")
                        P(f"s_mov_b32 exec_hi, {mk:#x}")
                        for q in range(2):
                            P(f"buffer_load_dwordx4 v{VW[2*side+q]}, {SU if mat else SG}, {sT1} offen offset:{1024*q} lds", tok=f"w{s}")
                    P("s_mov_b64 exec, -1")
                else:
                    sr = SQKV if isqkv else (SU if side else SG)
                    for q in range(2):
                        P(f"buffer_load_dwordx4 v{VW[2*side+q]}, {sr}, {sT1} offen offset:{1024*q} lds", tok=f"w{s}")

        P(f"s_lshl_b32 {sM0}, {sW}, 11")
        for s in range(4): wchunk(s)
        srd(P, SWS, 24, WS_BYTES)
        srd(P, SDBG, 22, 256)
        srd(P, SD, 18, 1792 * 1024)
        srd(P, SO, 10, 512 * 1024)
        srd(P, SPHI, 8, 32 * 512)
        srd(P, SOUT, 20, 2048 * 1024)
        srd(P, SX, 4, 2048 * 1024)
        P(f"s_mov_b32 s25, {LOG2E:#x}")
        Ln = newlabel("nn")
        P(f"s_or_b32 {sT0}, s2, {sW}")
        P(f"s_cmp_lg_u32 {sT0}, 0")
        P(f"s_cbranch_scc1 {Ln}")
        P.ins.append(Ins(".raw"))
        P.ins[-1].text = (f"  s_memrealtime s[100:101]\n  s_waitcnt lgkmcnt(0)\n  s_or_b32 {sT0}, s100, 1\n  v_mov_b32 v14, {sT0}\n"
                          f"  buffer_store_dword v14, off, {SDBG}, 0 sc1")
        P.label(Ln)
        P(f"s_lshl_b32 {sJ0}, {sW}, 1")
        P(f"s_add_u32 {sJ0}, {sJ0}, {sC2}")
        P(f"s_add_u32 {sJ1}, {sJ0}, 1")
        P(f"s_and_b32 {sJ0}, {sJ0}, 7")
        P(f"s_and_b32 {sJ1}, {sJ1}, 7")
        P(f"s_lshr_b32 {sT0}, {sC2}, 1")
        P(f"s_add_u32 {sT0}, {sT0}, {sR2}")
        for t in range(4):
            P(f"s_add_u32 {sKK[t]}, {sT0}, {t}")
            P(f"s_and_b32 {sKK[t]}, {sKK[t]}, 3")
        P(f"s_mul_i32 {sHB2}, {sR2}, {2*144*1024}")
        P(f"s_lshl_b32 {sT0}, {sC2}, 7")
        P(f"v_lshl_add_u32 v{VB[0]}, v12, 10, v13")
        P(f"v_add_u32 v{VB[0]}, {sT0}, v{VB[0]}")
        P(f"v_add_u32 v{VB[1]}, {7*1024}, v{VB[0]}")
        P("v_lshrrev_b32 v14, 5, v0")
        P("v_lshlrev_b32 v14, 9, v14")
        P("v_bfe_u32 v15, v0, 2, 2")
        P("v_lshl_add_u32 v14, v15, 7, v14")
        P("v_bfe_u32 v15, v0, 3, 1")
        P("v_lshl_add_u32 v14, v15, 6, v14")
        P("v_bfe_u32 v15, v0, 4, 1")
        P("v_lshl_add_u32 v14, v15, 5, v14")
        P("v_and_b32 v15, 3, v0")
        P("v_lshl_add_u32 v14, v15, 3, v14")
        P(f"s_and_b32 {sT0}, {sW}, 1")
        P(f"s_lshl_b32 {sT0}, {sT0}, 6")
        P(f"v_xor_b32 v14, {sT0}, v14")
        P(f"s_lshl_b32 {sT0}, {sW}, 12")
        P(f"s_add_u32 {sT0}, {sT0}, {4*SLOT}")
        P(f"v_add_u32 v{TB[0]}, {sT0}, v14")
        P(f"v_xor_b32 v{TB[1]}, 64, v{TB[0]}")
        P(f"s_lshr_b32 {sT0}, {sW}, 1")
        P(f"s_mul_i32 {sT1}, {sT0}, {144*1024}")
        P(f"s_sub_u32 {sT2}, {144*1024}, {sT1}")
        P(f"v_add_u32 v{VA[0]}, {sT1}, v1")
        P(f"v_add_u32 v{VA[1]}, {sT2}, v1")

        slots = []
        for jsel in range(2):
            for t in range(4): slots.append((1, "A", jsel, t))
        for kind in ("B2", "B1"):
            for jsel in range(2):
                for t in range(4): slots.append((2, kind, jsel, t))
        for jsel in range(2):
            for t in range(2): slots.append((3, "C1", jsel, t))
        for jsel in range(2):
            for t in range(4): slots.append((4, "O", jsel, t))
        assert len(slots) == 36

        def ks_to(P, sg, dst):
            cls, kind, jsel, t = slots[sg]
            sj = sJ1 if jsel else sJ0
            if kind in ("A", "B2"):
                P(f"s_lshl_b32 {dst}, {sj}, 3")
                P(f"s_add_u32 {dst}, {dst}, {sKK[t]}")
                if kind == "B2": P(f"s_add_u32 {dst}, {dst}, 4")
            elif kind == "B1":
                P(f"s_mul_i32 {dst}, {sj}, 6")
                P(f"s_and_b32 {sT4}, {sj}, 1")
                P(f"s_lshl_b32 {sT4}, {sT4}, 1")
                P(f"s_add_u32 {dst}, {dst}, {sT4}")
                P(f"s_add_u32 {dst}, {dst}, {sKK[t]}")
                P(f"s_add_u32 {dst}, {dst}, 64")
            elif kind == "C1":
                P(f"s_mul_i32 {dst}, {sj}, 6")
                P(f"s_and_b32 {sT4}, {sj}, 1")
                P(f"s_lshl_b32 {sT4}, {sT4}, 2")
                P(f"s_sub_u32 {dst}, {dst}, {sT4}")
                P(f"s_and_b32 {sT4}, {sKK[t]}, 1")
                P(f"s_add_u32 {dst}, {dst}, {sT4}")
                P(f"s_add_u32 {dst}, {dst}, 68")
            else:
                P(f"s_lshl_b32 {dst}, {sj}, 2")
                P(f"s_add_u32 {dst}, {dst}, {sKK[t]}")

        def b2pos(sg):
            if sg < 18: k = sg % 4; return (4 + k // 2) * SLOT + (k % 2) * 2048
            if sg < 28: k = sg - 18; return (4 + k // 2) * SLOT + (k % 2) * 2048
            k = sg - 28; return (k // 2) * SLOT + (k % 2) * 2048

        def b2dma(sg):
            ks_to(P, sg, sT2)
            P(f"s_lshl_b32 {sT2}, {sT2}, 14")
            P(f"s_lshl_b32 {sT3}, {sM0}, 1")
            P(f"s_add_u32 m0, {sT3}, {b2pos(sg)}")
            sr = SO if slots[sg][1] == "O" else SD
            for q in range(2):
                P(f"buffer_load_dwordx4 v{VB[q]}, {sr}, {sT2} offen offset:{1024*q} lds", tok=f"b{sg}")

        tb_base = [4 * SLOT]
        def b2read(sg, regs):
            pos = b2pos(sg)
            want = (pos // (4 * SLOT)) * 4 * SLOT
            if want != tb_base[0]:
                d = want - tb_base[0]
                for ct in range(2):
                    if d > 0: P(f"v_add_u32 v{TB[ct]}, {d}, v{TB[ct]}")
                    else: P(f"v_subrev_u32 v{TB[ct]}, {-d}, v{TB[ct]}")
                tb_base[0] = want
            o = pos - want
            P.wait(f"b{sg}")
            for ct in range(2):
                P(f"ds_read_b64_tr_b16 {v(regs[ct],2)}, v{TB[ct]} offset:{o}")
                P(f"ds_read_b64_tr_b16 {v(regs[ct]+2,2)}, v{TB[ct]} offset:{o+1024}", tok=f"br{sg}")

        if typ == 1:
            order = list(range(18)) + list(range(22, 28)) + list(range(18, 22))
            per = [0, 1, 2, 1, 2, 1, 2, 1, 2, 1, 2, 1, 2, 1, 2, 1, 2, 2, 2, 0]
        else:
            order = list(range(18)) + list(range(18, 28))
            per = [0, 1, 2, 1, 2, 2, 2, 1, 2, 1, 2, 1, 1, 2, 0, 0, 0, 2, 3, 3]
        assert sum(per) == 28, sum(per)
        plan = {}
        k = 0
        for s in range(20):
            plan[s] = order[k:k + per[s]]; k += per[s]
        pend_reads = []

        extra = {}
        if typ == 0:
            KF = 16; A = 32; F = 48; PP = [56, 72]; TT = 88; TM = 104
            def t1_a():
                wphi_frags(P, 0, F, A, 14, 15)
            def t1_b():
                P(f"s_lshl_b32 {sT0}, {sW}, 11")
                P(f"s_add_u32 {sT0}, {sT0}, {PHI}")
                P(f"v_add_u32 v14, {sT0}, v1")
                for hh in range(4):
                    P(f"ds_read_b128 {v(KF+4*hh,4)}, v14 offset:{hh*8192}")
                P("s_setprio 2")
                for p in range(2):
                    P(f"v_mfma_f32_32x32x16_bf16 {v(PP[p],16)}, {v(A+8*p,4)}, {v(KF+8*p,4)}, 0")
                    P(f"v_mfma_f32_32x32x16_bf16 {v(PP[p],16)}, {v(A+8*p+4,4)}, {v(KF+8*p+4,4)}, {v(PP[p],16)}")
                P("s_setprio 0")
                P("v_and_b32 v108, 31, v0")
                P("v_lshlrev_b32 v108, 6, v108")
                P("v_bfe_u32 v14, v0, 1, 2")
                P("v_lshl_add_u32 v108, v14, 4, v108")
                P("v_lshrrev_b32 v14, 5, v0")
                P("v_lshl_add_u32 v108, v14, 13, v108")
                P(f"v_add_u32 v108, {sT0}, v108")
                for q in range(1, 4): P(f"v_xor_b32 v{108+q}, {16*q}, v108")
            def sm(p):
                Q = Prog()
                softmax_core(Q, PP[p], TT, TM, "s25")
                s1, s2 = TM + 2, TM + 3
                Q(f"v_rcp_f32 v{s1}, v{s1}")
                Q(f"v_rcp_f32 v{s2}, v{s2}")
                for k in range(16):
                    Q(f"v_mul_f32 v{TT+k}, v{TT+k}, v{s1}")
                    Q(f"v_mul_f32 v{PP[p]+k}, v{PP[p]+k}, v{s2}")
                for k in range(8):
                    Q(f"v_cvt_pk_bf16_f32 v{TT+k}, v{TT+2*k}, v{TT+2*k+1}")
                    Q(f"v_cvt_pk_bf16_f32 v{PP[p]+k}, v{PP[p]+2*k}, v{PP[p]+2*k+1}")
                for jj, r in enumerate([TT, TT + 4, PP[p], PP[p] + 4]):
                    Q(f"ds_write_b128 v{108+jj}, {v(r,4)} offset:{p*16384}", tok=f"phi{p}")
                return Q.ins
            smi = sm(0) + sm(1)
            nparts = 5
            tot = sum(i.cost for i in smi)
            parts = [[] for _ in range(nparts)]
            acc = 0
            for i in smi:
                parts[min(nparts - 1, acc * nparts // tot)].append(i); acc += i.cost
            def t1_kv():
                P("v_lshrrev_b32 v14, 5, v0")
                P("v_lshlrev_b32 v14, 9, v14")
                P("v_bfe_u32 v15, v0, 2, 2")
                P("v_lshl_add_u32 v14, v15, 6, v14")
                P("v_and_b32 v15, 1, v0")
                P("v_lshl_add_u32 v14, v15, 5, v14")
                P("v_bfe_u32 v15, v0, 4, 1")
                P("v_lshl_add_u32 v14, v15, 4, v14")
                P("v_bfe_u32 v15, v0, 1, 1")
                P("v_lshl_add_u32 v14, v15, 3, v14")
                P("v_bfe_u32 v15, v0, 3, 1")
                P("v_lshlrev_b32 v15, 4, v15")
                P("v_xor_b32 v14, v14, v15")
                P(f"s_and_b32 {sT0}, {sW}, 1")
                P(f"s_lshl_b32 {sT0}, {sT0}, 4")
                P(f"v_xor_b32 v104, {sT0}, v14")
                P(f"s_lshr_b32 {sT0}, {sW}, 1")
                P(f"s_lshl_b32 {sT0}, {sT0}, 13")
                P(f"s_add_u32 {sT0}, {sT0}, {VIMG}")
                P(f"v_add_u32 v104, {sT0}, v104")
                P(f"v_xor_b32 v105, 32, v104")
                P(f"s_lshl_b32 {sT0}, {sW}, 13")
                P(f"s_add_u32 {sT0}, {sT0}, {PHI}")
                P(f"v_add_u32 v14, {sT0}, v14")
                P(f"v_xor_b32 v15, 32, v14")
                P("v_mov_b32 v106, 0x3f803f80")
                P("s_mov_b32 s82, 0x0000ffff")
                P("s_mov_b32 s83, 0x0000ffff")
                D = 16
                for ks in range(8):
                    a, b = 32 + 8 * ks, 36 + 8 * ks
                    P(f"ds_read_b64_tr_b16 {v(a,2)}, v14 offset:{ks*1024}")
                    P(f"ds_read_b64_tr_b16 {v(a+2,2)}, v15 offset:{ks*1024+256}")
                    P(f"ds_read_b64_tr_b16 {v(b,2)}, v104 offset:{ks*1024}")
                    P(f"ds_read_b64_tr_b16 {v(b+2,2)}, v105 offset:{ks*1024+256}", tok="kvrd")
                for ks in range(8):
                    b = 36 + 8 * ks
                    for k in range(4): P(f"v_cndmask_b32 v{b+k}, v106, v{b+k}, {sMASK}")
                P("s_setprio 2")
                for ks in range(8):
                    a, b = 32 + 8 * ks, 36 + 8 * ks
                    P(f"v_mfma_f32_32x32x16_bf16 {v(D,16)}, {v(a,4)}, {v(b,4)}, {'0' if ks == 0 else v(D,16)}")
                P("s_setprio 0")
                P("v_and_b32 v14, 31, v0")
                P("v_lshrrev_b32 v15, 5, v0")
                P("v_lshlrev_b32 v104, 4, v14")
                P("v_lshl_add_u32 v104, v15, 8, v104")
                P(f"s_lshl_b32 {sT0}, {sW}, 10")
                P(f"v_add_u32 v104, {sT0}, v104")
                P(f"v_add_u32 v105, 512, v104")
                P(f"s_lshl_b32 {sT0}, {sW}, 6")
                P(f"s_add_u32 {sT0}, {sT0}, 4096")
                P("v_lshlrev_b32 v106, 5, v15")
                P(f"v_add_u32 v106, {sT0}, v106")
                P("v_add_u32 v107, 16, v106")
                P("v_cmp_eq_u32 vcc, 16, v14")
                P("v_cndmask_b32 v104, v104, v106, vcc")
                P("v_cndmask_b32 v105, v105, v107, vcc")
                P("v_mov_b32 v106, 0x7f000000")
                P("v_cmp_lt_u32 vcc, 16, v14")
                P("v_cndmask_b32 v104, v104, v106, vcc")
                P("v_cndmask_b32 v105, v105, v106, vcc")
                P(f"s_lshl_b32 {sT0}, {sJ}, 4")
                P(f"s_add_u32 {sT0}, {sT0}, {sRB}")
                P(f"s_mul_i32 {sT1}, {sT0}, {KVREC}")
                P(f"s_add_u32 {sT1}, {sT1}, {KVP_OFF}")
                for k in range(8): P(f"v_cvt_pk_bf16_f32 v{D+k}, v{D+2*k}, v{D+2*k+1}")
                P(f"buffer_store_dwordx4 {v(D,4)}, v104, {SWS}, {sT1} offen sc1")
                P(f"buffer_store_dwordx4 {v(D+4,4)}, v105, {SWS}, {sT1} offen sc1", tok="kvst")
            def t1_flag():
                P(f"s_lshl_b32 {sT0}, {sJ}, 4")
                P(f"s_add_u32 {sT0}, {sT0}, {sRB}")
                P(f"s_lshl_b32 {sT0}, {sT0}, 2")
                P(f"s_add_u32 {sT0}, {sT0}, {sW}")
                P(f"s_lshl_b32 {sT0}, {sT0}, 2")
                P(f"s_add_u32 {sT0}, {sT0}, {FLAGKV_OFF}")
                P(f"s_add_u32 {sT1}, {sNONCE}, 1")
                P(f"v_mov_b32 v14, {sT1}")
                P.wait("kvst")
                P(f"buffer_store_dword v14, off, {SWS}, {sT0} sc1")
            extra[4] = [t1_a]
            extra[10] = [t1_b, lambda: P.extend(parts[0])]
            for q in range(1, nparts):
                extra[10 + q] = [lambda q=q: P.extend(parts[q])]
            extra[14].append(lambda: P.wait("phi1"))
            extra[15] = [t1_kv]
            extra[17] = [t1_flag]

        for s in range(20):
            P.wait(f"w{s}")
            P("s_barrier")
            if s == 0:
                S2(P, "B0")
                P(f"s_and_b32 {sT0}, {sW}, 1")
                P(f"s_lshl_b32 {sT0}, {sT0}, 10")
                P(f"s_add_u32 m0, {sT0}, {WPHI}")
                P(f"s_lshl_b32 {sT1}, {sJ}, 11")
                P(f"s_add_u32 {sT1}, {sT1}, {sT0}")
                P(f"buffer_load_dwordx4 v1, {SPHI}, {sT1} offen lds", tok="wphi")
                for k in range(4): P(f"v_mov_b32 v{16+k}, 0")
                P(f"v_add_u32 v14, {sM0}, v1")
                P(f"v_add_u32 v14, {KVF}, v14")
                P(f"ds_write_b128 v14, v[16:19]")
                P(f"ds_write_b128 v14, v[16:19] offset:1024")
                P(f"v_add_u32 v14, {ZL}, v1")
                P(f"ds_write_b128 v14, v[16:19]", tok="zinit")
                P(f"buffer_load_dword v15, off, {SDBG}, 0 sc1")
            if s == 1:
                poll_nonce(P, cfg, "v15")
            if s + 2 < 20 and s >= 2:
                wchunk(s + 2)
            todo = [sg for (sg, st_) in pend_reads if st_ <= s - 2]
            pend_reads = [(sg, st_) for (sg, st_) in pend_reads if st_ > s - 2]
            for sg in todo:
                b2read(sg, [B2R + 8 * sg, B2R + 8 * sg + 4])
            for sg in plan[s]:
                prev = None
                if sg < 18 and sg >= 4: prev = sg - 4
                if 18 <= sg < 22:
                    prev = max(x for x in range(18) if x % 4 == (sg - 18))
                if prev is not None:
                    if any(x == prev for x, _ in pend_reads):
                        pend_reads = [(x, y) for (x, y) in pend_reads if x != prev]
                        b2read(prev, [B2R + 8 * prev, B2R + 8 * prev + 4])
                    P.wait(f"br{prev}")
                if typ == 0 and 22 <= sg < 28:
                    assert s >= 17, "T1 scratch still in use"
                b2dma(sg)
                if sg < 18: pend_reads.append((sg, s))
            if s == 2:
                P.wait("wphi", "zinit")
            for f in extra.get(s, []):
                f()
            if typ == 0 and s == 15:
                P.wait("kvrd")
        for sg, _ in pend_reads:
            b2read(sg, [B2R + 8 * sg, B2R + 8 * sg + 4])
        S2(P, "ringend")
        return P, S2, dict(slots=slots, ks_to=ks_to, b2dma=b2dma, b2read=b2read)

    def p2_phase2(typ, P, S2, h):
        slots, ks_to, b2dma, b2read = h["slots"], h["ks_to"], h["b2dma"], h["b2read"]
        sFL = "s3"
        P(f"s_lshl_b32 {sFL}, {sR2}, 7")
        P(f"s_add_u32 {sFL}, {sFL}, {FLAGH_OFF}")
        P("v_and_b32 v12, 31, v0")
        P("v_lshlrev_b32 v12, 2, v12")
        P(f"s_lshl_b32 {sT0}, {sJ0}, 1")
        P(f"s_lshl_b32 {sT0}, 3, {sT0}")
        P(f"s_lshl_b32 {sT1}, {sJ1}, 1")
        P(f"s_lshl_b32 {sT1}, 3, {sT1}")
        P(f"s_or_b32 s26, {sT0}, {sT1}")
        def check(cls):
            P(f"buffer_load_dword v13, v12, {SWS}, {sFL} offen sc1")
            if cls in (1, 4): P("s_lshl_b32 s82, s26, 16")
            elif cls == 3: P("s_mov_b32 s82, s26")
            else:
                P("s_lshl_b32 s82, s26, 16"); P("s_or_b32 s82, s82, s26")
            P("s_mov_b32 s83, 0")
            poll_global(P, cfg, "v13", "v12", SWS, sFL, cls, 4, sMASK)
        free = [RING + 4 * i for i in range(8)]
        areg = {}
        breg = {sg: [B2R + 8 * sg, B2R + 8 * sg + 4] for sg in range(18)}
        checked = [0]
        nxt_a = [0]
        def aload(sg):
            cls = slots[sg][0]
            if cls > checked[0]:
                check(cls); checked[0] = cls
            ks_to(P, sg, sT2)
            if slots[sg][1] == "O": P(f"s_add_u32 {sT2}, {sT2}, 112")
            P(f"s_lshl_b32 {sT2}, {sT2}, 10")
            P(f"s_add_u32 {sT2}, {sT2}, {sHB2}")
            r = [free.pop(0), free.pop(0)]
            areg[sg] = r
            for rt in range(2):
                P(f"buffer_load_dwordx4 {v(r[rt],4)}, v{VA[rt]}, {SWS}, {sT2} offen sc1")
        P("v_and_b32 v14, 31, v0")
        P("v_lshlrev_b32 v14, 10, v14")
        P("v_lshrrev_b32 v15, 5, v0")
        P("v_lshl_add_u32 v14, v15, 4, v14")
        P(f"s_lshl_b32 {sT0}, {sR2}, 1")
        P(f"s_lshr_b32 {sT1}, {sW}, 1")
        P(f"s_add_u32 {sT0}, {sT0}, {sT1}")
        P(f"s_lshl_b32 {sT0}, {sT0}, 15")
        P(f"s_lshl_b32 {sT1}, {sC2}, 7")
        P(f"s_add_u32 {sT0}, {sT0}, {sT1}")
        P(f"s_and_b32 {sT1}, {sW}, 1")
        P(f"s_lshl_b32 {sT1}, {sT1}, 6")
        P(f"s_add_u32 {sT0}, {sT0}, {sT1}")
        P(f"v_add_u32 v14, {sT0}, v14")
        for sg in range(28, 32): b2dma(sg)
        for sg in range(4): aload(sg)
        nxt_a[0] = 4
        S2(P, "cls1")
        if typ == 1:
            P("v_lshlrev_b32 v15, 2, v0")
            P(f"s_lshl_b32 {sT3}, {sJ}, 8")
            P(f"s_add_u32 {sT3}, {sT3}, {FLAGKV_OFF}")
            P(f"buffer_load_dword v13, v15, {SWS}, {sT3} offen sc1")
            P("s_mov_b64 s[82:83], -1")
            poll_global(P, cfg, "v13", "v15", SWS, sT3, 1, 1, sMASK)
            S2(P, "kvflag")
            P(f"s_mul_i32 {sT3}, {sJ}, {16*KVREC}")
            P(f"s_add_u32 {sT3}, {sT3}, {KVP_OFF}")
            P("v_lshrrev_b32 v15, 4, v0")
            P(f"v_mul_u32_u24 v15, {KVREC}, v15")
            P("v_and_b32 v13, 15, v0")
            P("v_lshl_add_u32 v15, v13, 4, v15")
            P(f"s_mul_i32 {sT0}, {sW}, {4*KVREC}")
            P(f"s_add_u32 {sT0}, {sT0}, {sT3}")
            P(f"s_add_u32 {sT0}, {sT0}, 4096")
            P(f"buffer_load_dwordx4 v[2:5], v15, {SWS}, {sT0} offen sc1")
            P(f"s_lshl_b32 {sT0}, {sW}, 10")
            P(f"s_add_u32 {sT3}, {sT3}, {sT0}")
            dst = [24 + 4 * (i % 14) for i in range(16)]
            for i in range(14):
                P(f"buffer_load_dwordx4 {v(dst[i],4)}, v1, {SWS}, {sT3} offen sc1")
                P(f"s_add_u32 {sT3}, {sT3}, {KVREC}")
            P(f"s_mov_b32 {sT1}, 0xffff0000")
            P("v_lshlrev_b32 v13, 5, v13")
            P(f"v_add_u32 v13, {ZL}, v13")
            for k in range(4):
                P(f"v_lshlrev_b32 v15, 16, v{2+k}")
                P(f"ds_add_f32 v13, v15 offset:{8*k}")
                P(f"v_and_b32 v{2+k}, {sT1}, v{2+k}")
                P(f"ds_add_f32 v13, v{2+k} offset:{8*k+4}")
                P("s_nop 0")
            for i in range(16):
                d = dst[i]
                for k in range(4):
                    if i == 0:
                        P(f"v_lshlrev_b32 v{16+2*k}, 16, v{d+k}")
                        P(f"v_and_b32 v{17+2*k}, {sT1}, v{d+k}")
                    else:
                        P(f"v_lshlrev_b32 v15, 16, v{d+k}")
                        P(f"v_and_b32 v{d+k}, {sT1}, v{d+k}")
                        P(f"v_add_f32 v{16+2*k}, v{16+2*k}, v15")
                        P(f"v_add_f32 v{17+2*k}, v{17+2*k}, v{d+k}")
                if i < 2:
                    P(f"buffer_load_dwordx4 {v(dst[14+i],4)}, v1, {SWS}, {sT3} offen sc1")
                    P(f"s_add_u32 {sT3}, {sT3}, {KVREC}")
            for k in range(4): P(f"v_cvt_pk_bf16_f32 v{16+k}, v{16+2*k}, v{17+2*k}")
            P("v_and_b32 v13, 15, v0")
            P("v_lshlrev_b32 v13, 4, v13")
            P("v_bfe_u32 v15, v0, 4, 1")
            P("v_lshl_add_u32 v13, v15, 11, v13")
            P("v_lshrrev_b32 v15, 5, v0")
            P("v_lshl_add_u32 v13, v15, 10, v13")
            P(f"s_lshr_b32 {sT0}, {sW}, 1")
            P(f"s_lshl_b32 {sT0}, {sT0}, 12")
            P(f"s_and_b32 {sT1}, {sW}, 1")
            P(f"s_mul_i32 {sT1}, {sT1}, 768")
            P(f"s_add_u32 {sT0}, {sT0}, {sT1}")
            P(f"s_add_u32 {sT0}, {sT0}, {KVF}")
            P(f"v_add_u32 v13, {sT0}, v13")
            P("ds_write_b128 v13, v[16:19]", tok="kvf")
            P(f"s_lshl_b32 {sT0}, {sW}, 2")
            P(f"s_add_u32 {sT0}, {sT0}, {LFLAG+16}")
            P(f"v_mov_b32 v13, {sT0}")
            P("v_mov_b32 v15, 1")
            P.wait("kvf")
            P("ds_write_b32 v13, v15")
            S2(P, "kvsum")
        P(f"buffer_load_dwordx4 v[32:35], v14, {SX}, 0 offen")
        P(f"buffer_load_dwordx4 v[36:39], v14, {SX}, 0 offen offset:32")
        P(f"s_mov_b32 {sT1}, 0xffff0000")
        for jj in range(2):
            b = 32 + 4 * jj
            P(f"v_permlane32_swap_b32 v{b}, v{b+2}")
            P(f"v_permlane32_swap_b32 v{b+1}, v{b+3}")
        for k in range(8):
            P(f"v_lshlrev_b32 v{ACC+2*k}, 16, v{32+k}")
            P(f"v_and_b32 v{ACC+2*k+1}, {sT1}, v{32+k}")
        nxt_b = [18]
        BLA = 3
        for sg in range(36):
            if sg == 12:
                P(f"v_mov_b32 v15, {LFLAG}")
                poll_lds(P, cfg, 2, "v15", 0)
                for x in range(32, 36): b2dma(x)
            for ct in range(2):
                for rt in range(2):
                    q = ct + 2 * rt
                    a = ACC + 16 * q
                    c = "0" if (sg == 0 and q != 0) else v(a, 16)
                    P(f"v_mfma_f32_32x32x16_bf16 {v(a,16)}, {v(breg[sg][ct],4)}, {v(areg[sg][rt],4)}, {c}")
            free.extend(areg[sg]); free.extend(breg[sg])
            while nxt_b[0] < 36 and nxt_b[0] <= sg + BLA:
                r = [free.pop(0), free.pop(0)]
                breg[nxt_b[0]] = r
                b2read(nxt_b[0], r); nxt_b[0] += 1
            cnt = 0
            while nxt_a[0] < 36 and len(free) >= 4 and nxt_a[0] <= sg + 8 and cnt < 2:
                aload(nxt_a[0]); nxt_a[0] += 1; cnt += 1
        S2(P, "mainend")
        P(f"s_lshl_b32 {sT0}, {sW}, 12")
        P(f"s_add_u32 {sT0}, {sT0}, {4*SLOT}")
        P(f"v_add_u32 v2, {sT0}, v1")
        for q in range(1, 4):
            for k in range(4):
                P(f"ds_write_b128 v2, {v(ACC+16*q+4*k,4)} offset:{q*SLOT+k*1024}")
        for q in range(1, 4):
            P(f"v_xor_b32 v{2+q}, {q*4096}, v2")
        P("s_waitcnt lgkmcnt(0)")
        P("s_barrier")
        for q in range(1, 4):
            for k in range(4):
                P(f"ds_read_b128 {v(ACC+16*q+4*k,4)}, v{2+q} offset:{q*SLOT+k*1024}")
        for q in range(1, 4):
            for k in range(16):
                P(f"v_add_f32 v{ACC+k}, v{ACC+k}, v{ACC+16*q+k}")
        for k in range(8): P(f"v_cvt_pk_bf16_f32 v{ACC+k}, v{ACC+2*k}, v{ACC+2*k+1}")
        for jj in range(2):
            b = ACC + 4 * jj
            P(f"v_permlane32_swap_b32 v{b}, v{b+2}")
            P(f"v_permlane32_swap_b32 v{b+1}, v{b+3}")
            P(f"buffer_store_dwordx4 {v(b,4)}, v14, {SOUT}, 0 offen offset:{32*jj}")
        S2(P, "end")
        S2.dump(P, 1)
        P("s_endpgm")

    names = {"p1t1": names_p1t1, "p1t2": names_p1t2}
    for typ in range(2):
        P, S2, h = p2_rest(typ)
        p2_phase2(typ, P, S2, h)
        r, _ = finalize(P, st2, log)
        segs.append(r)
        names[f"p2t{typ+1}"] = S2.names

    hdr = open("cdna_kernels/" + NAME + ".s.ref").read().split("\n")
    head = [l for l in hdr if l.startswith(";") and "@launch" not in l and "Override launch" not in l and "grid=ceil" not in l]
    out = "\n".join(head) + f"\n; @launch grid=(256,1,1) block=(512,1,1) lds={LDS_BYTES}\n"
    out += f""".amdgcn_target "amdgcn-amd-amdhsa--gfx950"
.text
.globl {NAME}_kernel
.p2align 8
.type {NAME}_kernel,@function
{NAME}_kernel:
"""
    for sgm in segs:
        out += text_of(sgm)
    out += f"""L_end:
  s_endpgm
L_codeend:
.section .rodata,"a"
.p2align 6
.amdhsa_kernel {NAME}_kernel
  .amdhsa_next_free_vgpr 256
  .amdhsa_next_free_sgpr 102
  .amdhsa_accum_offset 256
  .amdhsa_group_segment_fixed_size 0
  .amdhsa_kernarg_size 88
  .amdhsa_user_sgpr_count 2
  .amdhsa_user_sgpr_kernarg_segment_ptr 1
  .amdhsa_system_sgpr_workgroup_id_x 1
.end_amdhsa_kernel
"""
    return out, names, log


if __name__ == "__main__":
    cfg = Cfg()
    outp = "cdna_kernels/" + NAME + ".s"
    for a in sys.argv[1:]:
        if a.startswith("out="): outp = a[4:]
        else:
            k, val = a.split("=")
            setattr(cfg, k, type(getattr(cfg, k))(int(val)))
    text, names, log = gen(cfg)
    open(outp, "w").write(text)
    import json
    json.dump(names, open(outp + ".names.json", "w"))
    print("written", outp, len(text), "bytes;", log)
```

```python
import re, copy

_REG = re.compile(r"^(-?)(?:abs\()?([vsa])(\d+)\)?$")
_RNG = re.compile(r"^(-?)([vsa])\[(\d+):(\d+)\]$")

TRANS = ("v_exp_f32", "v_log_f32", "v_rcp_f32", "v_rsq_f32", "v_sqrt_f32", "v_sin_f32", "v_cos_f32")


def regs_of(op):
    op = op.strip()
    m = _REG.match(op)
    if m:
        return [(m.group(2), int(m.group(3)))]
    m = _RNG.match(op)
    if m:
        return [(m.group(2), i) for i in range(int(m.group(3)), int(m.group(4)) + 1)]
    if op in ("vcc",):
        return [("x", "vcc")]
    if op in ("vcc_lo", "vcc_hi"):
        return [("x", "vcc")]
    if op in ("exec", "exec_lo", "exec_hi"):
        return [("x", "exec")]
    if op == "m0":
        return [("x", "m0")]
    return []


class Ins:
    __slots__ = ("text", "op", "kind", "rd", "wr", "tok", "waitfor", "srcc", "ab", "data", "cost", "pin")

    def __init__(self, text, tok=None, waitfor=None):
        self.text = text
        self.tok = tok
        self.waitfor = waitfor
        self.srcc = set()
        self.ab = set()
        self.data = set()
        self.pin = False
        t = text.split(";")[0].strip()
        t = re.sub(r"\s(op_sel|op_sel_hi|neg_lo|neg_hi):\[[^\]]*\]", "", t)
        if t.endswith(":") or t.startswith(".") or t == "":
            self.op = ""; self.kind = "label"; self.rd = set(); self.wr = set(); self.cost = 0
            return
        parts = t.split(None, 1)
        op = parts[0]
        base = re.sub(r"_(e32|e64|dpp|sdwa)$", "", op)
        self.op = base
        rest = parts[1] if len(parts) > 1 else ""
        ops = [o.strip() for o in rest.split(",")] if rest else []
        if ops:
            last = ops[-1].split()
            mods = last[1:]
            ops[-1] = last[0] if last else ""
        else:
            mods = []
        R = lambda lst: set(r for o in lst for r in regs_of(o))
        rd, wr = set(), set()
        self.cost = 1
        if base == "WAIT":
            self.kind = "wait"
        elif base.startswith("v_mfma"):
            self.kind = "mfma"; wr = R(ops[:1]); rd = R(ops[1:]); self.srcc = R(ops[3:4]); self.ab = R(ops[1:3]); self.cost = 2
        elif base.startswith("v_cmp"):
            self.kind = "valu"; wr = R(ops[:1]); rd = R(ops[1:])
        elif base.startswith("v_permlane"):
            self.kind = "valu"; wr = R(ops); rd = R(ops)
        elif base in ("v_readfirstlane_b32", "v_readlane_b32"):
            self.kind = "valu"; wr = R(ops[:1]); rd = R(ops[1:])
        elif base.startswith("v_"):
            self.kind = "valu"; wr = R(ops[:1]); rd = R(ops[1:])
            if base in ("v_fmac_f32", "v_dot2c_f32_bf16"):
                rd |= wr
            if base in TRANS:
                self.cost = 2
            if base in ("v_cndmask_b32",) and len(ops) == 3:
                rd.add(("x", "vcc"))
        elif base.startswith("ds_read"):
            self.kind = "ds"; wr = R(ops[:1]); rd = R(ops[1:])
        elif base.startswith("ds_"):
            self.kind = "ds"; rd = R(ops)
        elif base.startswith("buffer_load") or base.startswith("global_load"):
            self.kind = "vmem"
            if "lds" in mods:
                rd = R(ops); rd.add(("x", "m0"))
            else:
                wr = R(ops[:1]); rd = R(ops[1:])
        elif base.startswith("buffer_store") or base.startswith("global_store"):
            self.kind = "vmem"; rd = R(ops)
            self.data = R(ops[:1]) if base.startswith("buffer") else R(ops[1:2])
        elif base.startswith("s_load") or base in ("s_memtime", "s_memrealtime"):
            self.kind = "smem"; wr = R(ops[:1]); rd = R(ops[1:])
        elif base in ("s_waitcnt", "s_nop", "s_barrier", "s_setprio", "s_sleep", "s_endpgm", "s_branch") or base.startswith("s_cbranch"):
            self.kind = "sopp"
        elif base.startswith("s_cmp"):
            self.kind = "salu"; rd = R(ops)
        elif base.startswith("s_"):
            self.kind = "salu"; wr = R(ops[:1]); rd = R(ops[1:])
            if "saveexec" in base:
                wr.add(("x", "exec")); rd.add(("x", "exec"))
        else:
            raise ValueError("unknown instruction: " + text)
        self.rd, self.wr = rd, wr

    def states(self):
        if self.kind in ("label",):
            return 0
        if self.op == "s_nop":
            return int(self.text.split()[1], 0) + 1
        return 1


class Prog:
    def __init__(self):
        self.ins = []

    def __call__(self, text, tok=None):
        i = Ins(text, tok=tok)
        self.ins.append(i)
        return i

    def wait(self, *toks):
        self.ins.append(Ins("WAIT", waitfor=list(toks)))

    def extend(self, other):
        self.ins.extend(other.ins if isinstance(other, Prog) else other)

    def label(self, name):
        self.ins.append(Ins(name + ":"))


class State:
    def __init__(self):
        self.lq = []
        self.vq = []
        self.hist = []
        self.done = set()

    def copy(self):
        s = State()
        s.lq = list(self.lq); s.vq = list(self.vq); s.hist = list(self.hist); s.done = set(self.done)
        return s


def _need(prev, cur):
    n = 0
    vw = {r for r in prev.wr if r[0] in "va"}
    sw = {r for r in prev.wr if r[0] == "s" or r == ("x", "vcc")}
    touch = cur.rd | cur.wr
    if prev.kind == "valu":
        isdot = prev.op.startswith("v_dot")
        if cur.kind == "mfma" and vw & cur.rd:
            n = max(n, 3 if isdot else 2)
        if isdot and cur.kind in ("valu", "ds", "vmem") and vw & touch:
            if not (cur.op == prev.op and not (vw & (cur.rd - cur.wr))):
                n = max(n, 3)
        if prev.op in TRANS and cur.kind in ("valu", "ds", "vmem") and vw & cur.rd:
            n = max(n, 1)
        if cur.op.startswith("v_permlane") and vw & cur.rd:
            n = max(n, 2)
        if cur.kind == "valu" and "dpp" in cur.text.split()[0] and vw & cur.rd:
            n = max(n, 2)
        if cur.op in ("v_readfirstlane_b32", "v_readlane_b32") and vw & cur.rd:
            n = max(n, 1)
        if sw:
            if cur.kind == "valu" and sw & cur.rd:
                n = max(n, 4 if cur.op in ("v_readlane_b32",) else 2)
            if cur.kind == "vmem" and sw & cur.rd:
                n = max(n, 5)
            if cur.kind in ("salu", "sopp") and (sw & cur.rd or cur.op.startswith("s_cbranch_vcc")):
                n = max(n, 5 if cur.op.startswith("s_cbranch_vcc") else 1)
        if ("x", "exec") in prev.wr:
            n = max(n, 5)
    elif prev.kind == "mfma":
        passes = 8 if "32x32x16" in prev.op else 4
        d = vw
        full = {8: 12, 4: 8}[passes]
        if cur.kind == "mfma":
            if d & cur.ab:
                n = max(n, full)
            if d & cur.srcc and not (cur.srcc == d and cur.op == prev.op):
                n = max(n, {8: 10, 4: 6}[passes])
            if d & cur.wr and not (cur.srcc == d and cur.op == prev.op):
                n = max(n, full)
        elif cur.kind in ("valu", "ds", "vmem"):
            if d & touch:
                n = max(n, full)
            if cur.kind == "valu" and prev.srcc & cur.wr:
                n = max(n, {8: 7, 4: 3}[passes])
    elif prev.kind == "salu":
        if ("x", "m0") in prev.wr and ("x", "m0") in cur.rd:
            n = max(n, 1)
    elif prev.kind == "vmem":
        if len(prev.data) >= 3 and prev.data & cur.wr:
            n = max(n, 2)
    return n


VQ_AT = {}
def finalize(prog, state=None, log=None):
    st = state.copy() if state else State()
    out = []
    stats = {"nop": 0, "autowait": 0}

    def emit(i):
        out.append(i)
        st.hist.append(i)
        if len(st.hist) > 40:
            del st.hist[0]

    def do_wait(nl, nv):
        parts = []
        if nv is not None:
            assert nv <= 63
            parts.append(f"vmcnt({nv})")
            while len(st.vq) > nv:
                x = st.vq.pop(0)
                if x.tok: st.done.add(x.tok)
        if nl is not None:
            nl = min(nl, 15)
            parts.append(f"lgkmcnt({nl})")
            while len(st.lq) > nl:
                x = st.lq.pop(0)
                if x.tok: st.done.add(x.tok)
        if parts:
            emit(Ins("s_waitcnt " + " ".join(parts)))

    for i in prog.ins:
        if i.kind == "label":
            VQ_AT[i.text] = len(st.vq)
            emit(i); continue
        if i.kind == "wait":
            nl = nv = None
            for tk in i.waitfor:
                found = False
                for q, nm in ((st.lq, "l"), (st.vq, "v")):
                    idx = [k for k, x in enumerate(q) if x.tok == tk]
                    if idx:
                        found = True
                        n = len(q) - 1 - max(idx)
                        if nm == "l": nl = n if nl is None else min(nl, n)
                        else: nv = n if nv is None else min(nv, n)
                if not found:
                    assert tk in st.done, f"wait on unknown token {tk}"
            do_wait(nl, nv)
            continue
        if i.op == "s_waitcnt":
            m = re.search(r"vmcnt\((\d+)\)", i.text)
            nv = int(m.group(1)) if m else None
            m = re.search(r"lgkmcnt\((\d+)\)", i.text)
            nl = int(m.group(1)) if m else None
            useless = (nv is None or len(st.vq) <= nv) and (nl is None or len(st.lq) <= nl)
            if useless and not i.pin:
                continue
            do_wait(nl, nv)
            continue
        touch = i.rd | i.wr
        nl = nv = None
        for k, x in enumerate(st.lq):
            if x.wr & touch:
                n = 0 if x.kind == "smem" or any(y.kind == "smem" for y in st.lq) else len(st.lq) - 1 - k
                nl = n if nl is None else min(nl, n)
        for k, x in enumerate(st.vq):
            if x.wr & touch:
                n = len(st.vq) - 1 - k
                nv = n if nv is None else min(nv, n)
        if nl is not None or nv is not None:
            stats["autowait"] += 1
            do_wait(nl, nv)
        if i.kind == "vmem" and len(st.vq) >= 63:
            do_wait(None, 62)
        dist = 0
        need = 0
        for p in reversed(st.hist):
            if dist >= 20:
                break
            r = _need(p, i)
            if r - dist > need:
                need = r - dist
            dist += p.states()
        if need > 0:
            stats["nop"] += need
            emit(Ins(f"s_nop {need-1}"))
        emit(i)
        if i.kind in ("ds", "smem"):
            st.lq.append(i)
            if i.kind == "smem":
                st.lq.append(i)
        elif i.kind == "vmem":
            st.vq.append(i)
    if log is not None:
        log.append(stats)
    return out, st


def text_of(inss):
    return "\n".join(("" if i.kind == "label" else "  ") + i.text for i in inss) + "\n"
```

```python
import sys, math, re
from asmlib import *

NAME = "parallel_sum__linear_kernel_hedgehog__glu_gated_glu__prompt"

class Cfg:
    stamps = 0
    map84 = True
    LA = 5
    cap = 3
    spin = 1 << 16
    skew = True
    codepf = True
    nob2 = False
    dbgstage = -1
    now = False
    sleep = 1
    nosm = False
    allb = -1
    phib = 9
    vprio = 0
    kvst = 17
    kvfl = 11
    b2lag = 2
    per1 = [0,2,2,2,2,2,2,2, 4,0,1,1,1,1,0,0,2,0]
    wdelay = 0
    ofirst = 0
    cap2 = 5
    spin2 = 4096
    touch = -1
    tmajor = 0
    padT = 0
    tl = 0
    kvb = 0
    qb = 5
    skipb = 99
    skipw = 99
    nc = 0
    t2e = 2
    stag2 = 2
    stag1 = 2
    fastslow = 1
    thr = 4
    thrn = 6
    hold = 0
    nfin = 2
    ntx = 0
    ntw = 0
    ntb = 0
    tlb = 0
    warm = 20
    rt = 0
    b2hit = 0
    nopz = 0
    outsc = 0
    pg0 = 6
    pgs = 1
    slotst = 0
    per2 = [1,2,2,2,2,1,2,1, 2,1,2,1,2,0,0,1,0,0]
    kvn = 3
    flagA = 262
    smend2 = 14
    capC = 5
    hprio = 0
    ala = 8
    dbgout = False
    fla = 3

H_OFF = 0
KVP_OFF = 0xA00000
KVHEAD = 1152
KVREC = 4 * KVHEAD
FLAGH_OFF = 0xB00000
FLAGKV_OFF = 0xB80000
STAMP_OFF = 0xC00000
WS_BYTES = 0x1000000

SLOT = 16384
XBASE = 4 * SLOT
PHI = 6 * SLOT
VIMG = 8 * SLOT
SCR = 9 * SLOT
WPHI = SCR
KVF = SCR + 2048
ZL = SCR + 10240
LFLAG = SCR + 10752
WF = SCR + 11264
STX = SCR + 14336
XN = 4 * SLOT
XB0 = 2 * SLOT
LDS_BYTES = 10 * SLOT

SX, SWS, SDBG, SQKV, SG, SU, SD, SO, SPHI, SOUT = [f"s[{b}:{b+3}]" for b in range(28, 68, 4)]
sW, sRB, sJ, sTYPE, sROT, sR2, sC2, sNONCE = [f"s{i}" for i in range(68, 76)]
sT0, sT1, sT2, sT3, sT4, sT5 = [f"s{i}" for i in range(76, 82)]
sMASK = "s[82:83]"
sMASK2 = "s[84:85]"
sCNT = "s86"
sHI = "s87"
sC1 = "s3"
sC2K = "s26"
sC3 = "s27"

NT = ["", " nt"]
LOG2E = 0x3FB8AA3B
NLOG2E = 0xBFB8AA3B

def v(a, n=1):
    return f"v{a}" if n == 1 else f"v[{a}:{a+n-1}]"

def srd(P, name, plo, nbytes):
    b = int(name[2:name.index(":")])
    P(f"s_mov_b32 s{b}, s{plo}")
    P(f"s_mov_b32 s{b+1}, s{plo+1}")
    P(f"s_mov_b32 s{b+2}, {nbytes:#x}")
    P(f"s_mov_b32 s{b+3}, 0x20000")

_lbl = [0]
def newlabel(p):
    _lbl[0] += 1
    return f"L_{p}_{_lbl[0]}"

class Stamps:
    def __init__(self, cfg, regs):
        self.cfg = cfg; self.regs = regs; self.n = 0; self.names = []
    def __call__(self, P, name):
        if not self.cfg.stamps or self.cfg.stamps == 2: return
        assert self.n < len(self.regs), "too many stamps"
        P("s_memrealtime s[100:101]" if self.cfg.rt else "s_memtime s[100:101]")
        i = P("s_waitcnt lgkmcnt(0)"); i.pin = True
        P(f"s_mov_b32 {self.regs[self.n]}, s100")
        self.n += 1; self.names.append(name)
    def fork(self):
        s = Stamps(self.cfg, self.regs); s.n = self.n; s.names = list(self.names); return s
    def dump(self, P, role):
        if not self.cfg.stamps: return
        P(f"s_lshl_b32 {sT0}, s2, 3")
        P(f"s_add_u32 {sT0}, {sT0}, {sW}")
        P(f"s_add_u32 {sT0}, {sT0}, {4*role}")
        P(f"s_lshl_b32 {sT0}, {sT0}, 7")
        P(f"s_add_u32 {sT0}, {sT0}, {STAMP_OFF}")
        P("v_mov_b32 v12, 0")
        P("s_memrealtime s[100:101]")
        i = P("s_waitcnt lgkmcnt(0)"); i.pin = True
        P("v_mov_b32 v13, s96")
        P(f"buffer_store_dword v13, v12, {SWS}, {sT0} offen offset:120")
        P("s_nop 1")
        P("v_mov_b32 v13, s100")
        P(f"buffer_store_dword v13, v12, {SWS}, {sT0} offen offset:124")
        P("s_nop 1")
        for k in range(self.n):
            P(f"v_mov_b32 v13, {self.regs[k]}")
            P(f"buffer_store_dword v13, v12, {SWS}, {sT0} offen offset:{4*k}")
            P("s_nop 1")


def poll_global(P, cfg, vflag, vaddr, srdname, soff, need, maxv, smask, tok=None):
    L, OK = newlabel("poll"), newlabel("ok")
    P(f"s_mov_b32 {sCNT}, {cfg.spin}")
    P(f"s_add_u32 {sT5}, {sNONCE}, {need}")
    P(f"v_subrev_u32 {vflag}, {sT5}, {vflag}")
    P.label(L)
    P(f"v_cmp_lt_u32 vcc, {maxv-need}, {vflag}")
    P("s_nop 1")
    P(f"s_and_b64 vcc, vcc, {smask}")
    P(f"s_cbranch_scc0 {OK}")
    P(f"s_sleep {cfg.sleep}")
    P.ins.append(Ins(f".raw"))
    P.ins[-1].text = f"  buffer_load_dword {vflag}, {vaddr}, {srdname}, {soff} offen sc1\n  s_waitcnt vmcnt(0)\n  v_subrev_u32 {vflag}, {sT5}, {vflag}\n  s_sub_u32 {sCNT}, {sCNT}, 1\n  s_cbranch_scc0 {L}"
    P.label(OK)


def poll_nonce(P, cfg, vtmp):
    L, OK = newlabel("np"), newlabel("nok")
    P(f"s_mov_b32 {sCNT}, {cfg.spin}")
    P(f"v_readfirstlane_b32 {sNONCE}, {vtmp}")
    P.label(L)
    P("s_nop 0")
    P(f"s_cmp_lg_u32 {sNONCE}, 0")
    P(f"s_cbranch_scc1 {OK}")
    P("s_sleep 1")
    P.ins.append(Ins(".raw"))
    P.ins[-1].text = f"  buffer_load_dword {vtmp}, off, {SDBG}, 0 sc1\n  s_waitcnt vmcnt(0)\n  v_readfirstlane_b32 {sNONCE}, {vtmp}\n  s_sub_u32 {sCNT}, {sCNT}, 1\n  s_cbranch_scc0 {L}"
    P.label(OK)
    P("s_nop 1")


def poll_lds(P, cfg, vtmp4, vaddr, off):
    L, OK = newlabel("lp"), newlabel("lok")
    P(f"s_mov_b32 {sCNT}, {cfg.spin}")
    i = P("s_waitcnt lgkmcnt(0)")
    P.label(L)
    P.ins.append(Ins(".raw"))
    P.ins[-1].text = (f"  ds_read_b128 {v(vtmp4,4)}, {vaddr} offset:{off}\n  s_waitcnt lgkmcnt(0)\n"
                      f"  v_and_b32 {v(vtmp4)}, {v(vtmp4)}, {v(vtmp4+1)}\n  v_and_b32 {v(vtmp4+2)}, {v(vtmp4+2)}, {v(vtmp4+3)}\n"
                      f"  v_and_b32 {v(vtmp4)}, {v(vtmp4)}, {v(vtmp4+2)}\n  s_nop 0\n  v_readfirstlane_b32 {sT5}, {v(vtmp4)}\n  s_nop 1\n"
                      f"  s_cmp_lg_u32 {sT5}, 0\n  s_cbranch_scc1 {OK}\n  s_sleep 1\n  s_sub_u32 {sCNT}, {sCNT}, 1\n  s_cbranch_scc0 {L}")
    P.label(OK)


def weave(groups, tasks, cap):
    q = []
    for rel, dl, lst in tasks:
        for i in lst:
            q.append((i, rel, dl))
    out = []
    n = len(groups)
    for gi, grp in enumerate(groups):
        while q and q[0][2] <= gi:
            out.append(q.pop(0)[0])
        out.extend(grp)
        extra = sum(1 for i in grp[1:] if i.kind in ("sopp", "wait", "salu"))
        budget = max(cap - extra, 1)
        acc = 0
        for (i, rel, dl) in q:
            acc += i.cost
            if dl <= n and dl > gi:
                budget = max(budget, math.ceil(acc / (dl - gi)))
        valu_done = False
        while q and q[0][1] <= gi and budget > 0:
            i = q[0][0]
            if i.kind in ("ds", "vmem") and valu_done:
                break
            if i.cost > budget and valu_done:
                break
            q.pop(0)
            out.append(i)
            budget -= i.cost
            if i.kind == "valu":
                valu_done = True
    rest = [x[0] for x in q]
    return out, rest


X0 = 128
def XR(t): return X0 + 4 * t
SET = [32 + 16 * i for i in range(6)]
FR0 = 12
TA = [4, 5, 6, 7]
vL16, vRS, vMR = 1, 2, 3

def p1_common(P):
    P("v_lshrrev_b32 v8, 5, v0")
    P("v_lshlrev_b32 v8, 10, v8")
    P("v_bfe_u32 v9, v0, 2, 2")
    P("v_lshl_add_u32 v8, v9, 7, v8")
    P("v_bfe_u32 v9, v0, 3, 1")
    P("v_lshl_add_u32 v8, v9, 6, v8")
    P("v_and_b32 v9, 3, v0")
    P("v_lshl_add_u32 v8, v9, 3, v8")
    P("v_bfe_u32 v9, v0, 4, 1")


def p1_taddr(P, kind):
    if kind == "pair":
        P(f"v_lshlrev_b32 v{TA[0]}, 5, v9")
        P(f"v_xor_b32 v{TA[0]}, v{TA[0]}, v8")
        P(f"v_xor_b32 v{TA[1]}, 64, v{TA[0]}")
        P(f"v_xor_b32 v{TA[2]}, {8192+32}, v{TA[0]}")
        P(f"v_xor_b32 v{TA[3]}, {8192+96}, v{TA[0]}")
    else:
        P(f"v_mul_u32_u24 v{TA[0]}, {8192+32}, v9")
        P(f"v_xor_b32 v{TA[0]}, v{TA[0]}, v8")
        for t in range(1, 4):
            P(f"v_xor_b32 v{TA[t]}, {32*t}, v{TA[0]}")


TG1 = [2, 3]
sTM = "s89"
def tag_setup(P, T, smask, consumer=False):
    P(f"s_mul_i32 {sT0}, {sNONCE}, 0x9e3779b1")
    P(f"s_lshr_b32 {sT5}, {sT0}, 15")
    P(f"s_xor_b32 {sT0}, {sT0}, {sT5}")
    P(f"s_and_b32 {sT0}, {sT0}, 0xfffdfffd")
    P(f"s_or_b32 {sT0}, {sT0}, 0x00010001")
    P(f"s_mov_b32 {smask}, 0x00010001")
    P(f"v_and_b32 v{T[0]}, 7, v0")
    P(f"v_lshlrev_b32 v{T[0]}, 2, v{T[0]}")
    P(f"v_bfe_u32 v{T[0]}, {sT0}, v{T[0]}, 4")
    P(f"v_lshl_or_b32 v{T[0]}, v{T[0]}, 15, v{T[0]}")
    P(f"v_lshrrev_b32 v{T[1]}, 2, v{T[0]}")
    if consumer:
        P(f"v_and_b32 v{T[0]}, {smask}, v{T[0]}")
        P(f"v_and_b32 v{T[1]}, {smask}, v{T[1]}")
        P(f"v_xor_b32 v{T[1]}, {smask}, v{T[1]}")


def sigmoid_task(S, ks_sreg, ks_imm, tok):
    P = Prog()
    for i in range(8): P(f"v_mul_f32 v{S+i}, {sC1}, v{S+i}")
    for i in range(8): P(f"v_exp_f32 v{S+i}, v{S+i}")
    for i in range(8): P(f"v_add_f32 v{S+i}, 1.0, v{S+i}")
    for i in range(8): P(f"v_rcp_f32 v{S+i}, v{S+i}")
    for i in range(8): P(f"v_mul_f32 v{S+8+i}, v{S+8+i}, v{S+i}")
    for k in range(4): P(f"v_cvt_pk_bf16_f32 v{S+k}, v{S+8+2*k}, v{S+9+2*k}")
    for k in range(2): P(f"v_bfi_b32 v{S+2*k}, {sTM}, v{TG1[k]}, v{S+2*k}")
    P(f"buffer_store_dwordx4 {v(S,4)}, v{vL16}, {SWS}, {ks_sreg} offen offset:{ks_imm} sc1", tok=tok)
    return P.ins


def flag_task(toks, val):
    P = Prog()
    P(f"s_add_u32 {sT0}, {sNONCE}, {val}")
    P(f"v_mov_b32 v11, {sT0}")
    P(f"v_lshlrev_b32 v10, 26, v0")
    P.wait(*toks)
    P(f"buffer_store_dword v11, v10, {SWS}, s88 offen sc1")
    return P.ins


def softmax_core(P, Pr, T, tmp, sC2K=sC2K):
    mx, mn, s1, s2 = tmp if isinstance(tmp, (list, tuple)) else (tmp, tmp + 1, tmp + 2, tmp + 3)
    P(f"v_max3_f32 v{mx}, v{Pr}, v{Pr+1}, v{Pr+2}")
    P(f"v_min3_f32 v{mn}, v{Pr}, v{Pr+1}, v{Pr+2}")
    for k in range(3, 15, 2):
        P(f"v_max3_f32 v{mx}, v{mx}, v{Pr+k}, v{Pr+k+1}")
        P(f"v_min3_f32 v{mn}, v{mn}, v{Pr+k}, v{Pr+k+1}")
    P(f"v_max_f32 v{mx}, v{mx}, v{Pr+15}")
    P(f"v_min_f32 v{mn}, v{mn}, v{Pr+15}")
    P(f"v_mul_f32 v{mx}, {sC2K}, v{mx}")
    P(f"v_mul_f32 v{mn}, {sC2K}, v{mn}")
    for k in range(16):
        P(f"v_fma_f32 v{T+k}, v{Pr+k}, {sC2K}, -v{mx}")
        P(f"v_fma_f32 v{Pr+k}, -v{Pr+k}, {sC2K}, v{mn}")
    for k in range(16):
        P(f"v_exp_f32 v{T+k}, v{T+k}")
        P(f"v_exp_f32 v{Pr+k}, v{Pr+k}")
    P(f"v_add_f32 v{s1}, v{T}, v{T+1}")
    P(f"v_add_f32 v{s2}, v{Pr}, v{Pr+1}")
    for k in range(2, 16):
        P(f"v_add_f32 v{s1}, v{s1}, v{T+k}")
        P(f"v_add_f32 v{s2}, v{s2}, v{Pr+k}")


def softmax_pk(P, Pr, T, tm, sc):
    mx, mn = tm, tm + 1
    P(f"v_max3_f32 v{mx}, v{Pr}, v{Pr+1}, v{Pr+2}")
    P(f"v_min3_f32 v{mn}, v{Pr}, v{Pr+1}, v{Pr+2}")
    for k in range(3, 15, 2):
        P(f"v_max3_f32 v{mx}, v{mx}, v{Pr+k}, v{Pr+k+1}")
        P(f"v_min3_f32 v{mn}, v{mn}, v{Pr+k}, v{Pr+k+1}")
    P(f"v_max_f32 v{mx}, v{mx}, v{Pr+15}")
    P(f"v_min_f32 v{mn}, v{mn}, v{Pr+15}")
    P(f"v_pk_mul_f32 {v(mx,2)}, {v(mx,2)}, {sc} op_sel_hi:[1,0]")
    for k in range(0, 16, 2):
        P(f"v_pk_fma_f32 {v(T+k,2)}, {v(Pr+k,2)}, {sc}, {v(mx,2)} op_sel_hi:[1,0,0] neg_lo:[0,0,1] neg_hi:[0,0,1]")
        P(f"v_pk_fma_f32 {v(Pr+k,2)}, {v(Pr+k,2)}, {sc}, {v(mx,2)} op_sel:[0,0,1] op_sel_hi:[1,0,1] neg_lo:[1,0,0] neg_hi:[1,0,0]")
    for k in range(16):
        P(f"v_exp_f32 v{T+k}, v{T+k}")
        P(f"v_exp_f32 v{Pr+k}, v{Pr+k}")
    a, b = tm + 2, tm + 4
    P(f"v_pk_add_f32 {v(a,2)}, {v(T,2)}, {v(T+2,2)}")
    P(f"v_pk_add_f32 {v(b,2)}, {v(Pr,2)}, {v(Pr+2,2)}")
    for k in range(4, 16, 2):
        P(f"v_pk_add_f32 {v(a,2)}, {v(a,2)}, {v(T+k,2)}")
        P(f"v_pk_add_f32 {v(b,2)}, {v(b,2)}, {v(Pr+k,2)}")
    P(f"v_add_f32 v{mx}, v{a}, v{a+1}")
    P(f"v_add_f32 v{mn}, v{b}, v{b+1}")
    P(f"v_rcp_f32 v{mx}, v{mx}")
    P(f"v_rcp_f32 v{mn}, v{mn}")
    for k in range(0, 16, 2):
        P(f"v_pk_mul_f32 {v(T+k,2)}, {v(T+k,2)}, {v(mx,2)} op_sel_hi:[1,0]")
    for k in range(8):
        P(f"v_cvt_pk_bf16_f32 v{T+k}, v{T+2*k}, v{T+2*k+1}")
    for k in range(0, 16, 2):
        P(f"v_pk_mul_f32 {v(Pr+k,2)}, {v(Pr+k,2)}, {v(mx,2)} op_sel:[0,1] op_sel_hi:[1,1]")
    for k in range(8):
        P(f"v_cvt_pk_bf16_f32 v{Pr+k}, v{Pr+2*k}, v{Pr+2*k+1}")


def wphi_frags(P, lane, F, A, t0, t1):
    P(f"v_and_b32 v{t0}, 1, v{lane}")
    P(f"v_lshlrev_b32 v{t0}, 9, v{t0}")
    P(f"v_lshrrev_b32 v{t1}, 5, v{lane}")
    P(f"v_lshl_add_u32 v{t0}, v{t1}, 7, v{t0}")
    P(f"v_bfe_u32 v{t1}, v{lane}, 2, 2")
    P(f"v_lshl_add_u32 v{t0}, v{t1}, 5, v{t0}")
    P(f"v_bfe_u32 v{t1}, v{lane}, 4, 1")
    P(f"v_lshl_add_u32 v{t0}, v{t1}, 4, v{t0}")
    P(f"v_bfe_u32 v{t1}, v{lane}, 1, 1")
    P(f"v_lshl_add_u32 v{t0}, v{t1}, 3, v{t0}")
    P(f"v_add_u32 v{t0}, {WPHI}, v{t0}")
    for p in range(2):
        P(f"ds_read_b64_tr_b16 {v(F+4*p,2)}, v{t0} offset:{p*1024}")
        P(f"ds_read_b64_tr_b16 {v(F+4*p+2,2)}, v{t0} offset:{p*1024+256}")
    P(f"s_mov_b32 s82, 0x0f0f0f0f")
    P(f"s_mov_b32 s83, 0x0f0f0f0f")
    for p in range(2):
        for k in range(4):
            P(f"v_cndmask_b32 v{A+8*p+k}, 0, v{F+4*p+k}, {sMASK}")
            P(f"v_cndmask_b32 v{A+8*p+4+k}, v{F+4*p+k}, 0, {sMASK}")


def gen(cfg):
    segs = []
    log = []
    LA = cfg.LA

    P = Prog()
    P("s_cmp_ge_u32 s2, 256")
    P("s_cbranch_scc1 L_end")
    P("s_load_dwordx16 s[4:19], s[0:1], 0")
    P("s_load_dwordx4 s[20:23], s[0:1], 64")
    P("s_load_dwordx2 s[24:25], s[0:1], 80")
    if cfg.stamps:
        P("s_memrealtime s[98:99]" if cfg.rt else "s_memtime s[98:99]")
    if cfg.stamps or cfg.padT:
        P("s_memrealtime s[96:97]")
    if cfg.codepf:
        P("s_getpc_b64 s[100:101]")
        P.label("L_pcref")
        P(f"s_lshr_b32 {sT0}, s2, 3")
        P(f"s_lshl_b32 {sT0}, {sT0}, 12")
        P(f"s_min_u32 {sT0}, {sT0}, L_codeend-L_pcref-4096")
        P(f"s_add_u32 s100, s100, {sT0}")
        P("s_addc_u32 s101, s101, 0")
        P("v_lshlrev_b32 v1, 3, v0")
        P("global_load_dword v252, v1, s[100:101]")
    P("v_lshrrev_b32 v1, 6, v0")
    P("v_and_b32 v0, 63, v0")
    P(f"v_readfirstlane_b32 {sT4}, v1")
    P(f"s_and_b32 {sT0}, s2, 7")
    P(f"s_lshr_b32 {sT1}, s2, 3")
    if cfg.map84:
        P(f"s_and_b32 {sRB}, {sT0}, 1")
        P(f"s_lshl_b32 {sRB}, {sRB}, 3")
        P(f"s_lshr_b32 {sT2}, {sT1}, 2")
        P(f"s_add_u32 {sRB}, {sRB}, {sT2}")
        P(f"s_bfe_u32 {sTYPE}, {sT1}, 0x10001")
        P(f"s_and_b32 {sJ}, {sT0}, 6")
        P(f"s_and_b32 {sT2}, {sT1}, 1")
        P(f"s_add_u32 {sJ}, {sJ}, {sT2}")
        P(f"s_and_b32 {sT2}, {sT1}, 3")
        P(f"s_lshl_b32 {sT2}, {sT2}, 1")
        P(f"s_add_u32 {sROT}, {sRB}, {sT2}")
        P(f"s_and_b32 {sROT}, {sROT}, 7")
    else:
        P(f"s_and_b32 {sRB}, {sT0}, 3")
        P(f"s_lshl_b32 {sRB}, {sRB}, 2")
        P(f"s_lshr_b32 {sT2}, {sT1}, 3")
        P(f"s_add_u32 {sRB}, {sRB}, {sT2}")
        P(f"s_bfe_u32 {sTYPE}, {sT1}, 0x10002")
        P(f"s_and_b32 {sJ}, {sT0}, 4")
        P(f"s_and_b32 {sT3}, {sT1}, 3")
        P(f"s_add_u32 {sJ}, {sJ}, {sT3}")
        P(f"s_lshl_b32 {sT2}, {sT2}, 1")
        P(f"s_add_u32 {sROT}, {sT1}, {sT2}")
        P(f"s_and_b32 {sROT}, {sROT}, 7")
    P(f"s_lshl_b32 {sR2}, {sT0}, 2")
    P(f"s_lshr_b32 {sT2}, {sT1}, 3")
    P(f"s_add_u32 {sR2}, {sR2}, {sT2}")
    P(f"s_and_b32 {sC2}, {sT1}, 7")
    P(f"s_and_b32 {sW}, {sT4}, 3")
    P(f"v_lshlrev_b32 v{vL16}, 4, v0")
    P(f"s_mov_b32 {sHI}, 0xffff0000")
    P(f"s_cmp_ge_u32 {sT4}, 4")
    P("s_cbranch_scc1 L_p2")
    pro, st0 = finalize(P, None, log)
    segs.append(pro)

    stamp_regs = [f"s{i}" for i in range(40, 56)]
    P = Prog()
    ST = Stamps(cfg, stamp_regs)
    if cfg.stamps:
        ST.regs = ["s98"] + stamp_regs; ST.n = 1; ST.names = ["start"]
    NXB = 7
    P("v_lshrrev_b32 v36, 3, v0")
    P("v_lshlrev_b32 v36, 10, v36")
    P("v_lshrrev_b32 v37, 4, v0")
    P("v_and_b32 v38, 7, v0")
    P("v_xor_b32 v38, v38, v37")
    P("v_lshl_add_u32 v32, v38, 4, v36")
    P("v_xor_b32 v33, 64, v32")
    P(f"v_add_u32 v33, {8*1024-1024}, v33")
    P(f"v_add_u32 v34, {16*1024-2048}, v32")
    P(f"v_add_u32 v35, {16*1024-2048}, v33")
    P(f"s_lshl_b32 {sT0}, {sRB}, 2")
    P(f"s_add_u32 {sT0}, {sT0}, {sW}")
    P(f"s_lshl_b32 {sT1}, {sT0}, 15")
    P(f"s_mul_i32 {sT2}, {sW}, {NXB*4096}")
    P(f"s_add_u32 {sT2}, {sT2}, {XB0}")
    P("s_waitcnt lgkmcnt(0)")
    srd(P, SX, 4, 2048 * 1024)
    def xdma(b):
        P(f"s_add_u32 {sT3}, {sROT}, {b}")
        P(f"s_and_b32 {sT3}, {sT3}, 7")
        P(f"s_lshl_b32 {sT3}, {sT3}, 7")
        P(f"s_add_u32 m0, {sT2}, {(b % NXB) * 4096}")
        P(f"s_add_u32 {sT3}, {sT3}, {sT1}")
        for q in range(4):
            P(f"buffer_load_dwordx4 v{32+q}, {SX}, {sT3} offen offset:{q*1024}{NT[cfg.ntx]} lds", tok=f"x{b}")
    for b in range(3): xdma(b)
    srd(P, SWS, 24, WS_BYTES)
    srd(P, SDBG, 22, 256)
    P(f"s_mul_i32 s27, {sT0}, {144*1024}")
    P(f"s_lshl_b32 {sT4}, {sT0}, 5")
    P(f"s_lshl_b32 {sT5}, {sTYPE}, 3")
    P(f"s_add_u32 {sT4}, {sT4}, {sT5}")
    P(f"s_add_u32 {sT4}, {sT4}, {sJ}")
    P(f"s_lshl_b32 {sT4}, {sT4}, 7")
    P(f"s_add_u32 s88, {sT4}, {FLAGH_OFF}")
    P(f"s_mov_b32 {sC1}, {NLOG2E:#x}")
    P(f"s_mov_b32 {sC2K}, {LOG2E:#x}")
    P("v_and_b32 v36, 31, v0")
    P("v_lshlrev_b32 v37, 7, v36")
    P("v_bfe_u32 v38, v0, 1, 3")
    P("v_lshrrev_b32 v39, 5, v0")
    P("v_xor_b32 v38, v38, v39")
    P("v_lshl_add_u32 v37, v38, 4, v37")
    P(f"v_add_u32 v40, {sT2}, v37")
    for t in range(1, 4):
        P(f"v_xor_b32 v{40+t}, {32*t}, v40")
    p1_common(P)
    p1_taddr(P, "pair")
    P("v_mov_b32 v44, 0x3f803f80")
    for k in range(4): P(f"v_mov_b32 v{48+k}, 0")
    def dots(bb):
        for r in range(16):
            reg = XR(4 * bb) + r
            P(f"v_dot2c_f32_bf16 v{48+2*(r&1)}, v{reg}, v44")
            P(f"v_dot2c_f32_bf16 v{49+2*(r&1)}, v{reg}, v{reg}")
    NC = cfg.nc
    def ln_task(t):
        tb = 96 + 8 * (t & 3)
        U, F, C = Prog(), Prog(), Prog()
        for d in range(4):
            if t // 4 >= NC:
                U(f"v_lshlrev_b32 v{tb+2*d}, 16, v{XR(t)+d}")
                U(f"v_and_b32 v{tb+2*d+1}, {sHI}, v{XR(t)+d}")
                F(f"v_fma_f32 v{tb+2*d}, v{tb+2*d}, v{vRS}, -v{vMR}")
                F(f"v_fma_f32 v{tb+2*d+1}, v{tb+2*d+1}, v{vRS}, -v{vMR}")
            else:
                F(f"v_fma_mix_f32 v{tb+2*d}, v{XR(t)+d}, v{vRS}, -v{vMR} op_sel_hi:[1,0,0]")
                F(f"v_fma_mix_f32 v{tb+2*d+1}, v{XR(t)+d}, v{vRS}, -v{vMR} op_sel:[1,0,0] op_sel_hi:[1,0,0]")
            C(f"v_cvt_pk_bf16_f32 v{XR(t)+d}, v{tb+2*d}, v{tb+2*d+1}")
        return U.ins, F.ins, C.ins
    def tof16(bb):
        for r0 in range(0, 16, 4):
            for r in range(r0, r0 + 4):
                reg = XR(4 * bb) + r
                P(f"v_lshlrev_b32 v{56+2*(r&3)}, 16, v{reg}")
                P(f"v_and_b32 v{57+2*(r&3)}, {sHI}, v{reg}")
            for r in range(r0, r0 + 4):
                P(f"v_cvt_pk_f16_f32 v{XR(4*bb)+r}, v{56+2*(r&3)}, v{57+2*(r&3)}")
    for b in range(8):
        if b + 3 < 8:
            if b + 3 >= NXB: P.wait(f"xr{b+3-NXB}")
            xdma(b + 3)
        P.wait(f"x{b}")
        for t in range(4):
            P(f"ds_read_b128 {v(XR(4*b+t),4)}, v{40+t} offset:{(b%NXB)*4096}", tok=f"xr{b}")
        if b >= 1:
            dots(b - 1)
            if b - 1 < NC: tof16(b - 1)
        if b == 2 and NC == 0:
            for t in range(3): P.extend(ln_task(t)[0])
    P.wait("xr7")
    P(f"s_mov_b32 s84, {sT1}")
    ST(P, "xdone")
    P("s_barrier")
    P(f"s_cmp_eq_u32 {sTYPE}, 1")
    P("s_cbranch_scc1 L_p1t2")
    p1a, stA = finalize(P, st0, log)
    segs.append(p1a)
    fb_text = []
    def stats_fin(P_):
        nonlocal P
        P = P_
        P(f"buffer_load_dword v11, off, {SDBG}, 0 sc1")
        dots(7)
        P("v_pk_add_f32 v[48:49], v[48:49], v[50:51]")
        P("v_mov_b32 v50, v48")
        P("v_mov_b32 v51, v49")
        P("v_permlane32_swap_b32 v48, v50")
        P("v_permlane32_swap_b32 v49, v51")
        P("v_pk_add_f32 v[48:49], v[48:49], v[50:51]")
        if NC:
            P("v_mov_b32 v52, v49")
            P("v_cmp_nge_f32 vcc, 0x4f000000, v49")
        P("v_mul_f32 v48, 0x3b000000, v48")
        P("v_mul_f32 v49, 0x3b000000, v49")
        P("v_fma_f32 v49, -v48, v48, v49")
        P("v_max_f32 v49, 0, v49")
        P("v_add_f32 v49, 0x3727c5ac, v49")
        P(f"v_rsq_f32 v{vRS}, v49")
        P(f"v_mul_f32 v{vMR}, v48, v{vRS}")
        if NC:
            Lf, Lr = newlabel("fb"), newlabel("fbr")
            P("s_cmp_lg_u64 vcc, 0")
            P(f"s_cbranch_scc1 {Lf}")
            P.label(Lr)
            T = Prog()
            T.label(Lf)
            T("v_frexp_exp_i32_f32 v53, v52")
            T("v_add_u32 v53, 1, v53")
            T("v_ashrrev_i32 v53, 1, v53")
            T("v_subrev_u32 v53, 14, v53")
            T("v_max_i32 v53, 0, v53")
            T("v_sub_u32 v54, 0, v53")
            T(f"v_ldexp_f32 v{vRS}, v{vRS}, v53")
            T("v_and_b32 v55, 31, v0")
            T("v_lshlrev_b32 v55, 10, v55")
            T("v_lshrrev_b32 v56, 5, v0")
            T("v_lshl_add_u32 v55, v56, 4, v55")
            for b in range(8):
                T(f"s_add_u32 {sT3}, {sROT}, {b}")
                T(f"s_and_b32 {sT3}, {sT3}, 7")
                T(f"s_lshl_b32 {sT3}, {sT3}, 7")
                T(f"s_add_u32 {sT3}, {sT3}, s84")
                for t in range(4):
                    T(f"buffer_load_dwordx4 {v(XR(4*b+t),4)}, v55, {SX}, {sT3} offen offset:{32*t}")
            T("s_waitcnt vmcnt(0)")
            for r in range(128):
                reg = X0 + r
                T(f"v_lshlrev_b32 v56, 16, v{reg}")
                T(f"v_and_b32 v57, {sHI}, v{reg}")
                T("v_ldexp_f32 v56, v56, v54")
                T("v_ldexp_f32 v57, v57, v54")
                T(f"{'v_cvt_pk_f16_f32' if r // 16 < NC else 'v_cvt_pk_bf16_f32'} v{reg}, v56, v57")
            T(f"s_branch {Lr}")
            fb_text.append(text_of(T.ins))
        LN = [ln_task(t) for t in range(32)]
        P.extend(LN[0][1]); P.extend(LN[0][2])
        P.extend(LN[1][1])
        return LN

    sched = []
    NM = 320
    last_read_of_stage = {}
    first_use = {}
    last_use = {}
    def add_pass4(pid, stage0, sets, skew, stag):
        order = []
        if skew == 2:
            for tp in (0, 2):
                for c in (0, 1):
                    for tl in (tp, tp + 1):
                        for kk in range(4): order.append((c, kk, tl))
        elif skew == 1:
            for tl in range(4):
                for kk in range(4): order.append((0, kk, tl))
        for c in range(skew, 8 - abs(stag)):
            for kk in range(4):
                for tl in range(4): order.append((c, kk, tl))
        if stag:
            for tl in ((0, 1, 2, 3) if stag > 0 else (1, 0, 2, 3)):
                for c in range(8 - abs(stag), 8):
                    for kk in range(4): order.append((c, kk, tl))
        for (c, kk, tl) in order:
            sched.append((stage0 + c, kk * 2048, tl, sets[tl], 4 * c + kk, c == 0 and kk == 0, pid))
    def add_pass2(pid, stage0, sets, stag=0):
        if stag == 2:
            for cc in range(2):
                for (hh, kk, tl) in [(hh, kk, tl) for hh in range(2) for kk in range(4) for tl in range(2)]:
                    sched.append((stage0 + cc, kk * 2048, 2 * hh + tl, sets[tl], 8 * cc + 4 * hh + kk, cc == 0 and hh == 0 and kk == 0, pid))
            for tl in range(2):
                for cc in (2, 3):
                    for hh in range(2):
                        for kk in range(4):
                            sched.append((stage0 + cc, kk * 2048, 2 * hh + tl, sets[tl], 8 * cc + 4 * hh + kk, False, pid))
            return
        for cc in range(4):
            o = [(hh, kk, tl) for hh in range(2) for kk in range(4) for tl in range(2)]
            if stag and cc == 3:
                o = [(hh, kk, tl) for tl in range(2) for hh in range(2) for kk in range(4)]
            for (hh, kk, tl) in o:
                sched.append((stage0 + cc, kk * 2048, 2 * hh + tl, sets[tl], 8 * cc + 4 * hh + kk, cc == 0 and hh == 0 and kk == 0, pid))
    S0, S1, S2_, S3, S4, S5 = SET
    def build_sched(typ):
        del sched[:]
        if typ == 0:
            add_pass4(0, 0, [S0, S1, S2_, S3], 0, -1)
            add_pass4(1, 8, [S0, S1, S2_, S3], 0, 1)
            add_pass2(2, 16, [S4, S5], cfg.stag1)
        else:
            add_pass2(0, 0, [S0, S1])
            add_pass4(1, 4, [S2_, S3, S4, S5], 0, 1)
            add_pass4(2, 12, [S0, S1, S2_, S3], 2, cfg.stag2)
        assert len(sched) == NM
        first_use.clear(); last_use.clear()
        for n, e in enumerate(sched):
            last_read_of_stage[e[0]] = n
            first_use.setdefault((e[6], e[3]), n)
            last_use[(e[6], e[3])] = n

    def reads(n):
        stage, off, tl, S, xt, first, pid = sched[n]
        fb = FR0 + 4 * (n % LA)
        o = ((stage % 4) if stage < 18 else stage - 16) * SLOT + off
        return [Ins(f"ds_read_b64_tr_b16 {v(fb,2)}, v{TA[tl]} offset:{o}", tok=f"fr{n}a"),
                Ins(f"ds_read_b64_tr_b16 {v(fb+2,2)}, v{TA[tl]} offset:{o+512}", tok=f"fr{n}")]

    passed = [0]
    def group(n, pre_reads=None, lim=NM):
        stage, off, tl, S, xt, first, pid = sched[n]
        fb = FR0 + 4 * (n % LA)
        g = []
        c = "0" if first else v(S, 16)
        g.append(Ins(f"v_mfma_f32_32x32x16_bf16 {v(S,16)}, {v(fb,4)}, {v(XR(xt),4)}, {c}"))
        m = n + LA
        if m < lim:
            ns = sched[m][0]
            if ns > passed[0]:
                assert ns == passed[0] + 1
                if ns >= 2:
                    g.append(Ins("WAIT", waitfor=[f"fr{last_read_of_stage[ns-2]}"]))
                if pre_reads and ns in pre_reads:
                    g.extend(pre_reads[ns])
                if ns < 18:
                    g.append(Ins("s_barrier"))
                else:
                    g.append(Ins(f"ds_write_b32 v8, v9 offset:{16*(ns-18)}"))
                    if ns == 18:
                        for t in range(4): g.append(Ins(f"v_add_u32 v{TA[t]}, 0x10000, v{TA[t]}"))
                passed[0] = ns
            g.extend(reads(m))
        if n % 2 == 1 and n + 2 < lim:
            g.append(Ins("WAIT", waitfor=[f"fr{n+2}"]))
        return g
    BIG = 10 ** 6

    def p1_rest(typ):
        P = Prog()
        S2 = ST.fork()
        passed[0] = 0
        build_sched(typ)
        def run(lo, hi, tasks, pre, cap, lim=NM):
            groups = [group(n, pre, lim) for n in range(lo, hi)]
            t2 = [(max(r - lo, 0), d - lo, l) for (r, d, l) in tasks]
            body, rest = weave(groups, t2, cap)
            P.extend(body)
            return rest
        def progsetup():
            P(f"s_lshl_b32 {sT4}, {sW}, 2")
            P(f"s_add_u32 {sT4}, {sT4}, {LFLAG}")
            P(f"v_mov_b32 v8, {sT4}")
            P(f"v_mov_b32 v9, 1")
        def ringdone():
            P(f"ds_write_b32 v8, v9 offset:32")
        def ln_pass(LN, ng, nend, lim):
            fill = []
            for t in range(32):
                for g in range(ng):
                    a, b = 4 // ng, 8 // ng
                    f = []
                    if t + 1 < 32: f += LN[t + 1][2][a * g:a * g + a]
                    if t + 2 < 32: f += LN[t + 2][1][b * g:b * g + b]
                    if t + 3 < 32: f += LN[t + 3][0][b * g:b * g + b]
                    fill.append(f)
            for n in range(nend):
                P.extend(group(n, None, lim))
                P.extend(fill[n])
            for f in fill[nend:]: P.extend(f)
        if typ == 1: P.label("L_p1t2")
        for n in range(LA): P.extend(reads(n))
        LN = stats_fin(P)
        if typ == 1:
            P(f"s_lshl_b32 {sT1}, {sJ}, 13")
            P(f"s_add_u32 {sT1}, {sT1}, s27")
            P(f"s_add_u32 {sT2}, {sT1}, 4096")
            P(f"s_lshl_b32 {sT4}, {sW}, 12")
            P(f"s_add_u32 {sT4}, {sT4}, {7*SLOT}")
            ln_pass(LN, 2, 64 - LA, NM)
            poll_nonce(P, cfg, "v11")
            S2(P, "passQ")
            p1_taddr(P, "gu")
            P(f"v_add_u32 v10, {sT4}, v{vL16}")
            progsetup()
            pre = {}; tasks = []
            Q = Prog()
            for i, S in enumerate((S0, S1)):
                for k in range(8): Q(f"v_cvt_pk_bf16_f32 v{S+k}, v{S+2*k}, v{S+2*k+1}")
                Q(f"ds_write_b128 v10, {v(S,4)} offset:{2048*i}")
                Q(f"ds_write_b128 v10, {v(S+4,4)} offset:{2048*i+1024}", tok=f"evacQ{i}")
            tasks.append((65, 16 * cfg.qb - LA - 2, Q.ins))
            pre[cfg.qb] = [Ins("WAIT", waitfor=["evacQ1"])]
            Q = Prog(); tag_setup(Q, TG1, sTM)
            tasks.append((90, BIG, Q.ins))
            for i, S in enumerate((S2_, S3, S4, S5)):
                dl = first_use.get((2, S), BIG)
                tasks.append((last_use[(1, S)] + 2, dl, sigmoid_task(S, sT1, 1024 * i, f"hA{i}")))
            for i, S in enumerate((S0, S1, S2_, S3)):
                tasks.append((last_use[(2, S)] + 2, BIG, sigmoid_task(S, sT2, 1024 * i, f"hB{i}")))
            rest = run(64 - LA, NM, tasks, pre, cfg.cap2)
            ringdone()
            S2(P, "gemm")
            P.extend(rest)
        else:
            P(f"s_mul_i32 {sT1}, {sJ}, 6144")
            P(f"s_add_u32 {sT1}, {sT1}, s27")
            P(f"s_add_u32 {sT1}, {sT1}, {64*1024}")
            P(f"s_and_b32 {sT3}, {sJ}, 1")
            P(f"s_lshl_b32 {sT2}, {sT3}, 11")
            P(f"s_add_u32 {sT2}, {sT2}, {sT1}")
            P(f"s_xor_b32 {sT3}, {sT3}, 1")
            P(f"s_lshl_b32 {sT3}, {sT3}, 12")
            P(f"s_add_u32 {sT3}, {sT3}, {sT1}")
            P(f"s_lshl_b32 {sT4}, {sW}, 11")
            P(f"s_add_u32 {sT4}, {sT4}, {PHI}")
            ln_pass(LN, 4, 112, 128)
            poll_nonce(P, cfg, "v11")
            tasks = []
            AD = S5 + 8
            Q = Prog()
            Q(f"v_add_u32 v3, {WF}, v{vL16}")
            Q(f"v_add_u32 v{AD+2}, {sT4}, v{vL16}")
            Q(f"ds_read_b128 {v(S5,4)}, v3")
            Q(f"ds_read_b128 {v(S5+4,4)}, v3 offset:1024")
            Q(f"v_and_b32 v2, 31, v0")
            Q(f"v_lshlrev_b32 v2, 6, v2")
            Q(f"v_bfe_u32 v11, v0, 1, 2")
            Q(f"v_lshl_add_u32 v2, v11, 4, v2")
            Q(f"v_add_u32 v2, {sT4}, v2")
            Q(f"v_and_b32 v11, 32, v0")
            Q(f"v_xor_b32 v{AD}, v2, v11")
            Q(f"v_add_u32 v{AD}, {VIMG-PHI}, v{AD}")
            Q(f"v_xor_b32 v{AD+1}, 16, v{AD}")
            Q("v_lshl_add_u32 v2, v11, 8, v2")
            Q("v_xor_b32 v3, 16, v2")
            Q("v_xor_b32 v10, 32, v2")
            Q("v_xor_b32 v11, 48, v2")
            tasks.append((112, BIG, Q.ins))
            Q = Prog()
            for k in range(8): Q(f"v_cvt_pk_bf16_f32 v{S1+k}, v{S1+2*k}, v{S1+2*k+1}")
            Q(f"ds_write_b128 v{AD+2}, {v(S1,4)} offset:{2*8192}")
            Q(f"ds_write_b128 v{AD+2}, {v(S1+4,4)} offset:{3*8192}", tok="evacK")
            tasks.append((last_use[(0, S1)] + 2, BIG, Q.ins))
            Q = Prog()
            for k in range(8): Q(f"v_cvt_pk_bf16_f32 v{S0+k}, v{S0+2*k}, v{S0+2*k+1}")
            tasks.append((last_use[(0, S0)] + 2, BIG, Q.ins))
            Q = Prog()
            for k in range(8): Q(f"v_cvt_pk_bf16_f32 v{S2_+k}, v{S2_+2*k}, v{S2_+2*k+1}")
            tasks.append((last_use[(0, S2_)] + 2, BIG, Q.ins))
            rest = run(112, 128, tasks, {}, cfg.cap + 1, lim=128)
            P.extend(rest)
            P(f"v_mfma_f32_32x32x16_bf16 {v(S4,16)}, {v(S5,4)}, {v(S0,4)}, 0")
            P(f"v_mfma_f32_32x32x16_bf16 {v(S4,16)}, {v(S5+4,4)}, {v(S0+4,4)}, {v(S4,16)}")
            P.wait("evacK")
            P("s_barrier")
            passed[0] = 8
            S2(P, "passKV")
            for k in range(8): P(f"v_cvt_pk_bf16_f32 v{S3+k}, v{S3+2*k}, v{S3+2*k+1}")
            for i, S in enumerate((S2_, S3)):
                P(f"ds_write_b128 v{AD}, {v(S,4)} offset:{i*8192}")
                P(f"ds_write_b128 v{AD+1}, {v(S+4,4)} offset:{i*8192}")
            p1_taddr(P, "gu")
            Q = Prog()
            softmax_pk(Q, S4, S1, AD + 2, "s[26:27]")
            P.extend(Q.ins[:-16])
            P(f"ds_write_b128 v2, {v(S1,4)}")
            P(f"ds_write_b128 v3, {v(S1+4,4)}")
            for n in range(128, 128 + LA): P.extend(reads(n))
            P.extend(Q.ins[-16:])
            P(f"ds_write_b128 v10, {v(S4,4)}")
            P(f"ds_write_b128 v11, {v(S4+4,4)}", tok="phi0")
            if cfg.kvb:
                P.wait("phi0"); P("s_barrier")
            S2(P, "burst")
            pre = {9: [Ins("WAIT", waitfor=["phi0"])]}
            g4 = (S0, S1, S2_, S3)
            E = [(last_use[(1, S)] + 2, BIG, sigmoid_task(S, sT2, 1024 * i, f"hB{i}")) for i, S in enumerate(g4)]
            Q = Prog(); tag_setup(Q, TG1, sTM)
            rest = run(128, 256 - LA, [(150, BIG, Q.ins)] + E[:1], pre, cfg.cap)
            S2(P, "passG")
            p1_taddr(P, "pair")
            progsetup()
            tasks = [(0, BIG, rest)] + E[1:]
            tasks += [(last_use[(2, S)] + 2, BIG, sigmoid_task(S, sT3, 1024 * i, f"hC{i}")) for i, S in enumerate((S4, S5))]
            rest = run(256 - LA, NM, tasks, {}, cfg.capC)
            ringdone()
            S2(P, "gemm")
            P.extend(rest)
        if cfg.hold: P("ds_write_b32 v8, v9 offset:64")
        S2(P, "end")
        S2.dump(P, 0)
        P("s_endpgm")
        r, _ = finalize(P, stA, log)
        return r, S2.names
    p1t1, names_p1t1 = p1_rest(0)
    p1t2, names_p1t2 = p1_rest(1)
    segs.append(p1t1); segs.append(p1t2)

    VW = [2, 3, 4, 5]; VB = [6, 7]; TB = [8, 9]; VA = [10, 11]
    ACC = 16; RING = 80; B2R = 112
    sJ0, sJ1 = "s88", "s89"
    sKK = ["s90", "s91", "s92", "s93"]
    sHB2 = sT5
    p2_stamp_regs = [f"s{i}" for i in list(range(16, 22)) + [25, 60, 61, 62, 63, 36, 37, 38, 39]]

    P = Prog()
    P.label("L_p2")
    ST2 = Stamps(cfg, p2_stamp_regs)
    if cfg.stamps:
        ST2.regs = ["s98"] + p2_stamp_regs; ST2.n = 1; ST2.names = ["start"]
    P("v_lshrrev_b32 v12, 3, v0")
    P("v_and_b32 v13, 7, v0")
    P("v_lshlrev_b32 v13, 4, v13")
    P("v_bfe_u32 v14, v0, 4, 1")
    P("v_lshlrev_b32 v14, 6, v14")
    P("v_xor_b32 v13, v13, v14")
    def wvoff(P, pitch, kind="norm"):
        P(f"s_lshl_b32 {sT0}, {sW}, 4")
        P(f"v_add_u32 v14, {sT0}, v12")
        P(f"v_mul_u32_u24 v14, {pitch}, v14")
        if kind == "norm":
            P(f"v_add_u32 v{VW[0]}, v14, v13")
            P(f"v_xor_b32 v15, 32, v13")
            P(f"v_add_u32 v{VW[2]}, v14, v15")
        else:
            P(f"v_lshrrev_b32 v15, 1, v13")
            P(f"v_and_b32 v15, 32, v15")
            P(f"v_add_u32 v14, v14, v15")
            P(f"v_and_b32 v15, 16, v13")
            P(f"v_add_u32 v{VW[0]}, v14, v15")
            P(f"v_mov_b32 v{VW[2]}, v{VW[0]}")
        P(f"v_add_u32 v{VW[1]}, {8*pitch-1024}, v{VW[0]}")
        P(f"v_add_u32 v{VW[3]}, {8*pitch-1024}, v{VW[2]}")
    P("s_waitcnt lgkmcnt(0)")
    srd(P, SQKV, 6, 512 * 3072)
    srd(P, SX, 4, 2048 * 1024)
    srd(P, SG, 14, 512 * 3584)
    srd(P, SU, 16, 512 * 3584)
    P(f"s_cmp_eq_u32 {sTYPE}, 1")
    P("s_cbranch_scc1 L_p2t2")
    p2pro, st2 = finalize(P, st0, log)
    segs.append(p2pro)

    def p2_rest(typ):
        P = Prog()
        S2 = ST2.fork()
        if typ == 1: P.label("L_p2t2")
        sCL = "s3"
        sM0 = "s27"
        passes = [(0, 8, "KV"), (8, 8, "G4"), (16, 4, "G2")] if typ == 0 else [(0, 4, "Q"), (4, 8, "Ga"), (12, 8, "Gb")]

        def set_pass(kind):
            if kind in ("KV", "Q"):
                wvoff(P, 3072)
                P(f"s_lshl_b32 {sCL}, {sJ}, 7")
                if kind == "KV":
                    P(f"s_add_u32 {sCL}, {sCL}, 1024")
                    P(f"v_add_u32 v{VW[2]}, 1024, v{VW[2]}")
                    P(f"v_add_u32 v{VW[3]}, 1024, v{VW[3]}")
            elif kind == "G4":
                wvoff(P, 3584)
                P(f"s_mul_i32 {sCL}, {sJ}, 192")
                P(f"s_and_b32 {sT0}, {sJ}, 1")
                P(f"s_lshl_b32 {sT0}, {sT0}, 6")
                P(f"s_add_u32 {sCL}, {sCL}, {sT0}")
                P(f"s_add_u32 {sCL}, {sCL}, 2048")
            elif kind == "G2":
                P(f"s_lshl_b32 {sT0}, {sW}, 4")
                P(f"v_add_u32 v14, {sT0}, v12")
                P(f"v_mul_u32_u24 v14, 3584, v14")
                P(f"v_lshrrev_b32 v15, 1, v13")
                P(f"v_and_b32 v15, 32, v15")
                P(f"v_add_u32 v14, v14, v15")
                P(f"v_and_b32 v15, 16, v13")
                P(f"v_add_u32 v14, v14, v15")
                P(f"v_add_u32 v15, {8*3584-1024}, v14")
                P(f"s_mul_i32 s26, {sJ}, 192")
                P(f"s_and_b32 {sT0}, {sJ}, 1")
                P(f"s_xor_b32 {sT0}, {sT0}, 1")
                P(f"s_lshl_b32 {sT0}, {sT0}, 7")
                P(f"s_add_u32 s26, s26, {sT0}")
                P(f"s_add_u32 s26, s26, 2048")
            elif kind == "Ga":
                wvoff(P, 3584)
                P(f"s_lshl_b32 {sCL}, {sJ}, 8")
            elif kind == "Gb":
                P(f"s_add_u32 {sCL}, {sCL}, 128")

        seen_pass = set()
        def wchunk(s, sides=(0, 1)):
            s0, ns, kind = [p for p in passes if p[0] <= s < p[0] + p[1]][0]
            if kind not in seen_pass:
                set_pass(kind); seen_pass.add(kind)
            isqkv = kind in ("KV", "Q")
            pitch = 3072 if isqkv else 3584
            for side in sides:
                b = (s - s0) if ns == 8 else 2 * (s - s0) + side
                if side == 0 or ns == 4:
                    P(f"s_add_u32 {sT0}, {sROT}, {b}")
                    P(f"s_and_b32 {sT0}, {sT0}, 7")
                    P(f"s_mul_i32 {sT0}, {sT0}, {64*pitch}")
                    P(f"s_add_u32 {sT1}, {sT0}, {'s26' if kind == 'G2' else sCL}")
                if s >= cfg.skipw: P(f"s_mov_b32 {sT1}, 0x7f000000")
                P(f"s_add_u32 m0, {sM0}, {((s % 4) if s < 18 else s - 12) * SLOT + side * 8192}")
                if kind == "G2":
                    for mat in range(2):
                        mk = "s[100:101]" if (mat ^ side) == 0 else "s[84:85]"
                        P(f"s_mov_b64 exec, {mk}")
                        for q in range(2):
                            P(f"buffer_load_dwordx4 v{14+q}, {SU if mat else SG}, {sT1} offen offset:{1024*q}{NT[cfg.ntw]} lds", tok=f"w{s}")
                    P("s_mov_b64 exec, -1")
                else:
                    sr = SQKV if isqkv else (SU if side else SG)
                    for q in range(2):
                        P(f"buffer_load_dwordx4 v{VW[2*side+q]}, {sr}, {sT1} offen offset:{1024*q}{NT[cfg.ntw]} lds", tok=f"w{s}")

        P(f"s_lshl_b32 {sM0}, {sW}, 11")
        srd(P, SPHI, 8, 32 * 512)
        srd(P, SWS, 24, WS_BYTES)
        srd(P, SDBG, 22, 256)
        srd(P, SD, 18, 1792 * 1024)
        srd(P, SO, 10, 512 * 1024)
        srd(P, SOUT, 20, 2048 * 1024)
        P(f"s_mov_b32 s24, {LOG2E:#x}")
        P(f"s_lshl_b32 {sJ0}, {sW}, 1")
        P(f"s_add_u32 {sJ0}, {sJ0}, {sC2}")
        P(f"s_add_u32 {sJ1}, {sJ0}, 1")
        P(f"s_and_b32 {sJ0}, {sJ0}, 7")
        P(f"s_and_b32 {sJ1}, {sJ1}, 7")
        P(f"s_lshr_b32 {sT0}, {sC2}, 1")
        P(f"s_add_u32 {sT0}, {sT0}, {sR2}")
        for t in range(4):
            P(f"s_add_u32 {sKK[t]}, {sT0}, {t}")
            P(f"s_and_b32 {sKK[t]}, {sKK[t]}, 3")
        P(f"s_mul_i32 {sHB2}, {sR2}, {2*144*1024}")
        P(f"s_lshl_b32 {sT0}, {sC2}, 7")
        P(f"v_lshl_add_u32 v{VB[0]}, v12, 10, v13")
        P(f"v_add_u32 v{VB[0]}, {sT0}, v{VB[0]}")
        P(f"v_add_u32 v{VB[1]}, {7*1024}, v{VB[0]}")
        P("v_lshrrev_b32 v14, 5, v0")
        P("v_lshlrev_b32 v14, 9, v14")
        P("v_bfe_u32 v15, v0, 2, 2")
        P("v_lshl_add_u32 v14, v15, 7, v14")
        P("v_bfe_u32 v15, v0, 3, 1")
        P("v_lshl_add_u32 v14, v15, 6, v14")
        P("v_bfe_u32 v15, v0, 4, 1")
        P("v_lshl_add_u32 v14, v15, 5, v14")
        P("v_and_b32 v15, 3, v0")
        P("v_lshl_add_u32 v14, v15, 3, v14")
        P(f"s_and_b32 {sT0}, {sW}, 1")
        P(f"s_lshl_b32 {sT0}, {sT0}, 6")
        P(f"v_xor_b32 v14, {sT0}, v14")
        P(f"s_lshl_b32 {sT0}, {sW}, 12")
        P(f"s_add_u32 {sT0}, {sT0}, {4*SLOT}")
        P(f"v_add_u32 v{TB[0]}, {sT0}, v14")
        P(f"v_xor_b32 v{TB[1]}, 64, v{TB[0]}")
        P(f"s_lshr_b32 {sT0}, {sW}, 1")
        P(f"s_mul_i32 {sT1}, {sT0}, {144*1024}")
        P(f"s_sub_u32 {sT2}, {144*1024}, {sT1}")
        P(f"s_add_u32 {sT1}, {sT1}, {sHB2}")
        P(f"s_add_u32 {sT2}, {sT2}, {sHB2}")
        P(f"v_add_u32 v{VA[0]}, {sT1}, v1")
        P(f"v_add_u32 v{VA[1]}, {sT2}, v1")

        def kind_slots(cls, kind, nt=4):
            return [(cls, kind, jsel, t) for jsel in range(2) for t in range(nt)]
        slots = kind_slots(1, "A") + kind_slots(2, "B1") + kind_slots(2, "O") + kind_slots(2, "C1", 2) + kind_slots(2, "B2")
        assert len(slots) == 36
        KB = {(k, j): f"s{4 + 2*i + j}" for i, k in enumerate(("A", "B2", "B1", "C1", "O")) for j in range(2)}
        sKK1 = ["s14", "s15"]
        for j, sj in enumerate((sJ0, sJ1)):
            P(f"s_lshl_b32 {KB['A', j]}, {sj}, 13")
            P(f"s_add_u32 {KB['B2', j]}, {KB['A', j]}, 4096")
            P(f"s_lshl_b32 {KB['O', j]}, {sj}, 12")
            P(f"s_mul_i32 {sT0}, {sj}, 6144")
            P(f"s_and_b32 {sT1}, {sj}, 1")
            P(f"s_lshl_b32 {sT2}, {sT1}, 11")
            P(f"s_add_u32 {KB['B1', j]}, {sT0}, {sT2}")
            P(f"s_add_u32 {KB['B1', j]}, {KB['B1', j]}, {64*1024}")
            P(f"s_lshl_b32 {sT2}, {sT1}, 12")
            P(f"s_sub_u32 {KB['C1', j]}, {sT0}, {sT2}")
            P(f"s_add_u32 {KB['C1', j]}, {KB['C1', j]}, {68*1024}")
        for t in range(4): P(f"s_lshl_b32 {sKK[t]}, {sKK[t]}, 10")
        for t in range(2): P(f"s_and_b32 {sKK1[t]}, {sKK[t]}, 1024")
        P(f"s_lshl_b32 s99, {sW}, 12")

        def ks_to(P, sg, dst):
            cls, kind, jsel, t = slots[sg]
            P(f"s_add_u32 {dst}, {KB[kind, jsel]}, {sKK1[t] if kind == 'C1' else sKK[t]}")

        stagepos = {}
        def b2pos(sg):
            if sg < 18: return stagepos[sg]
            k = sg - 18
            return [8, 4, 5, 2, 3, 0, 1, 6, 7][k // 2] * SLOT + (k % 2) * 2048

        thr_on = [False]
        def throttle():
            if thr_on[0] and cfg.thr: P(f"s_waitcnt vmcnt({cfg.thr})")
        vmlog = []
        def b2dma(sg, P_=None):
            if P_ is None:
                throttle(); vmlog.append(("b", sg))
                b2dma_(P, sg)
            else:
                b2dma_(P_, sg)
        def b2dma_(P, sg):
            ks_to(P, sg, sT2)
            P(f"s_add_u32 m0, s99, {b2pos(sg)}")
            if cfg.b2hit: P(f"s_and_b32 {sT2}, {sT2}, 0x7fff")
            P(f"s_lshl_b32 {sT2}, {sT2}, 4")
            sr = SO if slots[sg][1] == "O" and not cfg.b2hit else SD
            if sg >= cfg.skipb: P(f"s_mov_b32 {sT2}, 0x7f000000")
            for q in range(2):
                P(f"buffer_load_dwordx4 v{VB[q]}, {sr}, {sT2} offen offset:{1024*q}{NT[cfg.ntb]} lds", tok=f"b{sg}")

        def b2touch(sg):
            junk = 16 if typ == 0 else 232
            ks_to(P, sg, sT2)
            P(f"s_lshl_b32 {sT2}, {sT2}, 4")
            sr = SO if slots[sg][1] == "O" else SD
            for q in range(2):
                P(f"buffer_load_dword v{junk+touchn[0]%16}, v{VB[q]}, {sr}, {sT2} offen offset:{1024*q}")
                touchn[0] += 1
        touchn = [0]
        tb_base = [4 * SLOT]
        def b2read(sg, regs):
            pos = b2pos(sg)
            want = (pos // (4 * SLOT)) * 4 * SLOT
            if want != tb_base[0]:
                d = want - tb_base[0]
                for ct in range(2):
                    if d > 0: P(f"v_add_u32 v{TB[ct]}, {d}, v{TB[ct]}")
                    else: P(f"v_subrev_u32 v{TB[ct]}, {-d}, v{TB[ct]}")
                tb_base[0] = want
            o = pos - want
            P.wait(f"b{sg}")
            for ct in range(2):
                P(f"ds_read_b64_tr_b16 {v(regs[ct],2)}, v{TB[ct]} offset:{o}")
                P(f"ds_read_b64_tr_b16 {v(regs[ct]+2,2)}, v{TB[ct]} offset:{o+1024}", tok=f"br{sg}")

        per = cfg.per2 if typ == 1 else cfg.per1
        def poswin(pos, final):
            sl = pos // SLOT
            if sl == 8: return (0, 5) if not final else ((10, 99) if typ == 0 else (0, 99))
            if sl in (4, 5): return (0, 99)
            if sl == 2: return (16, 99)
        occupant = {}
        stg = [8 * SLOT, 8 * SLOT + 2048, 4 * SLOT, 4 * SLOT + 2048, 5 * SLOT, 5 * SLOT + 2048]
        todo_reg = sorted(range(18), key=lambda x: (x >= 15 and typ == 1, slots[x][3] != 0, x)) if cfg.tmajor else list(range(18))
        todo_fin = list(range(18, 26))
        readdone = set()
        pend_reads = []
        defer = {15: 99, 16: 99, 17: 99} if typ == 1 else {}
        extra = {}
        first = {}
        last = {}
        def vpart(lst):
            if cfg.vprio: P(f"s_setprio {cfg.vprio}")
            P.extend(lst)
            if cfg.vprio: P("s_setprio 0")
        def split(smi, nparts):
            tot = sum(i.cost for i in smi)
            parts = [[] for _ in range(nparts)]
            acc = 0
            for i in smi:
                parts[min(nparts - 1, acc * nparts // tot)].append(i); acc += i.cost
            return parts

        fillv = "0x3f803f80" if typ == 0 else "0"
        for k in range(4): P(f"v_mov_b32 v{16+k}, {fillv}")
        for k in range(4): P(f"v_mov_b32 v{20+k}, 0")
        P(f"v_add_u32 v14, {sM0}, v1")
        P(f"v_add_u32 v14, {KVF}, v14")
        P(f"ds_write_b128 v14, v[16:19]")
        P(f"ds_write_b128 v14, v[16:19] offset:1024")
        P(f"v_add_u32 v14, {ZL}, v1")
        P(f"ds_write_b128 v14, v[20:23]")
        if typ == 0:
            KF = 16; A1 = 24; PP = 32; TT = 48; TM = 96; VF = 64
            P(f"s_lshl_b32 {sT0}, {sW}, 11")
            P(f"s_add_u32 {sT0}, {sT0}, {PHI+16384}")
            P("v_and_b32 v100, 31, v0")
            P("v_lshlrev_b32 v100, 6, v100")
            P("v_bfe_u32 v14, v0, 1, 2")
            P("v_lshl_add_u32 v100, v14, 4, v100")
            P("v_lshrrev_b32 v14, 5, v0")
            P("v_lshl_add_u32 v100, v14, 13, v100")
            P(f"v_add_u32 v100, {sT0}, v100")
            for q in range(1, 4): P(f"v_xor_b32 v{100+q}, {16*q}, v100")
            P(f"v_add_u32 v111, {sT0}, v1")
            P("v_lshrrev_b32 v14, 5, v0")
            P("v_lshlrev_b32 v14, 9, v14")
            P("v_bfe_u32 v15, v0, 2, 2")
            P("v_lshl_add_u32 v14, v15, 6, v14")
            P("v_and_b32 v15, 1, v0")
            P("v_lshl_add_u32 v14, v15, 5, v14")
            P("v_bfe_u32 v15, v0, 4, 1")
            P("v_lshl_add_u32 v14, v15, 4, v14")
            P("v_bfe_u32 v15, v0, 1, 1")
            P("v_lshl_add_u32 v14, v15, 3, v14")
            P("v_bfe_u32 v15, v0, 3, 1")
            P("v_lshlrev_b32 v15, 4, v15")
            P("v_xor_b32 v14, v14, v15")
            P(f"s_and_b32 {sT0}, {sW}, 1")
            P(f"s_lshl_b32 {sT0}, {sT0}, 4")
            P(f"v_xor_b32 v106, {sT0}, v14")
            P(f"s_lshr_b32 {sT0}, {sW}, 1")
            P(f"s_lshl_b32 {sT0}, {sT0}, 13")
            P(f"s_add_u32 {sT0}, {sT0}, {VIMG}")
            P(f"v_mov_b32 v96, {sT0}")
            P(f"v_mov_b32 v97, {KVF}")
            P("s_mov_b32 s82, 0x0000ffff")
            P("s_mov_b32 s83, 0x0000ffff")
            P(f"v_cndmask_b32 v96, v97, v96, {sMASK}")
            P(f"v_add_u32 v106, v96, v106")
            P(f"v_xor_b32 v107, 32, v106")
            P(f"s_lshl_b32 {sT0}, {sW}, 13")
            P(f"s_add_u32 {sT0}, {sT0}, {PHI}")
            P(f"v_add_u32 v104, {sT0}, v14")
            P(f"v_xor_b32 v105, 32, v104")
            P("v_and_b32 v14, 31, v0")
            P("v_lshrrev_b32 v15, 5, v0")
            P("v_lshlrev_b32 v108, 4, v14")
            P("v_lshl_add_u32 v108, v15, 8, v108")
            P("v_add_u32 v109, 512, v108")
            P("v_lshlrev_b32 v96, 5, v15")
            P("v_add_u32 v96, 1024, v96")
            P("v_add_u32 v97, 16, v96")
            P("v_cmp_eq_u32 vcc, 16, v14")
            P("v_cndmask_b32 v108, v108, v96, vcc")
            P("v_cndmask_b32 v109, v109, v97, vcc")
            P("v_mov_b32 v96, 0x7f000000")
            P("v_cmp_lt_u32 vcc, 16, v14")
            P("v_cndmask_b32 v108, v108, v96, vcc")
            P("v_cndmask_b32 v109, v109, v96, vcc")
            P(f"s_lshl_b32 {sT0}, {sJ}, 4")
            P(f"s_add_u32 {sT0}, {sT0}, {sRB}")
            P(f"s_lshl_b32 {sT0}, {sT0}, 2")
            P(f"s_add_u32 {sT0}, {sT0}, {sW}")
            P(f"s_mul_i32 s94, {sT0}, {KVHEAD}")
            P(f"s_add_u32 s94, s94, {KVP_OFF}")
            P(f"s_lshl_b32 s95, {sT0}, 7")
            P(f"s_add_u32 s95, s95, {FLAGKV_OFF}")
        else:
            P(f"s_lshl_b32 {sT0}, {sRB}, 2")
            P(f"s_add_u32 {sT0}, {sT0}, {sW}")
            P(f"s_mul_i32 s94, {sT0}, {144*1024}")
            P(f"s_lshl_b32 {sT1}, {sJ}, 12")
            P(f"s_add_u32 s94, s94, {sT1}")
            P(f"s_add_u32 s94, s94, {112*1024}")
            P(f"s_lshl_b32 s95, {sT0}, 5")
            P(f"s_add_u32 s95, s95, {sJ}")
            P(f"s_lshl_b32 s95, s95, 7")
            P(f"s_add_u32 s95, s95, {FLAGH_OFF + 16*128}")
        def mallwarm(which="gudo"):
            P(f"s_lshl_b32 {sT0}, s2, 2")
            P(f"s_add_u32 {sT0}, {sT0}, {sW}")
            P(f"s_mul_i32 {sT1}, {sT0}, 1792")
            P(f"s_lshl_b32 {sT2}, {sT0}, 9")
            P(f"s_mul_i32 {sT3}, {sT0}, 1536")
            P("v_lshlrev_b32 v14, 5, v0")
            P("v_lshlrev_b32 v15, 3, v0")
            j0 = 232
            for q, (ch, sr) in enumerate((("g", SG), ("u", SU), ("d", SD))):
                if ch in which: P(f"buffer_load_dword v{j0+q}, v14, {sr}, {sT1} offen")
            if "o" in which: P(f"buffer_load_dword v{j0+3}, v15, {SO}, {sT2} offen")
            if "q" in which: P(f"buffer_load_dword v{j0+4}, v14, {SQKV}, {sT3} offen")
        def wf_build():
            P.wait("wphi")
            wphi_frags(P, 0, 32, 16, 14, 15)
            if typ == 0:
                P(f"v_add_u32 v14, {WF}, v1")
                for q in range(2): P(f"ds_write_b128 v14, {v(16+4*q,4)} offset:{q*1024}", tok="wf")
        def early():
            Ln = newlabel("nn")
            P(f"s_or_b32 {sT0}, s2, {sW}")
            P(f"s_cmp_lg_u32 {sT0}, 0")
            P(f"s_cbranch_scc1 {Ln}")
            P.ins.append(Ins(".raw"))
            P.ins[-1].text = (f"  s_memrealtime s[100:101]\n  s_waitcnt lgkmcnt(0)\n  s_or_b32 {sT0}, s100, 1\n  v_mov_b32 v240, {sT0}\n  v_mov_b32 v241, 0\n"
                              f"  v_lshlrev_b32 v242, 26, v0\n  buffer_atomic_cmpswap v[240:241], v242, {SDBG}, 0 offen sc1\n  s_nop 1")
            P.label(Ln)
            P(f"s_lshl_b32 {sT1}, {sJ}, 11")
            P(f"s_mov_b32 m0, {WPHI}")
            P(f"buffer_load_dwordx4 v1, {SPHI}, {sT1} offen lds")
            P(f"buffer_load_dwordx4 v1, {SPHI}, {sT1} offen offset:1024 lds", tok="wphi")
            wchunk(0)
        if cfg.tlb:
            P("v_lshlrev_b32 v244, 18, v0")
            P(f"v_add_u32 v244, {0x3ff80}, v244")
            P(f"buffer_load_dword v245, v244, {SWS}, 0 offen")
            P("v_lshlrev_b32 v244, 16, v0")
            for q, sr in enumerate((SOUT, SD, SO, SG, SU, SQKV)):
                P(f"buffer_load_dword v{246+q}, v244, {sr}, 0 offen")
        for _ in range(cfg.wdelay): P("s_sleep 8")
        if cfg.warm == -2: mallwarm("gudoq")
        early()
        wchunk(1)
        if cfg.warm == -3: mallwarm("gudo")
        if cfg.warm == -4:
            mallwarm("gu"); last.setdefault(0, []).append(lambda: mallwarm("do"))
        wf_build()
        if typ == 0: P.wait("wf")
        P("s_waitcnt lgkmcnt(0)")

        def pubflag(tok, val, sadr, t0, t1):
            P(f"s_add_u32 {sT1}, {sNONCE}, {val}")
            P(f"v_mov_b32 v{t0}, {sT1}")
            P(f"v_lshlrev_b32 v{t1}, 26, v0")
            P.wait(tok)
            P(f"buffer_store_dword v{t0}, v{t1}, {SWS}, {sadr} offen sc1")

        if typ == 0:
            def t1_b():
                for hh in range(2):
                    P(f"ds_read_b128 {v(KF+4*hh,4)}, v111 offset:{hh*8192}")
            def t1_burst():
                P("s_setprio 2")
                P(f"v_mfma_f32_32x32x16_bf16 {v(PP,16)}, {v(A1,4)}, {v(KF,4)}, 0")
                P(f"v_mfma_f32_32x32x16_bf16 {v(PP,16)}, {v(A1+4,4)}, {v(KF+4,4)}, {v(PP,16)}")
                Q = Prog()
                softmax_pk(Q, PP, TT, 64, "s[24:25]")
                P.extend(Q.ins[:-16])
                P(f"ds_write_b128 v100, {v(TT,4)}")
                P(f"ds_write_b128 v101, {v(TT+4,4)}")
                P.extend(Q.ins[-16:])
                P(f"ds_write_b128 v102, {v(PP,4)}")
                P(f"ds_write_b128 v103, {v(PP+4,4)}", tok="phi1")
                P("s_setprio 0")
            def t1_rd():
                for ks in range(8):
                    a, b = 32 + 4 * ks, VF + 4 * ks
                    P(f"ds_read_b64_tr_b16 {v(a,2)}, v104 offset:{ks*1024}")
                    P(f"ds_read_b64_tr_b16 {v(a+2,2)}, v105 offset:{ks*1024+256}")
                    P(f"ds_read_b64_tr_b16 {v(b,2)}, v106 offset:{ks*1024}")
                    P(f"ds_read_b64_tr_b16 {v(b+2,2)}, v107 offset:{ks*1024+256}", tok="kvrd")
            def t1_kv():
                D = 16
                P("s_setprio 2")
                for ks in range(8):
                    a, b = 32 + 4 * ks, VF + 4 * ks
                    P(f"v_mfma_f32_32x32x16_bf16 {v(D,16)}, {v(a,4)}, {v(b,4)}, {'0' if ks == 0 else v(D,16)}")
            def t1_st():
                D = 16
                for k in range(8): P(f"v_cvt_pk_bf16_f32 v{D+k}, v{D+2*k}, v{D+2*k+1}")
                P(f"buffer_store_dwordx4 {v(D,4)}, v108, {SWS}, s94 offen sc1")
                P(f"buffer_store_dwordx4 {v(D+4,4)}, v109, {SWS}, s94 offen sc1", tok="kvst")
                P("s_setprio 0")
            first[8] = [t1_b]
            extra[8] = [t1_burst]
            if cfg.kvb:
                extra[8] += [lambda: P.wait("phi1"), lambda: P("s_barrier"), lambda: P("s_setprio 2"), t1_rd, t1_kv, t1_st]
            else:
                last[8] = [lambda: P.wait("phi1")]
                first[9] = [t1_rd]
                extra[9] = [t1_kv, t1_st]
            first[cfg.kvfl] = [lambda: pubflag("kvst", 1, "s95", 96, 97)]
            def t1_masks():
                P("s_mov_b32 s100, 0x33333333"); P("s_mov_b32 s101, 0x33333333")
                P("s_mov_b32 s84, 0xcccccccc"); P("s_mov_b32 s85, 0xcccccccc")
            for s_ in range(10, 16): first.setdefault(s_, []).append(t1_masks)
        else:
            A = 16; QF = 32; PP = [48, 64]; TT = 16; TM = 32; PH = 80
            def t2_b():
                P(f"s_add_u32 {sT0}, s99, {7*SLOT}")
                P(f"v_add_u32 v14, {sT0}, v1")
                for q in range(4): P(f"ds_read_b128 {v(QF+4*q,4)}, v14 offset:{q*1024}", tok="qrd")
            def t2_m():
                P("s_setprio 2")
                for p in range(2):
                    P(f"v_mfma_f32_32x32x16_bf16 {v(PP[p],16)}, {v(A+8*p,4)}, {v(QF+8*p,4)}, 0")
                    P(f"v_mfma_f32_32x32x16_bf16 {v(PP[p],16)}, {v(A+8*p+4,4)}, {v(QF+8*p+4,4)}, {v(PP[p],16)}")
                P("s_setprio 0")
            Q = Prog()
            for p in range(2):
                softmax_core(Q, PP[p], TT, TM, "s24")
                s1, s2 = TM + 2, TM + 3
                Q(f"v_rcp_f32 v{s1}, v{s1}")
                Q(f"v_rcp_f32 v{s2}, v{s2}")
                for k in range(16):
                    Q(f"v_mul_f32 v{TT+k}, v{TT+k}, v{s1}")
                    Q(f"v_mul_f32 v{PP[p]+k}, v{PP[p]+k}, v{s2}")
                for k in range(8):
                    Q(f"v_cvt_pk_bf16_f32 v{PH+16*p+k}, v{TT+2*k}, v{TT+2*k+1}")
                    Q(f"v_cvt_pk_bf16_f32 v{PH+16*p+8+k}, v{PP[p]+2*k}, v{PP[p]+2*k+1}")
            nparts = cfg.smend2 - cfg.qb + 1
            parts = split(Q.ins, nparts)
            first[cfg.qb] = [t2_b]
            for q in range(nparts):
                extra[cfg.qb + q] = [lambda q=q: vpart(parts[q])]
            extra[cfg.qb].insert(0, t2_m)
            dst = [16 + 4 * i for i in range(16)]
            KD, KI, KZ = 232, 248, 252
            def kvflagload():
                P("v_and_b32 v15, 15, v0")
                P("v_lshlrev_b32 v15, 9, v15")
                P("v_lshrrev_b32 v14, 4, v0")
                P("v_lshl_add_u32 v15, v14, 26, v15")
                P(f"s_lshl_b32 s26, {sJ}, 6")
                P(f"s_add_u32 s26, s26, {sW}")
                P(f"s_mul_i32 s84, s26, {KVHEAD}")
                P(f"s_add_u32 s84, s84, {KVP_OFF}")
                P(f"s_mul_i32 s85, {sRB}, {KVREC}")
                P(f"s_lshl_b32 s26, s26, 7")
                P(f"s_add_u32 s26, s26, {FLAGKV_OFF}")
                P(f"buffer_load_dword v14, v15, {SWS}, s26 offen sc1")
                P("v_and_b32 v12, 31, v0")
                P("v_lshrrev_b32 v13, 5, v0")
                P("v_lshlrev_b32 v13, 3, v13")
                P("v_sub_u32 v12, v12, v13")
                P("v_and_b32 v13, 1, v12")
                P("v_lshlrev_b32 v13, 4, v13")
                P(f"s_movk_i32 {sT0}, 0x3f80")
                P(f"v_lshlrev_b32 v13, v13, {sT0}")
                P("v_lshrrev_b32 v12, 1, v12")
                for k in range(4):
                    P(f"v_cmp_eq_u32 vcc, {k}, v12")
                    P(f"v_cndmask_b32 v{KI+k}, 0, v13, vcc")
            def kvissue():
                P("s_mov_b32 s82, 0xffff")
                P("s_mov_b32 s83, 0")
                poll_global(P, cfg, "v14", "v15", SWS, "s26", 1, 1, sMASK)
                S2(P, "kvflag") if not cfg.slotst else None
                P("v_lshrrev_b32 v15, 2, v0")
                P(f"v_mul_u32_u24 v15, {KVREC}, v15")
                P("v_and_b32 v13, 3, v0")
                P("v_lshl_add_u32 v15, v13, 4, v15")
                for i in range(16):
                    P(f"s_add_u32 {sT3}, s84, s85")
                    P(f"buffer_load_dwordx4 {v(dst[i],4)}, v1, {SWS}, {sT3} offen sc1")
                    P(f"s_add_u32 s85, s85, {KVREC}")
                    P(f"s_cmp_eq_u32 s85, {16*KVREC}")
                    P(f"s_cselect_b32 s85, 0, s85")
                    if i == 1: P(f"buffer_load_dwordx4 {v(KZ,4)}, v15, {SWS}, s84 offen offset:1024 sc1")
                P("v_lshlrev_b32 v13, 4, v13")
                P("v_bfe_u32 v15, v0, 4, 1")
                P("v_lshl_add_u32 v13, v15, 2, v13")
                P("v_lshrrev_b32 v14, 5, v0")
                P("v_lshl_add_u32 v13, v14, 1, v13")
                P(f"s_lshl_b32 {sT0}, {sW}, 6")
                P(f"s_add_u32 {sT0}, {sT0}, {ZL}")
                P(f"v_add_u32 v13, {sT0}, v13")
                P("v_and_b32 v12, 15, v0")
                P("v_lshlrev_b32 v12, 4, v12")
                P("v_lshl_add_u32 v12, v14, 3, v12")
                P("v_lshl_add_u32 v12, v15, 11, v12")
                P(f"s_lshr_b32 {sT0}, {sW}, 1")
                P(f"s_lshl_b32 {sT0}, {sT0}, 12")
                P(f"s_and_b32 {sT1}, {sW}, 1")
                P(f"s_mul_i32 {sT1}, {sT1}, 768")
                P(f"s_add_u32 {sT0}, {sT0}, {sT1}")
                P(f"s_add_u32 {sT0}, {sT0}, {KVF}")
                P(f"v_add_u32 v12, {sT0}, v12")
            def kvsum(hook=None):
                P("s_setprio 2")
                Z = 16
                Qz = Prog()
                for k in range(4):
                    Qz(f"v_lshlrev_b32 v{Z+2*k}, 16, v{KZ+k}")
                    Qz(f"v_and_b32 v{Z+1+2*k}, {sHI}, v{KZ+k}")
                for rr in (4, 8):
                    for k in range(8):
                        Qz(f"v_add_f32_dpp v{Z+k}, v{Z+k}, v{Z+k} row_ror:{rr} row_mask:0xf bank_mask:0xf")
                for k in range(0, 8, 2): Qz(f"v_permlane32_swap_b32 v{Z+k}, v{Z+1+k}")
                for k in range(0, 8, 2): Qz(f"v_add_f32 v{Z+k}, v{Z+k}, v{Z+1+k}")
                Qz(f"v_permlane16_swap_b32 v{Z}, v{Z+2}")
                Qz(f"v_permlane16_swap_b32 v{Z+4}, v{Z+6}")
                Qz(f"v_add_f32 v{Z}, v{Z}, v{Z+2}")
                Qz(f"v_add_f32 v{Z+4}, v{Z+4}, v{Z+6}")
                Qz(f"v_cvt_pk_bf16_f32 v{Z}, v{Z}, v{Z+4}")
                zi = Qz.ins
                for i in range(16):
                    P(f"v_mfma_f32_32x32x16_bf16 {v(KD,16)}, {v(KI,4)}, {v(dst[i],4)}, {'0' if i == 0 else v(KD,16)}")
                    if hook: hook(i)
                    if i >= 2:
                        P.extend(zi[:3]); zi = zi[3:]
                P.extend(zi)
                P(f"ds_write_b16 v13, v{Z}")
                P(f"ds_write_b16_d16_hi v13, v{Z} offset:8")
                for k in range(4): P(f"v_cvt_pk_bf16_f32 v{KD+k}, v{KD+2*k}, v{KD+2*k+1}")
                P(f"ds_write_b64 v12, {v(KD,2)}")
                P(f"ds_write_b64 v12, {v(KD+2,2)} offset:1024", tok="kvf")
                P("s_setprio 0")
            def o_addr():
                P(f"v_add_u32 v12, {KVF}, v1")
                P("v_lshrrev_b32 v13, 5, v0")
                P("v_lshlrev_b32 v13, 6, v13")
                P(f"v_add_u32 v13, {ZL}, v13")
                P(f"v_mov_b32 v14, {ZL+256}")
                P("s_mov_b32 s82, 0x0000ffff")
                P("s_mov_b32 s83, 0xffff0000")
                P(f"v_cndmask_b32 v13, v14, v13, {sMASK}")
            def o_pair(p, hook=None):
                KVR, ZR, NUM, DEN = 16, 32, 48, 64
                for jj in range(4):
                    P(f"ds_read_b128 {v(ZR+4*jj,4)}, v13 offset:{p*128+jj*16}")
                for jj in range(4):
                    P(f"ds_read_b128 {v(KVR+4*jj,4)}, v12 offset:{p*4096+jj*1024}")
                P("s_setprio 2")
                for jj in range(4):
                    P(f"v_mfma_f32_32x32x16_bf16 {v(DEN,16)}, {v(ZR+4*jj,4)}, {v(PH+16*p+4*jj,4)}, {'0' if jj == 0 else v(DEN,16)}")
                for jj in range(4):
                    P(f"v_mfma_f32_32x32x16_bf16 {v(NUM,16)}, {v(KVR+4*jj,4)}, {v(PH+16*p+4*jj,4)}, {'0' if jj == 0 else v(NUM,16)}")
                if hook: hook()
                for h in range(2):
                    P(f"v_add_f32 v{DEN+8*h}, 0x358637bd, v{DEN+8*h}")
                for h in range(2):
                    P(f"v_rcp_f32 v{DEN+8*h}, v{DEN+8*h}")
                for k in range(16):
                    P(f"v_mul_f32 v{NUM+k}, v{NUM+k}, v{DEN+8*(k>>3)}")
                for k in range(8): P(f"v_cvt_pk_bf16_f32 v{NUM+k}, v{NUM+2*k}, v{NUM+2*k+1}")
                for k in range(4): P(f"v_bfi_b32 v{NUM+2*k}, s3, v{2+(k&1)}, v{NUM+2*k}")
                P(f"buffer_store_dwordx4 {v(NUM,4)}, v1, {SWS}, s94 offen offset:{2048*p} sc1")
                P(f"buffer_store_dwordx4 {v(NUM+4,4)}, v1, {SWS}, s94 offen offset:{2048*p+1024} sc1", tok=f"o{p}")
                P("s_setprio 0")
            ks_ = cfg.kvst
            assert cfg.smend2 < ks_
            extra.setdefault(ks_ - 1, []).append(kvflagload)
            if ks_ <= 16: extra[ks_] = [kvissue]

        if cfg.touch >= 0:
            tl = [24, 26, 28, 32] + ([20] if typ == 1 else [])
            last.setdefault(cfg.touch, []).append(lambda: [b2touch(x) for x in tl])
        if 0 <= cfg.warm < 10:
            last.setdefault(cfg.warm, []).append(mallwarm)
        elif cfg.warm >= 10:
            a_, b_ = cfg.warm // 10 - 1, cfg.warm % 10
            last.setdefault(a_, []).append(lambda: mallwarm("gu"))
            last.setdefault(b_, []).append(lambda: mallwarm("do"))
        TG2 = [14, 15]
        free = [RING + 4 * i for i in range(8)]
        areg = {}
        breg = {sg: [B2R + 8 * sg, B2R + 8 * sg + 4] for sg in range(18)}
        checked = [0]
        flagged = [0]
        nxt_a = [0]
        def p2setup():
            P("v_and_b32 v4, 31, v0")
            P("v_lshlrev_b32 v4, 10, v4")
            P("v_lshrrev_b32 v5, 5, v0")
            P("v_lshl_add_u32 v4, v5, 4, v4")
            P(f"s_lshl_b32 {sT0}, {sR2}, 1")
            P(f"s_lshr_b32 {sT1}, {sW}, 1")
            P(f"s_add_u32 {sT0}, {sT0}, {sT1}")
            P(f"s_lshl_b32 {sT0}, {sT0}, 15")
            P(f"s_lshl_b32 {sT1}, {sC2}, 7")
            P(f"s_add_u32 {sT0}, {sT0}, {sT1}")
            P(f"s_and_b32 {sT1}, {sW}, 1")
            P(f"s_lshl_b32 {sT1}, {sT1}, 6")
            P(f"s_add_u32 {sT0}, {sT0}, {sT1}")
            P(f"v_add_u32 v4, {sT0}, v4")
        def resload():
            P(f"buffer_load_dwordx4 v[32:35], v4, {SX}, 0 offen")
            P(f"buffer_load_dwordx4 v[36:39], v4, {SX}, 0 offen offset:32")
        def residual():
            P(f"s_mov_b32 {sT1}, 0xffff0000")
            for jj in range(2):
                b = 32 + 4 * jj
                P(f"v_permlane32_swap_b32 v{b}, v{b+2}")
                P(f"v_permlane32_swap_b32 v{b+1}, v{b+3}")
            for k in range(8):
                P(f"v_lshlrev_b32 v{ACC+2*k}, 16, v{32+k}")
                P(f"v_and_b32 v{ACC+2*k+1}, {sT1}, v{32+k}")
        def aload_ins(Px, sg):
            ks_to(Px, sg, sT2)
            if slots[sg][1] == "O": Px(f"s_add_u32 {sT2}, {sT2}, {112*1024}")
            for rt in range(2):
                Px(f"buffer_load_dwordx4 {v(areg[sg][rt],4)}, v{VA[rt]}, {SWS}, {sT2} offen sc1")
        def aload(sg):
            throttle()
            areg[sg] = [free.pop(0), free.pop(0)]
            vmlog.append(("a", sg))
            aload_ins(P, sg)
        first.setdefault(16, []).append(p2setup)
        wextra = {10: (18, (0,)), 11: (18, (1,)), 12: (19, (0,)), 13: (19, (1,))} if typ == 0 else {13: (18, (0, 1)), 14: (19, (0, 1))}

        b2log = []
        for s in range(18):
            P.wait(*([f"w{s}"] if s < 17 else ["w17", "w18", "w19"]))
            P("s_barrier")
            if s == 17: break
            if s == 0 or (cfg.allb >= 0 and cfg.allb <= s < cfg.allb + 8): S2(P, f"B{s}")
            if s == 0:
                wchunk(2); wchunk(3)
            if s == 1:
                P(f"buffer_load_dword v110, off, {SDBG}, 0 sc1")
            if s == 3:
                poll_nonce(P, cfg, "v110")
            for f in first.get(s, []): f()
            if s + 2 < 18 and s >= 2:
                wchunk(s + 2)
            if s in wextra: wchunk(*wextra[s])
            for f in extra.get(s, []): f()
            lag = cfg.b2lag
            todo = [sg for (sg, st_) in pend_reads if st_ <= s - lag and s >= defer.get(sg, 0)]
            pend_reads = [(sg, st_) for (sg, st_) in pend_reads if sg not in todo]
            for sg in todo:
                b2read(sg, breg[sg]); readdone.add(sg)
            n_issue = per[s]
            while n_issue > 0:
                n_issue -= 1
                cand = None
                if todo_reg:
                    for pos in stg:
                        lo, hi = poswin(pos, False)
                        oc = occupant.get(pos)
                        if lo <= s <= hi and (oc is None or oc in readdone):
                            cand = (todo_reg.pop(0), pos); break
                if cand is None:
                    for sg in todo_fin:
                        pos = b2pos(sg)
                        lo, hi = poswin(pos, True)
                        oc = occupant.get(pos)
                        stg_ok = (pos not in stg) or (not todo_reg) or (s > poswin(pos, False)[1])
                        if lo <= s <= hi and (oc is None or oc in readdone) and stg_ok:
                            todo_fin.remove(sg); cand = (sg, pos); break
                if cand is None: break
                sg, pos = cand
                oc = occupant.get(pos)
                if oc is not None: P.wait(f"br{oc}")
                occupant[pos] = sg
                if sg < 18:
                    stagepos[sg] = pos
                    pend_reads.append((sg, s))
                b2dma(sg)
                b2log.append((s, sg))
            for f in last.get(s, []): f()
            if typ == 0 and s == 7:
                for pos in stg[:2]:
                    assert occupant.get(pos) in readdone
                    P.wait(f"br{occupant[pos]}")
        S2(P, "ringend")
        thr_on[0] = True
        assert not todo_reg
        if cfg.stamps: P("s_mov_b32 s97, s98")
        P(f"v_mov_b32 v5, {LFLAG}")
        fin_all = todo_fin + [26, 27]
        lateq = list(range(32, 36)) if typ == 0 else list(range(28, 36))
        def fin_issue(n, only=None):
            for _ in range(n):
                c = [x for x in fin_all if only is None or x in only]
                if not c: return
                sg = c[0]; fin_all.remove(sg)
                oc = occupant.get(b2pos(sg))
                if oc is not None: P.wait(f"br{oc}")
                b2dma(sg); b2log.append((20, sg))
        if typ == 1:
            thr_on[0] = False
            if cfg.kvst == 17: kvissue()
            kvsum(lambda i: fin_issue(1, (24, 25, 26, 27)) if (cfg.t2e and i >= 8 and i % 2 == 0) else None)
            thr_on[0] = True
            P(f"s_lshl_b32 {sT0}, {sW}, 2")
            P(f"v_add_u32 v14, {sT0}, v5")
            P("v_mov_b32 v15, 1")
            P.wait("kvf")
            P("ds_write_b32 v14, v15 offset:48")
        for sg, _ in pend_reads:
            b2read(sg, breg[sg]); readdone.add(sg)
        if typ == 1:
            tag_setup(P, [2, 3], "s3")
            poll_lds(P, cfg, 12, "v5", 48)
            if cfg.t2e: poll_lds(P, cfg, 12, "v5", 16)
            S2(P, "kvx") if not cfg.slotst else None
            o_addr()
            thr_on[0] = False
            o_pair(0, lambda: [aload(0), aload(1)] + ([fin_issue(cfg.t2e)] if cfg.t2e else []))
            o_pair(1, lambda: [aload(2), aload(3)] + ([fin_issue(cfg.t2e)] if cfg.t2e else []))
            thr_on[0] = True
            S2(P, "odone")
            if cfg.t2e:
                fin_all += lateq[:4]; lateq = lateq[4:]
            fin_issue(cfg.nfin)
        else:
            for sg in range(4): aload(sg)
            fin_issue(99)
            poll_lds(P, cfg, 12, "v5", 0)
            for x in (28, 29): b2dma(x)
            poll_lds(P, cfg, 12, "v5", 16)
            for x in (30, 31): b2dma(x)
        print("B2 plan typ", typ, b2log)
        nxt_a[0] = 4
        tag_setup(P, TG2, "s3", True)
        nxt_b = [18]
        BLA = 3
        ALA = cfg.ala
        slow = []
        def tagops(Q, sg):
            for r in areg[sg]:
                Q(f"v_xor_b32 v{r}, v{r}, v{TG2[0]}")
                Q(f"v_xor_b32 v{r+2}, v{r+2}, v{TG2[1]}")
            r0, r1 = areg[sg]
            Q(f"v_bitop3_b32 v2, v{r0}, v{r0+2}, v{r0} bitop3:0xf3")
            Q(f"v_bitop3_b32 v2, v{r1}, v{r1+2}, v2 bitop3:0xfb")
            Q("v_and_b32 v2, s3, v2")
            Q("v_cmp_ne_u32 vcc, 0, v2")
        def tagcheck(sg):
            Q = Prog()
            Ls, Lc = newlabel("slow"), newlabel("cont")
            tagops(Q, sg)
            B = Prog()
            B("s_cmp_lg_u64 vcc, 0")
            B(f"s_cbranch_scc1 {Ls}")
            B.label(Lc)
            T = Prog()
            Lp, Ld = newlabel("sp"), newlabel("sd")
            T.label(Ls)
            T(f"s_mov_b32 {sCNT}, {cfg.spin2}")
            if cfg.stamps: T("s_add_u32 s97, s97, 1")
            T.label(Lp)
            T(f"s_sleep {cfg.sleep}")
            aload_ins(T, sg)
            T("s_waitcnt vmcnt(0)")
            tagops(T, sg)
            T("s_nop 1")
            T("s_cmp_lg_u64 vcc, 0")
            T(f"s_cbranch_scc0 {Ld}")
            T(f"s_sub_u32 {sCNT}, {sCNT}, 1")
            T(f"s_cbranch_scc0 {Lp}")
            T.label(Ld)
            if cfg.fastslow and sg >= 4:
                for kind_, x in vmlog[vmlog.index(("a", sg)) + 1:]:
                    if kind_ == "a": aload_ins(T, x)
                    elif kind_ == "b": b2dma(x, T)
                    else:
                        T(f"buffer_load_dwordx4 {v(x[0],4)}, v4, {SX}, 0 offen")
                        T(f"buffer_load_dwordx4 {v(x[1],4)}, v4, {SX}, 0 offen offset:32")
                T(f"s_waitcnt vmcnt(@{Lc}:@)")
            else:
                for x in range(sg + 1, nxt_a[0]): aload_ins(T, x)
                T("s_waitcnt vmcnt(0)")
            T(f"s_branch {Lc}")
            slow.extend(T.ins)
            return Q.ins, B.ins
        deferred = {0: [], 2: [], 3: []}
        c0, b0 = tagcheck(0)
        P.extend(c0); P.extend(b0)
        for sg in range(36):
            if cfg.slotst and sg % 4 == 0: S2(P, f"s{sg}")
            if sg == cfg.thrn: thr_on[0] = False
            fill = Prog()
            P_save = P.ins
            P.ins = fill.ins
            if sg >= 1 and sg - 1 < 36 - cfg.tl:
                free.extend(areg[sg - 1]); free.extend(breg[sg - 1])
            if cfg.hold and sg == cfg.hold:
                poll_lds(P, cfg, free[0], "v5", 64)
            while nxt_b[0] < 36 and nxt_b[0] <= sg + BLA:
                r = [free.pop(0), free.pop(0)]
                breg[nxt_b[0]] = r
                b2read(nxt_b[0], r); nxt_b[0] += 1
            cnt = 0
            while nxt_a[0] < 36 and len(free) >= 4 and nxt_a[0] <= sg + ALA and cnt < 2:
                aload(nxt_a[0]); nxt_a[0] += 1; cnt += 1
            if sg == cfg.pg0:
                poll_lds(P, cfg, free[0], "v5", 32)
            if fin_all and sg >= 1:
                fin_issue(1)
            elif sg > cfg.pg0 and lateq and (sg - cfg.pg0) % cfg.pgs == 0:
                b2dma(lateq.pop(0))
            if sg == 30:
                rres = [free.pop(0), free.pop(0)]
                vmlog.append(("r", rres))
                P(f"buffer_load_dwordx4 {v(rres[0],4)}, v4, {SX}, 0 offen")
                P(f"buffer_load_dwordx4 {v(rres[1],4)}, v4, {SX}, 0 offen offset:32")
            P.ins = P_save
            mf = []
            for rt in range(2):
                for ct in range(2):
                    q = ct + 2 * rt
                    a = ACC + 16 * q
                    c = "0" if sg == 0 else v(a, 16)
                    mf.append(Ins(f"v_mfma_f32_32x32x16_bf16 {v(a,16)}, {v(breg[sg][ct],4)}, {v(areg[sg][rt],4)}, {c}"))
            f = fill.ins
            tc, tb_ = tagcheck(sg + 1) if sg + 1 < 36 else ([], [])
            if any(x.kind == "label" for x in f):
                parts_ = [[], f, [], []]
            else:
                n3 = -(-len(f) // 3)
                parts_ = [[], f[:n3], f[n3:2 * n3], f[2 * n3:]]
            tcs = [tc[:4], tc[4:6], tc[6:8], tb_]
            if sg >= 36 - cfg.tl:
                k1 = [i for i, (rt, ct) in enumerate([(0, 0), (0, 1), (1, 0), (1, 1)]) if ct + 2 * rt == 1][0]
                P.extend(mf[k1:k1 + 1]); P.extend(f); P.extend(tc); P.extend(tb_)
                for q in (2, 3, 0): deferred[q].append(mf[q])
            else:
                for k in range(4):
                    P.extend(mf[k:k + 1]); P.extend(parts_[k]); P.extend(tcs[k])
        P(f"s_add_u32 {sT0}, s99, {4*SLOT}")
        P(f"v_add_u32 v12, {sT0}, v1")
        wr = {q: [Ins(f"ds_write_b128 v12, {v(ACC+16*q+4*k,4)} offset:{q*SLOT+k*1024}") for k in range(4)] for q in (1, 2, 3)}
        if cfg.tl:
            pendw = []
            for q, prevq in ((2, 1), (3, 2), (0, 3)):
                for i, m in enumerate(deferred[q]):
                    P.extend([m])
                    if i == 1: pendw += wr[prevq]
                    if pendw: P.extend([pendw.pop(0)])
                    if pendw and i >= 2: P.extend([pendw.pop(0)])
            P.extend(pendw)
        else:
            for q in range(1, 4): P.extend(wr[q])
        S2(P, "mainend")
        for q in range(1, 4):
            P(f"v_xor_b32 v{12+q}, {q*4096}, v12")
        for b in rres:
            P(f"v_permlane32_swap_b32 v{b}, v{b+2}")
            P(f"v_permlane32_swap_b32 v{b+1}, v{b+3}")
        for k in range(8):
            src = rres[k // 4] + (k % 4)
            P(f"v_lshlrev_b32 v2, 16, v{src}")
            P(f"v_and_b32 v3, {sHI}, v{src}")
            P(f"v_pk_add_f32 {v(ACC+2*k,2)}, {v(ACC+2*k,2)}, v[2:3]")
        P("s_waitcnt lgkmcnt(0)")
        P("s_barrier")
        for q in range(1, 4):
            for k in range(4):
                P(f"ds_read_b128 {v(ACC+16*q+4*k,4)}, v{12+q} offset:{q*SLOT+k*1024}")
        for q in range(1, 4):
            for k in range(0, 16, 2):
                P(f"v_pk_add_f32 {v(ACC+k,2)}, {v(ACC+k,2)}, {v(ACC+16*q+k,2)}")
        for k in range(8): P(f"v_cvt_pk_bf16_f32 v{ACC+k}, v{ACC+2*k}, v{ACC+2*k+1}")
        for jj in range(2):
            b = ACC + 4 * jj
            P(f"v_permlane32_swap_b32 v{b}, v{b+2}")
            P(f"v_permlane32_swap_b32 v{b+1}, v{b+3}")
            P(f"buffer_store_dwordx4 {v(b,4)}, v4, {SOUT}, 0 offen offset:{32*jj}{['', ' sc1', ' sc0 sc1', ' nt'][cfg.outsc]}")
        S2(P, "end")
        if cfg.stamps and S2.n < len(S2.regs):
            P(f"s_mov_b32 {S2.regs[S2.n]}, s97"); S2.n += 1; S2.names.append("nslow")
        S2.dump(P, 1)
        if cfg.padT:
            Lq = newlabel("pad")
            r_ = Ins(".raw"); r_.text = f"{Lq}:\n  s_sleep 2\n  s_memrealtime s[100:101]\n  s_waitcnt lgkmcnt(0)\n  s_sub_u32 s100, s100, s96\n  s_cmp_lt_u32 s100, {cfg.padT}\n  s_cbranch_scc1 {Lq}"
            P.ins.append(r_)
        P("s_endpgm")
        raw = Ins(".raw"); raw.text = text_of(slow).rstrip("\n")
        P.ins.append(raw)
        return P, S2

    names = {"p1t1": names_p1t1, "p1t2": names_p1t2}
    for typ in range(2):
        P, S2 = p2_rest(typ)
        r, _ = finalize(P, st2, log)
        segs.append(r)
        names[f"p2t{typ+1}"] = S2.names

    hdr = open("cdna_kernels/" + NAME + ".s.ref").read().split("\n")
    head = [l for l in hdr if l.startswith(";") and "@launch" not in l and "Override launch" not in l and "grid=ceil" not in l]
    out = "\n".join(head) + f"\n; @launch grid=(256,1,1) block=(512,1,1) lds={LDS_BYTES}\n"
    out += f""".amdgcn_target "amdgcn-amd-amdhsa--gfx950"
.text
.globl {NAME}_kernel
.p2align 8
.type {NAME}_kernel,@function
{NAME}_kernel:
"""
    for sgm in segs:
        out += text_of(sgm)
    out = re.sub(r"@(L_\w+:)@", lambda m: str(VQ_AT[m.group(1)]), out)
    out += f"""L_end:
  s_endpgm
L_codeend:
{"".join(fb_text)}
.section .rodata,"a"
.p2align 6
.amdhsa_kernel {NAME}_kernel
  .amdhsa_next_free_vgpr 256
  .amdhsa_next_free_sgpr 102
  .amdhsa_accum_offset 256
  .amdhsa_group_segment_fixed_size 0
  .amdhsa_kernarg_size 88
  .amdhsa_user_sgpr_count 2
  .amdhsa_user_sgpr_kernarg_segment_ptr 1
  .amdhsa_system_sgpr_workgroup_id_x 1
.end_amdhsa_kernel
"""
    return out, names, log


if __name__ == "__main__":
    cfg = Cfg()
    outp = "cdna_kernels/" + NAME + ".s"
    for a in sys.argv[1:]:
        if a.startswith("out="): outp = a[4:]
        else:
            k, val = a.split("=")
            setattr(cfg, k, type(getattr(cfg, k))(int(val)))
    text, names, log = gen(cfg)
    open(outp, "w").write(text)
    import json
    json.dump(names, open(outp + ".names.json", "w"))
    print("written", outp, len(text), "bytes;", log)
```

```python
import sys, math, re
from asmlib import *

NAME = "parallel_sum__linear_kernel_hedgehog__glu_gated_glu__prompt"

class Cfg:
    stamps = 0
    map84 = True
    LA = 5
    cap = 3
    spin = 1 << 16
    skew = True
    codepf = True
    nob2 = False
    dbgstage = -1
    now = False
    sleep = 1
    nosm = False
    allb = -1
    phib = 9
    vprio = 0
    kvst = 17
    kvfl = 11
    b2lag = 2
    per1 = [0,0,2,2,2,2,2,2, 4,0,2,2,1,1,0,0,2,0]
    wdelay = 0
    ofirst = 0
    cap2 = 5
    spin2 = 4096
    touch = -1
    tmajor = 0
    padT = 0
    kprio = 0
    o64 = 1
    eprio = 0
    eala = 2
    nfin1 = 99
    tl = 0
    kvb = 0
    qb = 5
    skipb = 99
    skipw = 99
    nc = 0
    t2e = 2
    stag2 = 2
    stag1 = 2
    fastslow = 1
    thr = 4
    thrn = 6
    hold = 0
    nfin = 2
    ntx = 0
    ntw = 0
    ntb = 0
    tlb = 0
    warm = 20
    rt = 0
    b2hit = 0
    nopz = 0
    outsc = 1
    pg0 = 6
    pgs = 1
    slotst = 0
    per2 = [0,0,2,2,2,2,2,2, 2,2,2,1,1,0,0,1,0,0]
    kvn = 3
    flagA = 262
    smend2 = 14
    capC = 5
    hprio = 0
    ala = 8
    dbgout = False
    fla = 3

H_OFF = 0
KVP_OFF = 0xA00000
KVHEAD = 1152
KVREC = 4 * KVHEAD
FLAGH_OFF = 0xB00000
FLAGKV_OFF = 0xB80000
STAMP_OFF = 0xC00000
WS_BYTES = 0x1000000

SLOT = 16384
XBASE = 4 * SLOT
PHI = 6 * SLOT
VIMG = 8 * SLOT
SCR = 9 * SLOT
WPHI = SCR
KVF = SCR + 2048
ZL = SCR + 10240
LFLAG = SCR + 10752
WF = SCR + 11264
STX = SCR + 14336
XN = 4 * SLOT
XB0 = 2 * SLOT
LDS_BYTES = 10 * SLOT

SX, SWS, SDBG, SQKV, SG, SU, SD, SO, SPHI, SOUT = [f"s[{b}:{b+3}]" for b in range(28, 68, 4)]
sW, sRB, sJ, sTYPE, sROT, sR2, sC2, sNONCE = [f"s{i}" for i in range(68, 76)]
sT0, sT1, sT2, sT3, sT4, sT5 = [f"s{i}" for i in range(76, 82)]
sMASK = "s[82:83]"
sMASK2 = "s[84:85]"
sCNT = "s86"
sHI = "s87"
sC1 = "s3"
sC2K = "s26"
sC3 = "s27"

NT = ["", " nt"]
LOG2E = 0x3FB8AA3B
NLOG2E = 0xBFB8AA3B

def v(a, n=1):
    return f"v{a}" if n == 1 else f"v[{a}:{a+n-1}]"

def srd(P, name, plo, nbytes):
    b = int(name[2:name.index(":")])
    P(f"s_mov_b32 s{b}, s{plo}")
    P(f"s_mov_b32 s{b+1}, s{plo+1}")
    P(f"s_mov_b32 s{b+2}, {nbytes:#x}")
    P(f"s_mov_b32 s{b+3}, 0x20000")

_lbl = [0]
def newlabel(p):
    _lbl[0] += 1
    return f"L_{p}_{_lbl[0]}"

class Stamps:
    def __init__(self, cfg, regs):
        self.cfg = cfg; self.regs = regs; self.n = 0; self.names = []
    def __call__(self, P, name):
        if not self.cfg.stamps or self.cfg.stamps == 2: return
        assert self.n < len(self.regs), "too many stamps"
        P("s_memrealtime s[100:101]" if self.cfg.rt else "s_memtime s[100:101]")
        i = P("s_waitcnt lgkmcnt(0)"); i.pin = True
        P(f"s_mov_b32 {self.regs[self.n]}, s100")
        self.n += 1; self.names.append(name)
    def fork(self):
        s = Stamps(self.cfg, self.regs); s.n = self.n; s.names = list(self.names); return s
    def dump(self, P, role):
        if not self.cfg.stamps: return
        P(f"s_lshl_b32 {sT0}, s2, 3")
        P(f"s_add_u32 {sT0}, {sT0}, {sW}")
        P(f"s_add_u32 {sT0}, {sT0}, {4*role}")
        P(f"s_lshl_b32 {sT0}, {sT0}, 7")
        P(f"s_add_u32 {sT0}, {sT0}, {STAMP_OFF}")
        P("v_mov_b32 v12, 0")
        P("s_memrealtime s[100:101]")
        i = P("s_waitcnt lgkmcnt(0)"); i.pin = True
        P("v_mov_b32 v13, s96")
        P(f"buffer_store_dword v13, v12, {SWS}, {sT0} offen offset:120")
        P("s_nop 1")
        P("v_mov_b32 v13, s100")
        P(f"buffer_store_dword v13, v12, {SWS}, {sT0} offen offset:124")
        P("s_nop 1")
        for k in range(self.n):
            P(f"v_mov_b32 v13, {self.regs[k]}")
            P(f"buffer_store_dword v13, v12, {SWS}, {sT0} offen offset:{4*k}")
            P("s_nop 1")


def poll_global(P, cfg, vflag, vaddr, srdname, soff, need, maxv, smask, tok=None):
    L, OK = newlabel("poll"), newlabel("ok")
    P(f"s_mov_b32 {sCNT}, {cfg.spin}")
    P(f"s_add_u32 {sT5}, {sNONCE}, {need}")
    P(f"v_subrev_u32 {vflag}, {sT5}, {vflag}")
    P.label(L)
    P(f"v_cmp_lt_u32 vcc, {maxv-need}, {vflag}")
    P("s_nop 1")
    P(f"s_and_b64 vcc, vcc, {smask}")
    P(f"s_cbranch_scc0 {OK}")
    P(f"s_sleep {cfg.sleep}")
    P.ins.append(Ins(f".raw"))
    P.ins[-1].text = f"  buffer_load_dword {vflag}, {vaddr}, {srdname}, {soff} offen sc1\n  s_waitcnt vmcnt(0)\n  v_subrev_u32 {vflag}, {sT5}, {vflag}\n  s_sub_u32 {sCNT}, {sCNT}, 1\n  s_cbranch_scc0 {L}"
    P.label(OK)


def poll_nonce(P, cfg, vtmp):
    L, OK = newlabel("np"), newlabel("nok")
    P(f"s_mov_b32 {sCNT}, {cfg.spin}")
    P(f"v_readfirstlane_b32 {sNONCE}, {vtmp}")
    P.label(L)
    P("s_nop 0")
    P(f"s_cmp_lg_u32 {sNONCE}, 0")
    P(f"s_cbranch_scc1 {OK}")
    P("s_sleep 1")
    P.ins.append(Ins(".raw"))
    P.ins[-1].text = f"  buffer_load_dword {vtmp}, off, {SDBG}, 0 sc1\n  s_waitcnt vmcnt(0)\n  v_readfirstlane_b32 {sNONCE}, {vtmp}\n  s_sub_u32 {sCNT}, {sCNT}, 1\n  s_cbranch_scc0 {L}"
    P.label(OK)
    P("s_nop 1")


def poll_lds(P, cfg, vtmp4, vaddr, off):
    L, OK = newlabel("lp"), newlabel("lok")
    P(f"s_mov_b32 {sCNT}, {cfg.spin}")
    i = P("s_waitcnt lgkmcnt(0)")
    P.label(L)
    P.ins.append(Ins(".raw"))
    P.ins[-1].text = (f"  ds_read_b128 {v(vtmp4,4)}, {vaddr} offset:{off}\n  s_waitcnt lgkmcnt(0)\n"
                      f"  v_and_b32 {v(vtmp4)}, {v(vtmp4)}, {v(vtmp4+1)}\n  v_and_b32 {v(vtmp4+2)}, {v(vtmp4+2)}, {v(vtmp4+3)}\n"
                      f"  v_and_b32 {v(vtmp4)}, {v(vtmp4)}, {v(vtmp4+2)}\n  s_nop 0\n  v_readfirstlane_b32 {sT5}, {v(vtmp4)}\n  s_nop 1\n"
                      f"  s_cmp_lg_u32 {sT5}, 0\n  s_cbranch_scc1 {OK}\n  s_sleep 1\n  s_sub_u32 {sCNT}, {sCNT}, 1\n  s_cbranch_scc0 {L}")
    P.label(OK)


def weave(groups, tasks, cap):
    q = []
    for rel, dl, lst in tasks:
        for i in lst:
            q.append((i, rel, dl))
    out = []
    n = len(groups)
    for gi, grp in enumerate(groups):
        while q and q[0][2] <= gi:
            out.append(q.pop(0)[0])
        out.extend(grp)
        extra = sum(1 for i in grp[1:] if i.kind in ("sopp", "wait", "salu"))
        budget = max(cap - extra, 1)
        acc = 0
        for (i, rel, dl) in q:
            acc += i.cost
            if dl <= n and dl > gi:
                budget = max(budget, math.ceil(acc / (dl - gi)))
        valu_done = False
        while q and q[0][1] <= gi and budget > 0:
            i = q[0][0]
            if i.kind in ("ds", "vmem") and valu_done:
                break
            if i.cost > budget and valu_done:
                break
            q.pop(0)
            out.append(i)
            budget -= i.cost
            if i.kind == "valu":
                valu_done = True
    rest = [x[0] for x in q]
    return out, rest


X0 = 128
def XR(t): return X0 + 4 * t
SET = [32 + 16 * i for i in range(6)]
FR0 = 12
TA = [4, 5, 6, 7]
vL16, vRS, vMR = 1, 2, 3

def p1_common(P):
    P("v_lshrrev_b32 v8, 5, v0")
    P("v_lshlrev_b32 v8, 10, v8")
    P("v_bfe_u32 v9, v0, 2, 2")
    P("v_lshl_add_u32 v8, v9, 7, v8")
    P("v_bfe_u32 v9, v0, 3, 1")
    P("v_lshl_add_u32 v8, v9, 6, v8")
    P("v_and_b32 v9, 3, v0")
    P("v_lshl_add_u32 v8, v9, 3, v8")
    P("v_bfe_u32 v9, v0, 4, 1")


def p1_taddr(P, kind):
    if kind == "pair":
        P(f"v_lshlrev_b32 v{TA[0]}, 5, v9")
        P(f"v_xor_b32 v{TA[0]}, v{TA[0]}, v8")
        P(f"v_xor_b32 v{TA[1]}, 64, v{TA[0]}")
        P(f"v_xor_b32 v{TA[2]}, {8192+32}, v{TA[0]}")
        P(f"v_xor_b32 v{TA[3]}, {8192+96}, v{TA[0]}")
    else:
        P(f"v_mul_u32_u24 v{TA[0]}, {8192+32}, v9")
        P(f"v_xor_b32 v{TA[0]}, v{TA[0]}, v8")
        for t in range(1, 4):
            P(f"v_xor_b32 v{TA[t]}, {32*t}, v{TA[0]}")


TG1 = [2, 3]
sTM = "s89"
def tag_setup(P, T, smask, consumer=False):
    P(f"s_mul_i32 {sT0}, {sNONCE}, 0x9e3779b1")
    P(f"s_lshr_b32 {sT5}, {sT0}, 15")
    P(f"s_xor_b32 {sT0}, {sT0}, {sT5}")
    P(f"s_and_b32 {sT0}, {sT0}, 0xfffdfffd")
    P(f"s_or_b32 {sT0}, {sT0}, 0x00010001")
    P(f"s_mov_b32 {smask}, 0x00010001")
    P(f"v_and_b32 v{T[0]}, 7, v0")
    P(f"v_lshlrev_b32 v{T[0]}, 2, v{T[0]}")
    P(f"v_bfe_u32 v{T[0]}, {sT0}, v{T[0]}, 4")
    P(f"v_lshl_or_b32 v{T[0]}, v{T[0]}, 15, v{T[0]}")
    P(f"v_lshrrev_b32 v{T[1]}, 2, v{T[0]}")
    if consumer:
        P(f"v_and_b32 v{T[0]}, {smask}, v{T[0]}")
        P(f"v_and_b32 v{T[1]}, {smask}, v{T[1]}")
        P(f"v_xor_b32 v{T[1]}, {smask}, v{T[1]}")


def sigmoid_task(S, ks_sreg, ks_imm, tok):
    P = Prog()
    for i in range(8): P(f"v_mul_f32 v{S+i}, {sC1}, v{S+i}")
    for i in range(8): P(f"v_exp_f32 v{S+i}, v{S+i}")
    for i in range(8): P(f"v_add_f32 v{S+i}, 1.0, v{S+i}")
    for i in range(8): P(f"v_rcp_f32 v{S+i}, v{S+i}")
    for i in range(8): P(f"v_mul_f32 v{S+8+i}, v{S+8+i}, v{S+i}")
    for k in range(4): P(f"v_cvt_pk_bf16_f32 v{S+k}, v{S+8+2*k}, v{S+9+2*k}")
    for k in range(2): P(f"v_bfi_b32 v{S+2*k}, {sTM}, v{TG1[k]}, v{S+2*k}")
    P(f"buffer_store_dwordx4 {v(S,4)}, v{vL16}, {SWS}, {ks_sreg} offen offset:{ks_imm} sc1", tok=tok)
    return P.ins


def flag_task(toks, val):
    P = Prog()
    P(f"s_add_u32 {sT0}, {sNONCE}, {val}")
    P(f"v_mov_b32 v11, {sT0}")
    P(f"v_lshlrev_b32 v10, 26, v0")
    P.wait(*toks)
    P(f"buffer_store_dword v11, v10, {SWS}, s88 offen sc1")
    return P.ins


def softmax_core(P, Pr, T, tmp, sC2K=sC2K):
    mx, mn, s1, s2 = tmp if isinstance(tmp, (list, tuple)) else (tmp, tmp + 1, tmp + 2, tmp + 3)
    P(f"v_max3_f32 v{mx}, v{Pr}, v{Pr+1}, v{Pr+2}")
    P(f"v_min3_f32 v{mn}, v{Pr}, v{Pr+1}, v{Pr+2}")
    for k in range(3, 15, 2):
        P(f"v_max3_f32 v{mx}, v{mx}, v{Pr+k}, v{Pr+k+1}")
        P(f"v_min3_f32 v{mn}, v{mn}, v{Pr+k}, v{Pr+k+1}")
    P(f"v_max_f32 v{mx}, v{mx}, v{Pr+15}")
    P(f"v_min_f32 v{mn}, v{mn}, v{Pr+15}")
    P(f"v_mul_f32 v{mx}, {sC2K}, v{mx}")
    P(f"v_mul_f32 v{mn}, {sC2K}, v{mn}")
    for k in range(16):
        P(f"v_fma_f32 v{T+k}, v{Pr+k}, {sC2K}, -v{mx}")
        P(f"v_fma_f32 v{Pr+k}, -v{Pr+k}, {sC2K}, v{mn}")
    for k in range(16):
        P(f"v_exp_f32 v{T+k}, v{T+k}")
        P(f"v_exp_f32 v{Pr+k}, v{Pr+k}")
    P(f"v_add_f32 v{s1}, v{T}, v{T+1}")
    P(f"v_add_f32 v{s2}, v{Pr}, v{Pr+1}")
    for k in range(2, 16):
        P(f"v_add_f32 v{s1}, v{s1}, v{T+k}")
        P(f"v_add_f32 v{s2}, v{s2}, v{Pr+k}")


def softmax_pk(P, Pr, T, tm, sc):
    mx, mn = tm, tm + 1
    P(f"v_max3_f32 v{mx}, v{Pr}, v{Pr+1}, v{Pr+2}")
    P(f"v_min3_f32 v{mn}, v{Pr}, v{Pr+1}, v{Pr+2}")
    for k in range(3, 15, 2):
        P(f"v_max3_f32 v{mx}, v{mx}, v{Pr+k}, v{Pr+k+1}")
        P(f"v_min3_f32 v{mn}, v{mn}, v{Pr+k}, v{Pr+k+1}")
    P(f"v_max_f32 v{mx}, v{mx}, v{Pr+15}")
    P(f"v_min_f32 v{mn}, v{mn}, v{Pr+15}")
    P(f"v_pk_mul_f32 {v(mx,2)}, {v(mx,2)}, {sc} op_sel_hi:[1,0]")
    for k in range(0, 16, 2):
        P(f"v_pk_fma_f32 {v(T+k,2)}, {v(Pr+k,2)}, {sc}, {v(mx,2)} op_sel_hi:[1,0,0] neg_lo:[0,0,1] neg_hi:[0,0,1]")
        P(f"v_pk_fma_f32 {v(Pr+k,2)}, {v(Pr+k,2)}, {sc}, {v(mx,2)} op_sel:[0,0,1] op_sel_hi:[1,0,1] neg_lo:[1,0,0] neg_hi:[1,0,0]")
    for k in range(16):
        P(f"v_exp_f32 v{T+k}, v{T+k}")
        P(f"v_exp_f32 v{Pr+k}, v{Pr+k}")
    a, b = tm + 2, tm + 4
    P(f"v_pk_add_f32 {v(a,2)}, {v(T,2)}, {v(T+2,2)}")
    P(f"v_pk_add_f32 {v(b,2)}, {v(Pr,2)}, {v(Pr+2,2)}")
    for k in range(4, 16, 2):
        P(f"v_pk_add_f32 {v(a,2)}, {v(a,2)}, {v(T+k,2)}")
        P(f"v_pk_add_f32 {v(b,2)}, {v(b,2)}, {v(Pr+k,2)}")
    P(f"v_add_f32 v{mx}, v{a}, v{a+1}")
    P(f"v_add_f32 v{mn}, v{b}, v{b+1}")
    P(f"v_rcp_f32 v{mx}, v{mx}")
    P(f"v_rcp_f32 v{mn}, v{mn}")
    for k in range(0, 16, 2):
        P(f"v_pk_mul_f32 {v(T+k,2)}, {v(T+k,2)}, {v(mx,2)} op_sel_hi:[1,0]")
    for k in range(8):
        P(f"v_cvt_pk_bf16_f32 v{T+k}, v{T+2*k}, v{T+2*k+1}")
    for k in range(0, 16, 2):
        P(f"v_pk_mul_f32 {v(Pr+k,2)}, {v(Pr+k,2)}, {v(mx,2)} op_sel:[0,1] op_sel_hi:[1,1]")
    for k in range(8):
        P(f"v_cvt_pk_bf16_f32 v{Pr+k}, v{Pr+2*k}, v{Pr+2*k+1}")


def wphi_frags(P, lane, F, A, t0, t1):
    P(f"v_and_b32 v{t0}, 1, v{lane}")
    P(f"v_lshlrev_b32 v{t0}, 9, v{t0}")
    P(f"v_lshrrev_b32 v{t1}, 5, v{lane}")
    P(f"v_lshl_add_u32 v{t0}, v{t1}, 7, v{t0}")
    P(f"v_bfe_u32 v{t1}, v{lane}, 2, 2")
    P(f"v_lshl_add_u32 v{t0}, v{t1}, 5, v{t0}")
    P(f"v_bfe_u32 v{t1}, v{lane}, 4, 1")
    P(f"v_lshl_add_u32 v{t0}, v{t1}, 4, v{t0}")
    P(f"v_bfe_u32 v{t1}, v{lane}, 1, 1")
    P(f"v_lshl_add_u32 v{t0}, v{t1}, 3, v{t0}")
    P(f"v_add_u32 v{t0}, {WPHI}, v{t0}")
    for p in range(2):
        P(f"ds_read_b64_tr_b16 {v(F+4*p,2)}, v{t0} offset:{p*1024}")
        P(f"ds_read_b64_tr_b16 {v(F+4*p+2,2)}, v{t0} offset:{p*1024+256}")
    P(f"s_mov_b32 s82, 0x0f0f0f0f")
    P(f"s_mov_b32 s83, 0x0f0f0f0f")
    for p in range(2):
        for k in range(4):
            P(f"v_cndmask_b32 v{A+8*p+k}, 0, v{F+4*p+k}, {sMASK}")
            P(f"v_cndmask_b32 v{A+8*p+4+k}, v{F+4*p+k}, 0, {sMASK}")


def gen(cfg):
    segs = []
    log = []
    LA = cfg.LA

    P = Prog()
    P("s_cmp_ge_u32 s2, 256")
    P("s_cbranch_scc1 L_end")
    P("s_load_dwordx16 s[4:19], s[0:1], 0")
    P("s_load_dwordx4 s[20:23], s[0:1], 64")
    P("s_load_dwordx2 s[24:25], s[0:1], 80")
    if cfg.stamps:
        P("s_memrealtime s[98:99]" if cfg.rt else "s_memtime s[98:99]")
    if cfg.stamps or cfg.padT:
        P("s_memrealtime s[96:97]")
    if cfg.codepf:
        P("s_getpc_b64 s[100:101]")
        P.label("L_pcref")
        P(f"s_lshr_b32 {sT0}, s2, 3")
        P(f"s_lshl_b32 {sT0}, {sT0}, 12")
        P(f"s_min_u32 {sT0}, {sT0}, L_codeend-L_pcref-4096")
        P(f"s_add_u32 s100, s100, {sT0}")
        P("s_addc_u32 s101, s101, 0")
        P("v_lshlrev_b32 v1, 3, v0")
        P("global_load_dword v252, v1, s[100:101]")
    P("v_lshrrev_b32 v1, 6, v0")
    P("v_and_b32 v0, 63, v0")
    P(f"v_readfirstlane_b32 {sT4}, v1")
    P(f"s_and_b32 {sT0}, s2, 7")
    P(f"s_lshr_b32 {sT1}, s2, 3")
    if cfg.map84:
        P(f"s_and_b32 {sRB}, {sT0}, 1")
        P(f"s_lshl_b32 {sRB}, {sRB}, 3")
        P(f"s_lshr_b32 {sT2}, {sT1}, 2")
        P(f"s_add_u32 {sRB}, {sRB}, {sT2}")
        P(f"s_bfe_u32 {sTYPE}, {sT1}, 0x10001")
        P(f"s_and_b32 {sJ}, {sT0}, 6")
        P(f"s_and_b32 {sT2}, {sT1}, 1")
        P(f"s_add_u32 {sJ}, {sJ}, {sT2}")
        P(f"s_and_b32 {sT2}, {sT1}, 3")
        P(f"s_lshl_b32 {sT2}, {sT2}, 1")
        P(f"s_add_u32 {sROT}, {sRB}, {sT2}")
        P(f"s_and_b32 {sROT}, {sROT}, 7")
    else:
        P(f"s_and_b32 {sRB}, {sT0}, 3")
        P(f"s_lshl_b32 {sRB}, {sRB}, 2")
        P(f"s_lshr_b32 {sT2}, {sT1}, 3")
        P(f"s_add_u32 {sRB}, {sRB}, {sT2}")
        P(f"s_bfe_u32 {sTYPE}, {sT1}, 0x10002")
        P(f"s_and_b32 {sJ}, {sT0}, 4")
        P(f"s_and_b32 {sT3}, {sT1}, 3")
        P(f"s_add_u32 {sJ}, {sJ}, {sT3}")
        P(f"s_lshl_b32 {sT2}, {sT2}, 1")
        P(f"s_add_u32 {sROT}, {sT1}, {sT2}")
        P(f"s_and_b32 {sROT}, {sROT}, 7")
    P(f"s_lshl_b32 {sR2}, {sT0}, 2")
    P(f"s_lshr_b32 {sT2}, {sT1}, 3")
    P(f"s_add_u32 {sR2}, {sR2}, {sT2}")
    P(f"s_and_b32 {sC2}, {sT1}, 7")
    P(f"s_and_b32 {sW}, {sT4}, 3")
    P(f"v_lshlrev_b32 v{vL16}, 4, v0")
    P(f"s_mov_b32 {sHI}, 0xffff0000")
    P(f"s_cmp_ge_u32 {sT4}, 4")
    P("s_cbranch_scc1 L_p2")
    pro, st0 = finalize(P, None, log)
    segs.append(pro)

    stamp_regs = [f"s{i}" for i in range(40, 56)]
    P = Prog()
    ST = Stamps(cfg, stamp_regs)
    if cfg.stamps:
        ST.regs = ["s98"] + stamp_regs; ST.n = 1; ST.names = ["start"]
    NXB = 7
    P("v_lshrrev_b32 v36, 3, v0")
    P("v_lshlrev_b32 v36, 10, v36")
    P("v_lshrrev_b32 v37, 4, v0")
    P("v_and_b32 v38, 7, v0")
    P("v_xor_b32 v38, v38, v37")
    P("v_lshl_add_u32 v32, v38, 4, v36")
    P("v_xor_b32 v33, 64, v32")
    P(f"v_add_u32 v33, {8*1024-1024}, v33")
    P(f"v_add_u32 v34, {16*1024-2048}, v32")
    P(f"v_add_u32 v35, {16*1024-2048}, v33")
    P(f"s_lshl_b32 {sT0}, {sRB}, 2")
    P(f"s_add_u32 {sT0}, {sT0}, {sW}")
    P(f"s_lshl_b32 {sT1}, {sT0}, 15")
    P(f"s_mul_i32 {sT2}, {sW}, {NXB*4096}")
    P(f"s_add_u32 {sT2}, {sT2}, {XB0}")
    P("s_waitcnt lgkmcnt(0)")
    srd(P, SX, 4, 2048 * 1024)
    def xdma(b):
        P(f"s_add_u32 {sT3}, {sROT}, {b}")
        P(f"s_and_b32 {sT3}, {sT3}, 7")
        P(f"s_lshl_b32 {sT3}, {sT3}, 7")
        P(f"s_add_u32 m0, {sT2}, {(b % NXB) * 4096}")
        P(f"s_add_u32 {sT3}, {sT3}, {sT1}")
        for q in range(4):
            P(f"buffer_load_dwordx4 v{32+q}, {SX}, {sT3} offen offset:{q*1024}{NT[cfg.ntx]} lds", tok=f"x{b}")
    for b in range(3): xdma(b)
    srd(P, SWS, 24, WS_BYTES)
    srd(P, SDBG, 22, 256)
    P(f"s_mul_i32 s27, {sT0}, {144*1024}")
    P(f"s_lshl_b32 {sT4}, {sT0}, 5")
    P(f"s_lshl_b32 {sT5}, {sTYPE}, 3")
    P(f"s_add_u32 {sT4}, {sT4}, {sT5}")
    P(f"s_add_u32 {sT4}, {sT4}, {sJ}")
    P(f"s_lshl_b32 {sT4}, {sT4}, 7")
    P(f"s_add_u32 s88, {sT4}, {FLAGH_OFF}")
    P(f"s_mov_b32 {sC1}, {NLOG2E:#x}")
    P(f"s_mov_b32 {sC2K}, {LOG2E:#x}")
    P("v_and_b32 v36, 31, v0")
    P("v_lshlrev_b32 v37, 7, v36")
    P("v_bfe_u32 v38, v0, 1, 3")
    P("v_lshrrev_b32 v39, 5, v0")
    P("v_xor_b32 v38, v38, v39")
    P("v_lshl_add_u32 v37, v38, 4, v37")
    P(f"v_add_u32 v40, {sT2}, v37")
    for t in range(1, 4):
        P(f"v_xor_b32 v{40+t}, {32*t}, v40")
    p1_common(P)
    p1_taddr(P, "pair")
    P("v_mov_b32 v44, 0x3f803f80")
    for k in range(4): P(f"v_mov_b32 v{48+k}, 0")
    def dots(bb):
        for r in range(16):
            reg = XR(4 * bb) + r
            P(f"v_dot2c_f32_bf16 v{48+2*(r&1)}, v{reg}, v44")
            P(f"v_dot2c_f32_bf16 v{49+2*(r&1)}, v{reg}, v{reg}")
    NC = cfg.nc
    def ln_task(t):
        tb = 96 + 8 * (t & 3)
        U, F, C = Prog(), Prog(), Prog()
        for d in range(4):
            if t // 4 >= NC:
                U(f"v_lshlrev_b32 v{tb+2*d}, 16, v{XR(t)+d}")
                U(f"v_and_b32 v{tb+2*d+1}, {sHI}, v{XR(t)+d}")
                F(f"v_fma_f32 v{tb+2*d}, v{tb+2*d}, v{vRS}, -v{vMR}")
                F(f"v_fma_f32 v{tb+2*d+1}, v{tb+2*d+1}, v{vRS}, -v{vMR}")
            else:
                F(f"v_fma_mix_f32 v{tb+2*d}, v{XR(t)+d}, v{vRS}, -v{vMR} op_sel_hi:[1,0,0]")
                F(f"v_fma_mix_f32 v{tb+2*d+1}, v{XR(t)+d}, v{vRS}, -v{vMR} op_sel:[1,0,0] op_sel_hi:[1,0,0]")
            C(f"v_cvt_pk_bf16_f32 v{XR(t)+d}, v{tb+2*d}, v{tb+2*d+1}")
        return U.ins, F.ins, C.ins
    def tof16(bb):
        for r0 in range(0, 16, 4):
            for r in range(r0, r0 + 4):
                reg = XR(4 * bb) + r
                P(f"v_lshlrev_b32 v{56+2*(r&3)}, 16, v{reg}")
                P(f"v_and_b32 v{57+2*(r&3)}, {sHI}, v{reg}")
            for r in range(r0, r0 + 4):
                P(f"v_cvt_pk_f16_f32 v{XR(4*bb)+r}, v{56+2*(r&3)}, v{57+2*(r&3)}")
    for b in range(8):
        if b + 3 < 8:
            if b + 3 >= NXB: P.wait(f"xr{b+3-NXB}")
            xdma(b + 3)
        P.wait(f"x{b}")
        for t in range(4):
            P(f"ds_read_b128 {v(XR(4*b+t),4)}, v{40+t} offset:{(b%NXB)*4096}", tok=f"xr{b}")
        if b >= 1:
            dots(b - 1)
            if b - 1 < NC: tof16(b - 1)
        if b == 2 and NC == 0:
            for t in range(3): P.extend(ln_task(t)[0])
    P.wait("xr7")
    P(f"s_mov_b32 s84, {sT1}")
    ST(P, "xdone")
    P("s_barrier")
    P(f"s_cmp_eq_u32 {sTYPE}, 1")
    P("s_cbranch_scc1 L_p1t2")
    p1a, stA = finalize(P, st0, log)
    segs.append(p1a)
    fb_text = []
    def stats_fin(P_):
        nonlocal P
        P = P_
        P(f"buffer_load_dword v11, off, {SDBG}, 0 sc1")
        dots(7)
        P("v_pk_add_f32 v[48:49], v[48:49], v[50:51]")
        P("v_mov_b32 v50, v48")
        P("v_mov_b32 v51, v49")
        P("v_permlane32_swap_b32 v48, v50")
        P("v_permlane32_swap_b32 v49, v51")
        P("v_pk_add_f32 v[48:49], v[48:49], v[50:51]")
        if NC:
            P("v_mov_b32 v52, v49")
            P("v_cmp_nge_f32 vcc, 0x4f000000, v49")
        P("v_mul_f32 v48, 0x3b000000, v48")
        P("v_mul_f32 v49, 0x3b000000, v49")
        P("v_fma_f32 v49, -v48, v48, v49")
        P("v_max_f32 v49, 0, v49")
        P("v_add_f32 v49, 0x3727c5ac, v49")
        P(f"v_rsq_f32 v{vRS}, v49")
        P(f"v_mul_f32 v{vMR}, v48, v{vRS}")
        if NC:
            Lf, Lr = newlabel("fb"), newlabel("fbr")
            P("s_cmp_lg_u64 vcc, 0")
            P(f"s_cbranch_scc1 {Lf}")
            P.label(Lr)
            T = Prog()
            T.label(Lf)
            T("v_frexp_exp_i32_f32 v53, v52")
            T("v_add_u32 v53, 1, v53")
            T("v_ashrrev_i32 v53, 1, v53")
            T("v_subrev_u32 v53, 14, v53")
            T("v_max_i32 v53, 0, v53")
            T("v_sub_u32 v54, 0, v53")
            T(f"v_ldexp_f32 v{vRS}, v{vRS}, v53")
            T("v_and_b32 v55, 31, v0")
            T("v_lshlrev_b32 v55, 10, v55")
            T("v_lshrrev_b32 v56, 5, v0")
            T("v_lshl_add_u32 v55, v56, 4, v55")
            for b in range(8):
                T(f"s_add_u32 {sT3}, {sROT}, {b}")
                T(f"s_and_b32 {sT3}, {sT3}, 7")
                T(f"s_lshl_b32 {sT3}, {sT3}, 7")
                T(f"s_add_u32 {sT3}, {sT3}, s84")
                for t in range(4):
                    T(f"buffer_load_dwordx4 {v(XR(4*b+t),4)}, v55, {SX}, {sT3} offen offset:{32*t}")
            T("s_waitcnt vmcnt(0)")
            for r in range(128):
                reg = X0 + r
                T(f"v_lshlrev_b32 v56, 16, v{reg}")
                T(f"v_and_b32 v57, {sHI}, v{reg}")
                T("v_ldexp_f32 v56, v56, v54")
                T("v_ldexp_f32 v57, v57, v54")
                T(f"{'v_cvt_pk_f16_f32' if r // 16 < NC else 'v_cvt_pk_bf16_f32'} v{reg}, v56, v57")
            T(f"s_branch {Lr}")
            fb_text.append(text_of(T.ins))
        LN = [ln_task(t) for t in range(32)]
        P.extend(LN[0][1]); P.extend(LN[0][2])
        P.extend(LN[1][1])
        return LN

    sched = []
    NM = 320
    last_read_of_stage = {}
    first_use = {}
    last_use = {}
    def add_pass4(pid, stage0, sets, skew, stag):
        order = []
        if skew == 2:
            for tp in (0, 2):
                for c in (0, 1):
                    for tl in (tp, tp + 1):
                        for kk in range(4): order.append((c, kk, tl))
        elif skew == 1:
            for tl in range(4):
                for kk in range(4): order.append((0, kk, tl))
        for c in range(skew, 8 - abs(stag)):
            for kk in range(4):
                for tl in range(4): order.append((c, kk, tl))
        if stag:
            for tl in ((0, 1, 2, 3) if stag > 0 else (1, 0, 2, 3)):
                for c in range(8 - abs(stag), 8):
                    for kk in range(4): order.append((c, kk, tl))
        for (c, kk, tl) in order:
            sched.append((stage0 + c, kk * 2048, tl, sets[tl], 4 * c + kk, c == 0 and kk == 0, pid))
    def add_pass2(pid, stage0, sets, stag=0):
        if stag == 2:
            for cc in range(2):
                for (hh, kk, tl) in [(hh, kk, tl) for hh in range(2) for kk in range(4) for tl in range(2)]:
                    sched.append((stage0 + cc, kk * 2048, 2 * hh + tl, sets[tl], 8 * cc + 4 * hh + kk, cc == 0 and hh == 0 and kk == 0, pid))
            for tl in range(2):
                for cc in (2, 3):
                    for hh in range(2):
                        for kk in range(4):
                            sched.append((stage0 + cc, kk * 2048, 2 * hh + tl, sets[tl], 8 * cc + 4 * hh + kk, False, pid))
            return
        for cc in range(4):
            o = [(hh, kk, tl) for hh in range(2) for kk in range(4) for tl in range(2)]
            if stag and cc == 3:
                o = [(hh, kk, tl) for tl in range(2) for hh in range(2) for kk in range(4)]
            for (hh, kk, tl) in o:
                sched.append((stage0 + cc, kk * 2048, 2 * hh + tl, sets[tl], 8 * cc + 4 * hh + kk, cc == 0 and hh == 0 and kk == 0, pid))
    S0, S1, S2_, S3, S4, S5 = SET
    def build_sched(typ):
        del sched[:]
        if typ == 0:
            add_pass4(0, 0, [S0, S1, S2_, S3], 0, -1)
            add_pass4(1, 8, [S0, S1, S2_, S3], 0, 1)
            add_pass2(2, 16, [S4, S5], cfg.stag1)
        else:
            add_pass2(0, 0, [S0, S1])
            add_pass4(1, 4, [S2_, S3, S4, S5], 0, 1)
            add_pass4(2, 12, [S0, S1, S2_, S3], 2, cfg.stag2)
        assert len(sched) == NM
        first_use.clear(); last_use.clear()
        for n, e in enumerate(sched):
            last_read_of_stage[e[0]] = n
            first_use.setdefault((e[6], e[3]), n)
            last_use[(e[6], e[3])] = n

    def reads(n):
        stage, off, tl, S, xt, first, pid = sched[n]
        fb = FR0 + 4 * (n % LA)
        o = ((stage % 4) if stage < 18 else stage - 16) * SLOT + off
        return [Ins(f"ds_read_b64_tr_b16 {v(fb,2)}, v{TA[tl]} offset:{o}", tok=f"fr{n}a"),
                Ins(f"ds_read_b64_tr_b16 {v(fb+2,2)}, v{TA[tl]} offset:{o+512}", tok=f"fr{n}")]

    passed = [0]
    def group(n, pre_reads=None, lim=NM):
        stage, off, tl, S, xt, first, pid = sched[n]
        fb = FR0 + 4 * (n % LA)
        g = []
        c = "0" if first else v(S, 16)
        g.append(Ins(f"v_mfma_f32_32x32x16_bf16 {v(S,16)}, {v(fb,4)}, {v(XR(xt),4)}, {c}"))
        m = n + LA
        if m < lim:
            ns = sched[m][0]
            if ns > passed[0]:
                assert ns == passed[0] + 1
                if ns >= 2:
                    g.append(Ins("WAIT", waitfor=[f"fr{last_read_of_stage[ns-2]}"]))
                if pre_reads and ns in pre_reads:
                    g.extend(pre_reads[ns])
                if ns < 18:
                    g.append(Ins("s_barrier"))
                else:
                    g.append(Ins(f"ds_write_b32 v8, v9 offset:{16*(ns-18)}"))
                    if ns == 18:
                        for t in range(4): g.append(Ins(f"v_add_u32 v{TA[t]}, 0x10000, v{TA[t]}"))
                passed[0] = ns
            g.extend(reads(m))
        if n % 2 == 1 and n + 2 < lim:
            g.append(Ins("WAIT", waitfor=[f"fr{n+2}"]))
        return g
    BIG = 10 ** 6

    def p1_rest(typ):
        P = Prog()
        S2 = ST.fork()
        passed[0] = 0
        build_sched(typ)
        def run(lo, hi, tasks, pre, cap, lim=NM):
            groups = [group(n, pre, lim) for n in range(lo, hi)]
            t2 = [(max(r - lo, 0), d - lo, l) for (r, d, l) in tasks]
            body, rest = weave(groups, t2, cap)
            P.extend(body)
            return rest
        def progsetup():
            P(f"s_lshl_b32 {sT4}, {sW}, 2")
            P(f"s_add_u32 {sT4}, {sT4}, {LFLAG}")
            P(f"v_mov_b32 v8, {sT4}")
            P(f"v_mov_b32 v9, 1")
        def ringdone():
            P(f"ds_write_b32 v8, v9 offset:32")
        def ln_pass(LN, ng, nend, lim):
            fill = []
            for t in range(32):
                for g in range(ng):
                    a, b = 4 // ng, 8 // ng
                    f = []
                    if t + 1 < 32: f += LN[t + 1][2][a * g:a * g + a]
                    if t + 2 < 32: f += LN[t + 2][1][b * g:b * g + b]
                    if t + 3 < 32: f += LN[t + 3][0][b * g:b * g + b]
                    fill.append(f)
            for n in range(nend):
                P.extend(group(n, None, lim))
                P.extend(fill[n])
            for f in fill[nend:]: P.extend(f)
        if typ == 1: P.label("L_p1t2")
        for n in range(LA): P.extend(reads(n))
        LN = stats_fin(P)
        if typ == 1:
            P(f"s_lshl_b32 {sT1}, {sJ}, 13")
            P(f"s_add_u32 {sT1}, {sT1}, s27")
            P(f"s_add_u32 {sT2}, {sT1}, 4096")
            P(f"s_lshl_b32 {sT4}, {sW}, 12")
            P(f"s_add_u32 {sT4}, {sT4}, {7*SLOT}")
            ln_pass(LN, 2, 64 - LA, NM)
            poll_nonce(P, cfg, "v11")
            S2(P, "passQ")
            p1_taddr(P, "gu")
            P(f"v_add_u32 v10, {sT4}, v{vL16}")
            progsetup()
            pre = {}; tasks = []
            Q = Prog()
            for i, S in enumerate((S0, S1)):
                for k in range(8): Q(f"v_cvt_pk_bf16_f32 v{S+k}, v{S+2*k}, v{S+2*k+1}")
                Q(f"ds_write_b128 v10, {v(S,4)} offset:{2048*i}")
                Q(f"ds_write_b128 v10, {v(S+4,4)} offset:{2048*i+1024}", tok=f"evacQ{i}")
            tasks.append((65, 16 * cfg.qb - LA - 2, Q.ins))
            pre[cfg.qb] = [Ins("WAIT", waitfor=["evacQ1"])]
            Q = Prog(); tag_setup(Q, TG1, sTM)
            tasks.append((90, BIG, Q.ins))
            for i, S in enumerate((S2_, S3, S4, S5)):
                dl = first_use.get((2, S), BIG)
                tasks.append((last_use[(1, S)] + 2, dl, sigmoid_task(S, sT1, 1024 * i, f"hA{i}")))
            for i, S in enumerate((S0, S1, S2_, S3)):
                tasks.append((last_use[(2, S)] + 2, BIG, sigmoid_task(S, sT2, 1024 * i, f"hB{i}")))
            rest = run(64 - LA, NM, tasks, pre, cfg.cap2)
            ringdone()
            S2(P, "gemm")
            P.extend(rest)
        else:
            P(f"s_mul_i32 {sT1}, {sJ}, 6144")
            P(f"s_add_u32 {sT1}, {sT1}, s27")
            P(f"s_add_u32 {sT1}, {sT1}, {64*1024}")
            P(f"s_and_b32 {sT3}, {sJ}, 1")
            P(f"s_lshl_b32 {sT2}, {sT3}, 11")
            P(f"s_add_u32 {sT2}, {sT2}, {sT1}")
            P(f"s_xor_b32 {sT3}, {sT3}, 1")
            P(f"s_lshl_b32 {sT3}, {sT3}, 12")
            P(f"s_add_u32 {sT3}, {sT3}, {sT1}")
            P(f"s_lshl_b32 {sT4}, {sW}, 11")
            P(f"s_add_u32 {sT4}, {sT4}, {PHI}")
            ln_pass(LN, 4, 112, 128)
            poll_nonce(P, cfg, "v11")
            tasks = []
            AD = S5 + 8
            Q = Prog()
            Q(f"v_add_u32 v3, {WF}, v{vL16}")
            Q(f"v_add_u32 v{AD+2}, {sT4}, v{vL16}")
            Q(f"ds_read_b128 {v(S5,4)}, v3")
            Q(f"ds_read_b128 {v(S5+4,4)}, v3 offset:1024")
            Q(f"v_and_b32 v2, 31, v0")
            Q(f"v_lshlrev_b32 v2, 6, v2")
            Q(f"v_bfe_u32 v11, v0, 1, 2")
            Q(f"v_lshl_add_u32 v2, v11, 4, v2")
            Q(f"v_add_u32 v2, {sT4}, v2")
            Q(f"v_and_b32 v11, 32, v0")
            Q(f"v_xor_b32 v{AD}, v2, v11")
            Q(f"v_add_u32 v{AD}, {VIMG-PHI}, v{AD}")
            Q(f"v_xor_b32 v{AD+1}, 16, v{AD}")
            Q("v_lshl_add_u32 v2, v11, 8, v2")
            Q("v_xor_b32 v3, 16, v2")
            Q("v_xor_b32 v10, 32, v2")
            Q("v_xor_b32 v11, 48, v2")
            tasks.append((112, BIG, Q.ins))
            Q = Prog()
            for k in range(8): Q(f"v_cvt_pk_bf16_f32 v{S1+k}, v{S1+2*k}, v{S1+2*k+1}")
            Q(f"ds_write_b128 v{AD+2}, {v(S1,4)} offset:{2*8192}")
            Q(f"ds_write_b128 v{AD+2}, {v(S1+4,4)} offset:{3*8192}", tok="evacK")
            tasks.append((last_use[(0, S1)] + 2, BIG, Q.ins))
            Q = Prog()
            for k in range(8): Q(f"v_cvt_pk_bf16_f32 v{S0+k}, v{S0+2*k}, v{S0+2*k+1}")
            tasks.append((last_use[(0, S0)] + 2, BIG, Q.ins))
            Q = Prog()
            for k in range(8): Q(f"v_cvt_pk_bf16_f32 v{S2_+k}, v{S2_+2*k}, v{S2_+2*k+1}")
            tasks.append((last_use[(0, S2_)] + 2, BIG, Q.ins))
            rest = run(112, 128, tasks, {}, cfg.cap + 1, lim=128)
            P.extend(rest)
            P(f"v_mfma_f32_32x32x16_bf16 {v(S4,16)}, {v(S5,4)}, {v(S0,4)}, 0")
            P(f"v_mfma_f32_32x32x16_bf16 {v(S4,16)}, {v(S5+4,4)}, {v(S0+4,4)}, {v(S4,16)}")
            P.wait("evacK")
            P("s_barrier")
            passed[0] = 8
            S2(P, "passKV")
            for k in range(8): P(f"v_cvt_pk_bf16_f32 v{S3+k}, v{S3+2*k}, v{S3+2*k+1}")
            for i, S in enumerate((S2_, S3)):
                P(f"ds_write_b128 v{AD}, {v(S,4)} offset:{i*8192}")
                P(f"ds_write_b128 v{AD+1}, {v(S+4,4)} offset:{i*8192}")
            p1_taddr(P, "gu")
            Q = Prog()
            softmax_pk(Q, S4, S1, AD + 2, "s[26:27]")
            P.extend(Q.ins[:-16])
            P(f"ds_write_b128 v2, {v(S1,4)}")
            P(f"ds_write_b128 v3, {v(S1+4,4)}")
            for n in range(128, 128 + LA): P.extend(reads(n))
            P.extend(Q.ins[-16:])
            P(f"ds_write_b128 v10, {v(S4,4)}")
            P(f"ds_write_b128 v11, {v(S4+4,4)}", tok="phi0")
            if cfg.kvb:
                P.wait("phi0"); P("s_barrier")
            S2(P, "burst")
            pre = {9: [Ins("WAIT", waitfor=["phi0"])]}
            g4 = (S0, S1, S2_, S3)
            E = [(last_use[(1, S)] + 2, BIG, sigmoid_task(S, sT2, 1024 * i, f"hB{i}")) for i, S in enumerate(g4)]
            Q = Prog(); tag_setup(Q, TG1, sTM)
            rest = run(128, 256 - LA, [(150, BIG, Q.ins)] + E[:1], pre, cfg.cap)
            S2(P, "passG")
            p1_taddr(P, "pair")
            progsetup()
            tasks = [(0, BIG, rest)] + E[1:]
            tasks += [(last_use[(2, S)] + 2, BIG, sigmoid_task(S, sT3, 1024 * i, f"hC{i}")) for i, S in enumerate((S4, S5))]
            rest = run(256 - LA, NM, tasks, {}, cfg.capC)
            ringdone()
            S2(P, "gemm")
            P.extend(rest)
        if cfg.hold: P("ds_write_b32 v8, v9 offset:64")
        S2(P, "end")
        S2.dump(P, 0)
        P("s_endpgm")
        r, _ = finalize(P, stA, log)
        return r, S2.names
    p1t1, names_p1t1 = p1_rest(0)
    p1t2, names_p1t2 = p1_rest(1)
    segs.append(p1t1); segs.append(p1t2)

    VW = [2, 3, 4, 5]; VB = [6, 7]; TB = [8, 9]; VA = [10, 11]
    ACC = 16; RING = 80; B2R = 112
    sJ0, sJ1 = "s88", "s89"
    sKK = ["s90", "s91", "s92", "s93"]
    sHB2 = sT5
    p2_stamp_regs = [f"s{i}" for i in list(range(16, 22)) + [25, 60, 61, 62, 63, 36, 37, 38, 39]]

    P = Prog()
    P.label("L_p2")
    ST2 = Stamps(cfg, p2_stamp_regs)
    if cfg.stamps:
        ST2.regs = ["s98"] + p2_stamp_regs; ST2.n = 1; ST2.names = ["start"]
    P("v_lshrrev_b32 v12, 3, v0")
    P("v_and_b32 v13, 7, v0")
    P("v_lshlrev_b32 v13, 4, v13")
    P("v_bfe_u32 v14, v0, 4, 1")
    P("v_lshlrev_b32 v14, 6, v14")
    P("v_xor_b32 v13, v13, v14")
    def wvoff(P, pitch, kind="norm"):
        P(f"s_lshl_b32 {sT0}, {sW}, 4")
        P(f"v_add_u32 v14, {sT0}, v12")
        P(f"v_mul_u32_u24 v14, {pitch}, v14")
        if kind == "norm":
            P(f"v_add_u32 v{VW[0]}, v14, v13")
            P(f"v_xor_b32 v15, 32, v13")
            P(f"v_add_u32 v{VW[2]}, v14, v15")
        else:
            P(f"v_lshrrev_b32 v15, 1, v13")
            P(f"v_and_b32 v15, 32, v15")
            P(f"v_add_u32 v14, v14, v15")
            P(f"v_and_b32 v15, 16, v13")
            P(f"v_add_u32 v{VW[0]}, v14, v15")
            P(f"v_mov_b32 v{VW[2]}, v{VW[0]}")
        P(f"v_add_u32 v{VW[1]}, {8*pitch-1024}, v{VW[0]}")
        P(f"v_add_u32 v{VW[3]}, {8*pitch-1024}, v{VW[2]}")
    P("s_waitcnt lgkmcnt(0)")
    srd(P, SQKV, 6, 512 * 3072)
    srd(P, SX, 4, 2048 * 1024)
    srd(P, SG, 14, 512 * 3584)
    srd(P, SU, 16, 512 * 3584)
    P(f"s_cmp_eq_u32 {sTYPE}, 1")
    P("s_cbranch_scc1 L_p2t2")
    p2pro, st2 = finalize(P, st0, log)
    segs.append(p2pro)

    def p2_rest(typ):
        P = Prog()
        S2 = ST2.fork()
        if typ == 1: P.label("L_p2t2")
        sCL = "s3"
        sM0 = "s27"
        passes = [(0, 8, "KV"), (8, 8, "G4"), (16, 4, "G2")] if typ == 0 else [(0, 4, "Q"), (4, 8, "Ga"), (12, 8, "Gb")]

        def set_pass(kind):
            if kind in ("KV", "Q"):
                wvoff(P, 3072)
                P(f"s_lshl_b32 {sCL}, {sJ}, 7")
                if kind == "KV":
                    P(f"s_add_u32 {sCL}, {sCL}, 1024")
                    P(f"v_add_u32 v{VW[2]}, 1024, v{VW[2]}")
                    P(f"v_add_u32 v{VW[3]}, 1024, v{VW[3]}")
            elif kind == "G4":
                wvoff(P, 3584)
                P(f"s_mul_i32 {sCL}, {sJ}, 192")
                P(f"s_and_b32 {sT0}, {sJ}, 1")
                P(f"s_lshl_b32 {sT0}, {sT0}, 6")
                P(f"s_add_u32 {sCL}, {sCL}, {sT0}")
                P(f"s_add_u32 {sCL}, {sCL}, 2048")
            elif kind == "G2":
                P(f"s_lshl_b32 {sT0}, {sW}, 4")
                P(f"v_add_u32 v14, {sT0}, v12")
                P(f"v_mul_u32_u24 v14, 3584, v14")
                P(f"v_lshrrev_b32 v15, 1, v13")
                P(f"v_and_b32 v15, 32, v15")
                P(f"v_add_u32 v14, v14, v15")
                P(f"v_and_b32 v15, 16, v13")
                P(f"v_add_u32 v14, v14, v15")
                P(f"v_add_u32 v15, {8*3584-1024}, v14")
                P(f"s_mul_i32 s26, {sJ}, 192")
                P(f"s_and_b32 {sT0}, {sJ}, 1")
                P(f"s_xor_b32 {sT0}, {sT0}, 1")
                P(f"s_lshl_b32 {sT0}, {sT0}, 7")
                P(f"s_add_u32 s26, s26, {sT0}")
                P(f"s_add_u32 s26, s26, 2048")
            elif kind == "Ga":
                wvoff(P, 3584)
                P(f"s_lshl_b32 {sCL}, {sJ}, 8")
            elif kind == "Gb":
                P(f"s_add_u32 {sCL}, {sCL}, 128")

        seen_pass = set()
        def wchunk(s, sides=(0, 1)):
            s0, ns, kind = [p for p in passes if p[0] <= s < p[0] + p[1]][0]
            if kind not in seen_pass:
                set_pass(kind); seen_pass.add(kind)
            isqkv = kind in ("KV", "Q")
            pitch = 3072 if isqkv else 3584
            for side in sides:
                b = (s - s0) if ns == 8 else 2 * (s - s0) + side
                if side == 0 or ns == 4:
                    P(f"s_add_u32 {sT0}, {sROT}, {b}")
                    P(f"s_and_b32 {sT0}, {sT0}, 7")
                    P(f"s_mul_i32 {sT0}, {sT0}, {64*pitch}")
                    P(f"s_add_u32 {sT1}, {sT0}, {'s26' if kind == 'G2' else sCL}")
                if s >= cfg.skipw: P(f"s_mov_b32 {sT1}, 0x7f000000")
                P(f"s_add_u32 m0, {sM0}, {((s % 4) if s < 18 else s - 12) * SLOT + side * 8192}")
                if kind == "G2":
                    for mat in range(2):
                        mk = "s[100:101]" if (mat ^ side) == 0 else "s[84:85]"
                        P(f"s_mov_b64 exec, {mk}")
                        for q in range(2):
                            P(f"buffer_load_dwordx4 v{14+q}, {SU if mat else SG}, {sT1} offen offset:{1024*q}{NT[cfg.ntw]} lds", tok=f"w{s}")
                    P("s_mov_b64 exec, -1")
                else:
                    sr = SQKV if isqkv else (SU if side else SG)
                    for q in range(2):
                        P(f"buffer_load_dwordx4 v{VW[2*side+q]}, {sr}, {sT1} offen offset:{1024*q}{NT[cfg.ntw]} lds", tok=f"w{s}")

        P(f"s_lshl_b32 {sM0}, {sW}, 11")
        srd(P, SPHI, 8, 32 * 512)
        srd(P, SWS, 24, WS_BYTES)
        srd(P, SDBG, 22, 256)
        srd(P, SD, 18, 1792 * 1024)
        srd(P, SO, 10, 512 * 1024)
        srd(P, SOUT, 20, 2048 * 1024)
        P(f"s_mov_b32 s24, {LOG2E:#x}")
        P(f"s_lshl_b32 {sJ0}, {sW}, 1")
        P(f"s_add_u32 {sJ0}, {sJ0}, {sC2}")
        P(f"s_add_u32 {sJ1}, {sJ0}, 1")
        P(f"s_and_b32 {sJ0}, {sJ0}, 7")
        P(f"s_and_b32 {sJ1}, {sJ1}, 7")
        P(f"s_lshr_b32 {sT0}, {sC2}, 1")
        P(f"s_add_u32 {sT0}, {sT0}, {sR2}")
        for t in range(4):
            P(f"s_add_u32 {sKK[t]}, {sT0}, {t}")
            P(f"s_and_b32 {sKK[t]}, {sKK[t]}, 3")
        P(f"s_mul_i32 {sHB2}, {sR2}, {2*144*1024}")
        P(f"s_lshl_b32 {sT0}, {sC2}, 7")
        P(f"v_lshl_add_u32 v{VB[0]}, v12, 10, v13")
        P(f"v_add_u32 v{VB[0]}, {sT0}, v{VB[0]}")
        P(f"v_add_u32 v{VB[1]}, {7*1024}, v{VB[0]}")
        P("v_lshrrev_b32 v14, 5, v0")
        P("v_lshlrev_b32 v14, 9, v14")
        P("v_bfe_u32 v15, v0, 2, 2")
        P("v_lshl_add_u32 v14, v15, 7, v14")
        P("v_bfe_u32 v15, v0, 3, 1")
        P("v_lshl_add_u32 v14, v15, 6, v14")
        P("v_bfe_u32 v15, v0, 4, 1")
        P("v_lshl_add_u32 v14, v15, 5, v14")
        P("v_and_b32 v15, 3, v0")
        P("v_lshl_add_u32 v14, v15, 3, v14")
        P(f"s_and_b32 {sT0}, {sW}, 1")
        P(f"s_lshl_b32 {sT0}, {sT0}, 6")
        P(f"v_xor_b32 v14, {sT0}, v14")
        P(f"s_lshl_b32 {sT0}, {sW}, 12")
        P(f"s_add_u32 {sT0}, {sT0}, {4*SLOT}")
        P(f"v_add_u32 v{TB[0]}, {sT0}, v14")
        P(f"v_xor_b32 v{TB[1]}, 64, v{TB[0]}")
        P(f"s_lshr_b32 {sT0}, {sW}, 1")
        P(f"s_mul_i32 {sT1}, {sT0}, {144*1024}")
        P(f"s_sub_u32 {sT2}, {144*1024}, {sT1}")
        P(f"s_add_u32 {sT1}, {sT1}, {sHB2}")
        P(f"s_add_u32 {sT2}, {sT2}, {sHB2}")
        P(f"v_add_u32 v{VA[0]}, {sT1}, v1")
        P(f"v_add_u32 v{VA[1]}, {sT2}, v1")

        def kind_slots(cls, kind, nt=4):
            return [(cls, kind, jsel, t) for jsel in range(2) for t in range(nt)]
        slots = kind_slots(1, "A") + kind_slots(2, "B1") + kind_slots(2, "O") + kind_slots(2, "C1", 2) + kind_slots(2, "B2")
        assert len(slots) == 36
        KB = {(k, j): f"s{4 + 2*i + j}" for i, k in enumerate(("A", "B2", "B1", "C1", "O")) for j in range(2)}
        sKK1 = ["s14", "s15"]
        for j, sj in enumerate((sJ0, sJ1)):
            P(f"s_lshl_b32 {KB['A', j]}, {sj}, 13")
            P(f"s_add_u32 {KB['B2', j]}, {KB['A', j]}, 4096")
            P(f"s_lshl_b32 {KB['O', j]}, {sj}, 12")
            P(f"s_mul_i32 {sT0}, {sj}, 6144")
            P(f"s_and_b32 {sT1}, {sj}, 1")
            P(f"s_lshl_b32 {sT2}, {sT1}, 11")
            P(f"s_add_u32 {KB['B1', j]}, {sT0}, {sT2}")
            P(f"s_add_u32 {KB['B1', j]}, {KB['B1', j]}, {64*1024}")
            P(f"s_lshl_b32 {sT2}, {sT1}, 12")
            P(f"s_sub_u32 {KB['C1', j]}, {sT0}, {sT2}")
            P(f"s_add_u32 {KB['C1', j]}, {KB['C1', j]}, {68*1024}")
        for t in range(4): P(f"s_lshl_b32 {sKK[t]}, {sKK[t]}, 10")
        for t in range(2): P(f"s_and_b32 {sKK1[t]}, {sKK[t]}, 1024")
        P(f"s_lshl_b32 s99, {sW}, 12")

        def ks_to(P, sg, dst):
            cls, kind, jsel, t = slots[sg]
            P(f"s_add_u32 {dst}, {KB[kind, jsel]}, {sKK1[t] if kind == 'C1' else sKK[t]}")

        stagepos = {}
        def b2pos(sg):
            if sg < 18: return stagepos[sg]
            k = sg - 18
            return [8, 4, 5, 2, 3, 0, 1, 6, 7][k // 2] * SLOT + (k % 2) * 2048

        thr_on = [False]
        def throttle():
            if thr_on[0] and cfg.thr: P(f"s_waitcnt vmcnt({cfg.thr})")
        vmlog = []
        def b2dma(sg, P_=None):
            if P_ is None:
                throttle(); vmlog.append(("b", sg))
                b2dma_(P, sg)
            else:
                b2dma_(P_, sg)
        def b2dma_(P, sg):
            ks_to(P, sg, sT2)
            P(f"s_add_u32 m0, s99, {b2pos(sg)}")
            if cfg.b2hit: P(f"s_and_b32 {sT2}, {sT2}, 0x7fff")
            P(f"s_lshl_b32 {sT2}, {sT2}, 4")
            sr = SO if slots[sg][1] == "O" and not cfg.b2hit else SD
            if sg >= cfg.skipb: P(f"s_mov_b32 {sT2}, 0x7f000000")
            for q in range(2):
                P(f"buffer_load_dwordx4 v{VB[q]}, {sr}, {sT2} offen offset:{1024*q}{NT[cfg.ntb]} lds", tok=f"b{sg}")

        def b2touch(sg):
            junk = 16 if typ == 0 else 232
            ks_to(P, sg, sT2)
            P(f"s_lshl_b32 {sT2}, {sT2}, 4")
            sr = SO if slots[sg][1] == "O" else SD
            for q in range(2):
                P(f"buffer_load_dword v{junk+touchn[0]%16}, v{VB[q]}, {sr}, {sT2} offen offset:{1024*q}")
                touchn[0] += 1
        touchn = [0]
        tb_base = [4 * SLOT]
        def b2read(sg, regs):
            pos = b2pos(sg)
            want = (pos // (4 * SLOT)) * 4 * SLOT
            if want != tb_base[0]:
                d = want - tb_base[0]
                for ct in range(2):
                    if d > 0: P(f"v_add_u32 v{TB[ct]}, {d}, v{TB[ct]}")
                    else: P(f"v_subrev_u32 v{TB[ct]}, {-d}, v{TB[ct]}")
                tb_base[0] = want
            o = pos - want
            P.wait(f"b{sg}")
            for ct in range(2):
                P(f"ds_read_b64_tr_b16 {v(regs[ct],2)}, v{TB[ct]} offset:{o}")
                P(f"ds_read_b64_tr_b16 {v(regs[ct]+2,2)}, v{TB[ct]} offset:{o+1024}", tok=f"br{sg}")

        per = cfg.per2 if typ == 1 else cfg.per1
        def poswin(pos, final):
            sl = pos // SLOT
            if sl == 8: return (0, 5) if not final else ((10, 99) if typ == 0 else (0, 99))
            if sl in (4, 5): return (0, 99)
            if sl == 2: return (16, 99)
        occupant = {}
        stg = [8 * SLOT, 8 * SLOT + 2048, 4 * SLOT, 4 * SLOT + 2048, 5 * SLOT, 5 * SLOT + 2048]
        todo_reg = sorted(range(18), key=lambda x: (x >= 15 and typ == 1, slots[x][3] != 0, x)) if cfg.tmajor else list(range(18))
        todo_fin = list(range(18, 26))
        readdone = set()
        pend_reads = []
        defer = {15: 99, 16: 99, 17: 99} if typ == 1 else {}
        extra = {}
        first = {}
        last = {}
        def vpart(lst):
            if cfg.vprio: P(f"s_setprio {cfg.vprio}")
            P.extend(lst)
            if cfg.vprio: P("s_setprio 0")
        def split(smi, nparts):
            tot = sum(i.cost for i in smi)
            parts = [[] for _ in range(nparts)]
            acc = 0
            for i in smi:
                parts[min(nparts - 1, acc * nparts // tot)].append(i); acc += i.cost
            return parts

        fillv = "0x3f803f80" if typ == 0 else "0"
        for k in range(4): P(f"v_mov_b32 v{16+k}, {fillv}")
        for k in range(4): P(f"v_mov_b32 v{20+k}, 0")
        P(f"v_add_u32 v14, {sM0}, v1")
        P(f"v_add_u32 v14, {KVF}, v14")
        P(f"ds_write_b128 v14, v[16:19]")
        P(f"ds_write_b128 v14, v[16:19] offset:1024")
        P(f"v_add_u32 v14, {ZL}, v1")
        P(f"ds_write_b128 v14, v[20:23]")
        if typ == 0:
            KF = 16; A1 = 24; PP = 32; TT = 48; TM = 96; VF = 64
            P(f"s_lshl_b32 {sT0}, {sW}, 11")
            P(f"s_add_u32 {sT0}, {sT0}, {PHI+16384}")
            P("v_and_b32 v100, 31, v0")
            P("v_lshlrev_b32 v100, 6, v100")
            P("v_bfe_u32 v14, v0, 1, 2")
            P("v_lshl_add_u32 v100, v14, 4, v100")
            P("v_lshrrev_b32 v14, 5, v0")
            P("v_lshl_add_u32 v100, v14, 13, v100")
            P(f"v_add_u32 v100, {sT0}, v100")
            for q in range(1, 4): P(f"v_xor_b32 v{100+q}, {16*q}, v100")
            P(f"v_add_u32 v111, {sT0}, v1")
            P("v_lshrrev_b32 v14, 5, v0")
            P("v_lshlrev_b32 v14, 9, v14")
            P("v_bfe_u32 v15, v0, 2, 2")
            P("v_lshl_add_u32 v14, v15, 6, v14")
            P("v_and_b32 v15, 1, v0")
            P("v_lshl_add_u32 v14, v15, 5, v14")
            P("v_bfe_u32 v15, v0, 4, 1")
            P("v_lshl_add_u32 v14, v15, 4, v14")
            P("v_bfe_u32 v15, v0, 1, 1")
            P("v_lshl_add_u32 v14, v15, 3, v14")
            P("v_bfe_u32 v15, v0, 3, 1")
            P("v_lshlrev_b32 v15, 4, v15")
            P("v_xor_b32 v14, v14, v15")
            P(f"s_and_b32 {sT0}, {sW}, 1")
            P(f"s_lshl_b32 {sT0}, {sT0}, 4")
            P(f"v_xor_b32 v106, {sT0}, v14")
            P(f"s_lshr_b32 {sT0}, {sW}, 1")
            P(f"s_lshl_b32 {sT0}, {sT0}, 13")
            P(f"s_add_u32 {sT0}, {sT0}, {VIMG}")
            P(f"v_mov_b32 v96, {sT0}")
            P(f"v_mov_b32 v97, {KVF}")
            P("s_mov_b32 s82, 0x0000ffff")
            P("s_mov_b32 s83, 0x0000ffff")
            P(f"v_cndmask_b32 v96, v97, v96, {sMASK}")
            P(f"v_add_u32 v106, v96, v106")
            P(f"v_xor_b32 v107, 32, v106")
            P(f"s_lshl_b32 {sT0}, {sW}, 13")
            P(f"s_add_u32 {sT0}, {sT0}, {PHI}")
            P(f"v_add_u32 v104, {sT0}, v14")
            P(f"v_xor_b32 v105, 32, v104")
            P("v_and_b32 v14, 31, v0")
            P("v_lshrrev_b32 v15, 5, v0")
            P("v_lshlrev_b32 v108, 4, v14")
            P("v_lshl_add_u32 v108, v15, 8, v108")
            P("v_add_u32 v109, 512, v108")
            P("v_lshlrev_b32 v96, 5, v15")
            P("v_add_u32 v96, 1024, v96")
            P("v_add_u32 v97, 16, v96")
            P("v_cmp_eq_u32 vcc, 16, v14")
            P("v_cndmask_b32 v108, v108, v96, vcc")
            P("v_cndmask_b32 v109, v109, v97, vcc")
            P("v_mov_b32 v96, 0x7f000000")
            P("v_cmp_lt_u32 vcc, 16, v14")
            P("v_cndmask_b32 v108, v108, v96, vcc")
            P("v_cndmask_b32 v109, v109, v96, vcc")
            P(f"s_lshl_b32 {sT0}, {sJ}, 4")
            P(f"s_add_u32 {sT0}, {sT0}, {sRB}")
            P(f"s_lshl_b32 {sT0}, {sT0}, 2")
            P(f"s_add_u32 {sT0}, {sT0}, {sW}")
            P(f"s_mul_i32 s94, {sT0}, {KVHEAD}")
            P(f"s_add_u32 s94, s94, {KVP_OFF}")
            P(f"s_lshl_b32 s95, {sT0}, 7")
            P(f"s_add_u32 s95, s95, {FLAGKV_OFF}")
        else:
            P(f"s_lshl_b32 {sT0}, {sRB}, 2")
            P(f"s_add_u32 {sT0}, {sT0}, {sW}")
            P(f"s_mul_i32 s94, {sT0}, {144*1024}")
            P(f"s_lshl_b32 {sT1}, {sJ}, 12")
            P(f"s_add_u32 s94, s94, {sT1}")
            P(f"s_add_u32 s94, s94, {112*1024}")
            P(f"s_lshl_b32 s95, {sT0}, 5")
            P(f"s_add_u32 s95, s95, {sJ}")
            P(f"s_lshl_b32 s95, s95, 7")
            P(f"s_add_u32 s95, s95, {FLAGH_OFF + 16*128}")
        def mallwarm(which="gudo"):
            P(f"s_lshl_b32 {sT0}, s2, 2")
            P(f"s_add_u32 {sT0}, {sT0}, {sW}")
            P(f"s_mul_i32 {sT1}, {sT0}, 1792")
            P(f"s_lshl_b32 {sT2}, {sT0}, 9")
            P(f"s_mul_i32 {sT3}, {sT0}, 1536")
            P("v_lshlrev_b32 v14, 5, v0")
            P("v_lshlrev_b32 v15, 3, v0")
            j0 = 232
            for q, (ch, sr) in enumerate((("g", SG), ("u", SU), ("d", SD))):
                if ch in which: P(f"buffer_load_dword v{j0+q}, v14, {sr}, {sT1} offen")
            if "o" in which: P(f"buffer_load_dword v{j0+3}, v15, {SO}, {sT2} offen")
            if "q" in which: P(f"buffer_load_dword v{j0+4}, v14, {SQKV}, {sT3} offen")
        def wf_build():
            P.wait("wphi")
            wphi_frags(P, 0, 32, 16, 14, 15)
            if typ == 0:
                P(f"v_add_u32 v14, {WF}, v1")
                for q in range(2): P(f"ds_write_b128 v14, {v(16+4*q,4)} offset:{q*1024}", tok="wf")
        def early():
            Ln = newlabel("nn")
            P(f"s_or_b32 {sT0}, s2, {sW}")
            P(f"s_cmp_lg_u32 {sT0}, 0")
            P(f"s_cbranch_scc1 {Ln}")
            P.ins.append(Ins(".raw"))
            P.ins[-1].text = (f"  s_memrealtime s[100:101]\n  s_waitcnt lgkmcnt(0)\n  s_or_b32 {sT0}, s100, 1\n  v_mov_b32 v240, {sT0}\n  v_mov_b32 v241, 0\n"
                              f"  v_lshlrev_b32 v242, 26, v0\n  buffer_atomic_cmpswap v[240:241], v242, {SDBG}, 0 offen sc1\n  s_nop 1")
            P.label(Ln)
            P(f"s_lshl_b32 {sT1}, {sJ}, 11")
            P(f"s_mov_b32 m0, {WPHI}")
            P(f"buffer_load_dwordx4 v1, {SPHI}, {sT1} offen lds")
            P(f"buffer_load_dwordx4 v1, {SPHI}, {sT1} offen offset:1024 lds", tok="wphi")
            wchunk(0)
        if cfg.tlb:
            P("v_lshlrev_b32 v244, 18, v0")
            P(f"v_add_u32 v244, {0x3ff80}, v244")
            P(f"buffer_load_dword v245, v244, {SWS}, 0 offen")
            P("v_lshlrev_b32 v244, 16, v0")
            for q, sr in enumerate((SOUT, SD, SO, SG, SU, SQKV)):
                P(f"buffer_load_dword v{246+q}, v244, {sr}, 0 offen")
        for _ in range(cfg.wdelay): P("s_sleep 8")
        if cfg.warm == -2: mallwarm("gudoq")
        early()
        wchunk(1)
        if cfg.warm == -3: mallwarm("gudo")
        if cfg.warm == -4:
            mallwarm("gu"); last.setdefault(0, []).append(lambda: mallwarm("do"))
        wf_build()
        if typ == 0: P.wait("wf")
        P("s_waitcnt lgkmcnt(0)")

        def pubflag(tok, val, sadr, t0, t1):
            P(f"s_add_u32 {sT1}, {sNONCE}, {val}")
            P(f"v_mov_b32 v{t0}, {sT1}")
            P(f"v_lshlrev_b32 v{t1}, 26, v0")
            P.wait(tok)
            P(f"buffer_store_dword v{t0}, v{t1}, {SWS}, {sadr} offen sc1")

        if typ == 0:
            def t1_b():
                for hh in range(2):
                    P(f"ds_read_b128 {v(KF+4*hh,4)}, v111 offset:{hh*8192}")
            def t1_burst():
                P("s_setprio 2")
                P(f"v_mfma_f32_32x32x16_bf16 {v(PP,16)}, {v(A1,4)}, {v(KF,4)}, 0")
                P(f"v_mfma_f32_32x32x16_bf16 {v(PP,16)}, {v(A1+4,4)}, {v(KF+4,4)}, {v(PP,16)}")
                Q = Prog()
                softmax_pk(Q, PP, TT, 64, "s[24:25]")
                P.extend(Q.ins[:-16])
                P(f"ds_write_b128 v100, {v(TT,4)}")
                P(f"ds_write_b128 v101, {v(TT+4,4)}")
                P.extend(Q.ins[-16:])
                P(f"ds_write_b128 v102, {v(PP,4)}")
                P(f"ds_write_b128 v103, {v(PP+4,4)}", tok="phi1")
                P("s_setprio 0")
            def t1_rd():
                for ks in range(8):
                    a, b = 32 + 4 * ks, VF + 4 * ks
                    P(f"ds_read_b64_tr_b16 {v(a,2)}, v104 offset:{ks*1024}")
                    P(f"ds_read_b64_tr_b16 {v(a+2,2)}, v105 offset:{ks*1024+256}")
                    P(f"ds_read_b64_tr_b16 {v(b,2)}, v106 offset:{ks*1024}")
                    P(f"ds_read_b64_tr_b16 {v(b+2,2)}, v107 offset:{ks*1024+256}", tok="kvrd")
            def t1_kv():
                D = 16
                P("s_setprio 2")
                for ks in range(8):
                    a, b = 32 + 4 * ks, VF + 4 * ks
                    P(f"v_mfma_f32_32x32x16_bf16 {v(D,16)}, {v(a,4)}, {v(b,4)}, {'0' if ks == 0 else v(D,16)}")
            def t1_st():
                D = 16
                for k in range(8): P(f"v_cvt_pk_bf16_f32 v{D+k}, v{D+2*k}, v{D+2*k+1}")
                P(f"buffer_store_dwordx4 {v(D,4)}, v108, {SWS}, s94 offen sc1")
                P(f"buffer_store_dwordx4 {v(D+4,4)}, v109, {SWS}, s94 offen sc1", tok="kvst")
                P("s_setprio 0")
            first[8] = [t1_b]
            extra[8] = [t1_burst]
            if cfg.kvb:
                extra[8] += [lambda: P.wait("phi1"), lambda: P("s_barrier"), lambda: P("s_setprio 2"), t1_rd, t1_kv, t1_st]
            else:
                last[8] = [lambda: P.wait("phi1")]
                first[9] = [t1_rd]
                extra[9] = [t1_kv, t1_st]
            first[cfg.kvfl] = [lambda: pubflag("kvst", 1, "s95", 96, 97)]
            def t1_masks():
                P("s_mov_b32 s100, 0x33333333"); P("s_mov_b32 s101, 0x33333333")
                P("s_mov_b32 s84, 0xcccccccc"); P("s_mov_b32 s85, 0xcccccccc")
            for s_ in range(10, 16): first.setdefault(s_, []).append(t1_masks)
        else:
            A = 16; QF = 32; PP = [48, 64]; TT = 16; TM = 32; PH = 80
            def t2_b():
                P(f"s_add_u32 {sT0}, s99, {7*SLOT}")
                P(f"v_add_u32 v14, {sT0}, v1")
                for q in range(4): P(f"ds_read_b128 {v(QF+4*q,4)}, v14 offset:{q*1024}", tok="qrd")
            def t2_m():
                P("s_setprio 2")
                for p in range(2):
                    P(f"v_mfma_f32_32x32x16_bf16 {v(PP[p],16)}, {v(A+8*p,4)}, {v(QF+8*p,4)}, 0")
                    P(f"v_mfma_f32_32x32x16_bf16 {v(PP[p],16)}, {v(A+8*p+4,4)}, {v(QF+8*p+4,4)}, {v(PP[p],16)}")
                P("s_setprio 0")
            Q = Prog()
            for p in range(2):
                softmax_core(Q, PP[p], TT, TM, "s24")
                s1, s2 = TM + 2, TM + 3
                Q(f"v_rcp_f32 v{s1}, v{s1}")
                Q(f"v_rcp_f32 v{s2}, v{s2}")
                for k in range(16):
                    Q(f"v_mul_f32 v{TT+k}, v{TT+k}, v{s1}")
                    Q(f"v_mul_f32 v{PP[p]+k}, v{PP[p]+k}, v{s2}")
                for k in range(8):
                    Q(f"v_cvt_pk_bf16_f32 v{PH+16*p+k}, v{TT+2*k}, v{TT+2*k+1}")
                    Q(f"v_cvt_pk_bf16_f32 v{PH+16*p+8+k}, v{PP[p]+2*k}, v{PP[p]+2*k+1}")
            nparts = cfg.smend2 - cfg.qb + 1
            parts = split(Q.ins, nparts)
            first[cfg.qb] = [t2_b]
            for q in range(nparts):
                extra[cfg.qb + q] = [lambda q=q: vpart(parts[q])]
            extra[cfg.qb].insert(0, t2_m)
            dst = [16 + 4 * i for i in range(16)]
            KD, KI, KZ = 232, 248, 252
            def kvflagload():
                P("v_and_b32 v15, 15, v0")
                P("v_lshlrev_b32 v15, 9, v15")
                P("v_lshrrev_b32 v14, 4, v0")
                P("v_lshl_add_u32 v15, v14, 26, v15")
                P(f"s_lshl_b32 s26, {sJ}, 6")
                P(f"s_add_u32 s26, s26, {sW}")
                P(f"s_mul_i32 s84, s26, {KVHEAD}")
                P(f"s_add_u32 s84, s84, {KVP_OFF}")
                P(f"s_mul_i32 s85, {sRB}, {KVREC}")
                P(f"s_lshl_b32 s26, s26, 7")
                P(f"s_add_u32 s26, s26, {FLAGKV_OFF}")
                P(f"buffer_load_dword v14, v15, {SWS}, s26 offen sc1")
                P("v_and_b32 v12, 31, v0")
                P("v_lshrrev_b32 v13, 5, v0")
                P("v_lshlrev_b32 v13, 3, v13")
                P("v_sub_u32 v12, v12, v13")
                P("v_and_b32 v13, 1, v12")
                P("v_lshlrev_b32 v13, 4, v13")
                P(f"s_movk_i32 {sT0}, 0x3f80")
                P(f"v_lshlrev_b32 v13, v13, {sT0}")
                P("v_lshrrev_b32 v12, 1, v12")
                for k in range(4):
                    P(f"v_cmp_eq_u32 vcc, {k}, v12")
                    P(f"v_cndmask_b32 v{KI+k}, 0, v13, vcc")
            def kvissue():
                P("s_mov_b32 s82, 0xffff")
                P("s_mov_b32 s83, 0")
                poll_global(P, cfg, "v14", "v15", SWS, "s26", 1, 1, sMASK)
                S2(P, "kvflag") if not cfg.slotst else None
                P("v_lshrrev_b32 v15, 2, v0")
                P(f"v_mul_u32_u24 v15, {KVREC}, v15")
                P("v_and_b32 v13, 3, v0")
                P("v_lshl_add_u32 v15, v13, 4, v15")
                for i in range(16):
                    P(f"s_add_u32 {sT3}, s84, s85")
                    P(f"buffer_load_dwordx4 {v(dst[i],4)}, v1, {SWS}, {sT3} offen sc1")
                    P(f"s_add_u32 s85, s85, {KVREC}")
                    P(f"s_cmp_eq_u32 s85, {16*KVREC}")
                    P(f"s_cselect_b32 s85, 0, s85")
                    if i == 1: P(f"buffer_load_dwordx4 {v(KZ,4)}, v15, {SWS}, s84 offen offset:1024 sc1")
                P("v_lshlrev_b32 v13, 4, v13")
                P("v_bfe_u32 v15, v0, 4, 1")
                P("v_lshl_add_u32 v13, v15, 2, v13")
                P("v_lshrrev_b32 v14, 5, v0")
                P("v_lshl_add_u32 v13, v14, 1, v13")
                P(f"s_lshl_b32 {sT0}, {sW}, 6")
                P(f"s_add_u32 {sT0}, {sT0}, {ZL}")
                P(f"v_add_u32 v13, {sT0}, v13")
                P("v_and_b32 v12, 15, v0")
                P("v_lshlrev_b32 v12, 4, v12")
                P("v_lshl_add_u32 v12, v14, 3, v12")
                P("v_lshl_add_u32 v12, v15, 11, v12")
                P(f"s_lshr_b32 {sT0}, {sW}, 1")
                P(f"s_lshl_b32 {sT0}, {sT0}, 12")
                P(f"s_and_b32 {sT1}, {sW}, 1")
                P(f"s_mul_i32 {sT1}, {sT1}, 768")
                P(f"s_add_u32 {sT0}, {sT0}, {sT1}")
                P(f"s_add_u32 {sT0}, {sT0}, {KVF}")
                P(f"v_add_u32 v12, {sT0}, v12")
            def kvsum(hook=None):
                P("s_setprio 2")
                Z = 16
                Qz = Prog()
                for k in range(4):
                    Qz(f"v_lshlrev_b32 v{Z+2*k}, 16, v{KZ+k}")
                    Qz(f"v_and_b32 v{Z+1+2*k}, {sHI}, v{KZ+k}")
                for rr in (4, 8):
                    for k in range(8):
                        Qz(f"v_add_f32_dpp v{Z+k}, v{Z+k}, v{Z+k} row_ror:{rr} row_mask:0xf bank_mask:0xf")
                for k in range(0, 8, 2): Qz(f"v_permlane32_swap_b32 v{Z+k}, v{Z+1+k}")
                for k in range(0, 8, 2): Qz(f"v_add_f32 v{Z+k}, v{Z+k}, v{Z+1+k}")
                Qz(f"v_permlane16_swap_b32 v{Z}, v{Z+2}")
                Qz(f"v_permlane16_swap_b32 v{Z+4}, v{Z+6}")
                Qz(f"v_add_f32 v{Z}, v{Z}, v{Z+2}")
                Qz(f"v_add_f32 v{Z+4}, v{Z+4}, v{Z+6}")
                Qz(f"v_cvt_pk_bf16_f32 v{Z}, v{Z}, v{Z+4}")
                zi = Qz.ins
                for i in range(16):
                    P(f"v_mfma_f32_32x32x16_bf16 {v(KD,16)}, {v(KI,4)}, {v(dst[i],4)}, {'0' if i == 0 else v(KD,16)}")
                    if hook: hook(i)
                    if i >= 2:
                        P.extend(zi[:3]); zi = zi[3:]
                P.extend(zi)
                P(f"ds_write_b16 v13, v{Z}")
                P(f"ds_write_b16_d16_hi v13, v{Z} offset:8")
                for k in range(4): P(f"v_cvt_pk_bf16_f32 v{KD+k}, v{KD+2*k}, v{KD+2*k+1}")
                P(f"ds_write_b64 v12, {v(KD,2)}")
                P(f"ds_write_b64 v12, {v(KD+2,2)} offset:1024", tok="kvf")
                if not cfg.kprio: P("s_setprio 0")
            def o_addr():
                P(f"v_add_u32 v12, {KVF}, v1")
                P("v_lshrrev_b32 v13, 5, v0")
                P("v_lshlrev_b32 v13, 6, v13")
                P(f"v_add_u32 v13, {ZL}, v13")
                P(f"v_mov_b32 v14, {ZL+256}")
                P("s_mov_b32 s82, 0x0000ffff")
                P("s_mov_b32 s83, 0xffff0000")
                P(f"v_cndmask_b32 v13, v14, v13, {sMASK}")
            def o_pair(p, hook=None):
                KVR, ZR, NUM, DEN = 16, 32, 48, 64
                for jj in range(4):
                    P(f"ds_read_b128 {v(ZR+4*jj,4)}, v13 offset:{p*128+jj*16}")
                for jj in range(4):
                    P(f"ds_read_b128 {v(KVR+4*jj,4)}, v12 offset:{p*4096+jj*1024}")
                P("s_setprio 2")
                for jj in range(4):
                    P(f"v_mfma_f32_32x32x16_bf16 {v(DEN,16)}, {v(ZR+4*jj,4)}, {v(PH+16*p+4*jj,4)}, {'0' if jj == 0 else v(DEN,16)}")
                for jj in range(4):
                    P(f"v_mfma_f32_32x32x16_bf16 {v(NUM,16)}, {v(KVR+4*jj,4)}, {v(PH+16*p+4*jj,4)}, {'0' if jj == 0 else v(NUM,16)}")
                if hook: hook()
                for h in range(2):
                    P(f"v_add_f32 v{DEN+8*h}, 0x358637bd, v{DEN+8*h}")
                for h in range(2):
                    P(f"v_rcp_f32 v{DEN+8*h}, v{DEN+8*h}")
                for k in range(16):
                    P(f"v_mul_f32 v{NUM+k}, v{NUM+k}, v{DEN+8*(k>>3)}")
                for k in range(8): P(f"v_cvt_pk_bf16_f32 v{NUM+k}, v{NUM+2*k}, v{NUM+2*k+1}")
                for k in range(4): P(f"v_bfi_b32 v{NUM+2*k}, s3, v{2+(k&1)}, v{NUM+2*k}")
                P(f"buffer_store_dwordx4 {v(NUM,4)}, v1, {SWS}, s94 offen offset:{2048*p} sc1")
                P(f"buffer_store_dwordx4 {v(NUM+4,4)}, v1, {SWS}, s94 offen offset:{2048*p+1024} sc1", tok=f"o{p}")
                if p == 1 or not cfg.kprio: P("s_setprio 0")
            ks_ = cfg.kvst
            assert cfg.smend2 < ks_
            extra.setdefault(ks_ - 1, []).append(kvflagload)
            if ks_ <= 16: extra[ks_] = [kvissue]

        if cfg.touch >= 0:
            tl = [24, 26, 28, 32] + ([20] if typ == 1 else [])
            last.setdefault(cfg.touch, []).append(lambda: [b2touch(x) for x in tl])
        if 0 <= cfg.warm < 10:
            last.setdefault(cfg.warm, []).append(mallwarm)
        elif cfg.warm >= 10:
            a_, b_ = cfg.warm // 10 - 1, cfg.warm % 10
            last.setdefault(a_, []).append(lambda: mallwarm("gu"))
            last.setdefault(b_, []).append(lambda: mallwarm("do"))
        TG2 = [14, 15]
        free = [RING + 4 * i for i in range(8)]
        areg = {}
        breg = {sg: [B2R + 8 * sg, B2R + 8 * sg + 4] for sg in range(18)}
        checked = [0]
        flagged = [0]
        nxt_a = [0]
        def p2setup():
            P("v_and_b32 v4, 31, v0")
            P("v_lshlrev_b32 v4, 10, v4")
            P("v_lshrrev_b32 v5, 5, v0")
            P("v_lshl_add_u32 v4, v5, 4, v4")
            P(f"s_lshl_b32 {sT0}, {sR2}, 1")
            P(f"s_lshr_b32 {sT1}, {sW}, 1")
            P(f"s_add_u32 {sT0}, {sT0}, {sT1}")
            P(f"s_lshl_b32 {sT0}, {sT0}, 15")
            P(f"s_lshl_b32 {sT1}, {sC2}, 7")
            P(f"s_add_u32 {sT0}, {sT0}, {sT1}")
            P(f"s_and_b32 {sT1}, {sW}, 1")
            P(f"s_lshl_b32 {sT1}, {sT1}, 6")
            P(f"s_add_u32 {sT0}, {sT0}, {sT1}")
            P(f"v_add_u32 v4, {sT0}, v4")
        def resload():
            P(f"buffer_load_dwordx4 v[32:35], v4, {SX}, 0 offen")
            P(f"buffer_load_dwordx4 v[36:39], v4, {SX}, 0 offen offset:32")
        def residual():
            P(f"s_mov_b32 {sT1}, 0xffff0000")
            for jj in range(2):
                b = 32 + 4 * jj
                P(f"v_permlane32_swap_b32 v{b}, v{b+2}")
                P(f"v_permlane32_swap_b32 v{b+1}, v{b+3}")
            for k in range(8):
                P(f"v_lshlrev_b32 v{ACC+2*k}, 16, v{32+k}")
                P(f"v_and_b32 v{ACC+2*k+1}, {sT1}, v{32+k}")
        def aload_ins(Px, sg):
            ks_to(Px, sg, sT2)
            if slots[sg][1] == "O": Px(f"s_add_u32 {sT2}, {sT2}, {112*1024}")
            for rt in range(2):
                Px(f"buffer_load_dwordx4 {v(areg[sg][rt],4)}, v{VA[rt]}, {SWS}, {sT2} offen sc1")
        def aload(sg):
            throttle()
            areg[sg] = [free.pop(0), free.pop(0)]
            vmlog.append(("a", sg))
            aload_ins(P, sg)
        first.setdefault(16, []).append(p2setup)
        if typ == 1 and cfg.kprio: first[16].append(lambda: tag_setup(P, [2, 3], 's3'))
        wextra = {10: (18, (0,)), 11: (18, (1,)), 12: (19, (0,)), 13: (19, (1,))} if typ == 0 else {13: (18, (0, 1)), 14: (19, (0, 1))}

        b2log = []
        for s in range(18):
            P.wait(*([f"w{s}"] if s < 17 else ["w17", "w18", "w19"]))
            P("s_barrier")
            if s == 17: break
            if s == 0 or (cfg.allb >= 0 and cfg.allb <= s < cfg.allb + 8): S2(P, f"B{s}")
            if s == 0:
                wchunk(2); wchunk(3)
            if s == 1:
                P(f"buffer_load_dword v110, off, {SDBG}, 0 sc1")
            if s == 3:
                poll_nonce(P, cfg, "v110")
            for f in first.get(s, []): f()
            if s + 2 < 18 and s >= 2:
                wchunk(s + 2)
            if s in wextra: wchunk(*wextra[s])
            for f in extra.get(s, []): f()
            lag = cfg.b2lag
            todo = [sg for (sg, st_) in pend_reads if st_ <= s - lag and s >= defer.get(sg, 0)]
            pend_reads = [(sg, st_) for (sg, st_) in pend_reads if sg not in todo]
            for sg in todo:
                b2read(sg, breg[sg]); readdone.add(sg)
            n_issue = per[s]
            while n_issue > 0:
                n_issue -= 1
                cand = None
                if todo_reg:
                    for pos in stg:
                        lo, hi = poswin(pos, False)
                        oc = occupant.get(pos)
                        if lo <= s <= hi and (oc is None or oc in readdone):
                            cand = (todo_reg.pop(0), pos); break
                if cand is None:
                    for sg in todo_fin:
                        pos = b2pos(sg)
                        lo, hi = poswin(pos, True)
                        oc = occupant.get(pos)
                        stg_ok = (pos not in stg) or (not todo_reg) or (s > poswin(pos, False)[1])
                        if lo <= s <= hi and (oc is None or oc in readdone) and stg_ok:
                            todo_fin.remove(sg); cand = (sg, pos); break
                if cand is None: break
                sg, pos = cand
                oc = occupant.get(pos)
                if oc is not None: P.wait(f"br{oc}")
                occupant[pos] = sg
                if sg < 18:
                    stagepos[sg] = pos
                    pend_reads.append((sg, s))
                b2dma(sg)
                b2log.append((s, sg))
            for f in last.get(s, []): f()
            if typ == 0 and s == 7:
                for pos in stg[:2]:
                    assert occupant.get(pos) in readdone
                    P.wait(f"br{occupant[pos]}")
        S2(P, "ringend")
        thr_on[0] = True
        assert not todo_reg
        if cfg.stamps: P("s_mov_b32 s97, s98")
        P(f"v_mov_b32 v5, {LFLAG}")
        fin_all = todo_fin + [26, 27]
        lateq = list(range(32, 36)) if typ == 0 else list(range(28, 36))
        def fin_issue(n, only=None):
            for _ in range(n):
                c = [x for x in fin_all if only is None or x in only]
                if not c: return
                sg = c[0]; fin_all.remove(sg)
                oc = occupant.get(b2pos(sg))
                if oc is not None: P.wait(f"br{oc}")
                b2dma(sg); b2log.append((20, sg))
        if typ == 1:
            thr_on[0] = False
            if cfg.kprio: P("s_setprio 2")
            if cfg.kvst == 17: kvissue()
            kvsum(lambda i: fin_issue(1, (24, 25, 26, 27)) if (cfg.t2e and i >= 8 and i % 2 == 0) else None)
            thr_on[0] = True
            P(f"s_lshl_b32 {sT0}, {sW}, 2")
            P(f"v_add_u32 v14, {sT0}, v5")
            P("v_mov_b32 v15, 1")
            P.wait("kvf")
            P("ds_write_b32 v14, v15 offset:48")
        for sg, _ in pend_reads:
            b2read(sg, breg[sg]); readdone.add(sg)
        if typ == 1:
            if not cfg.kprio: tag_setup(P, [2, 3], "s3")
            poll_lds(P, cfg, 12, "v5", 48)
            if cfg.t2e: poll_lds(P, cfg, 12, "v5", 16)
            S2(P, "kvx") if not cfg.slotst else None
            o_addr()
            thr_on[0] = False
            o_pair(0, lambda: [aload(0), aload(1)] + ([fin_issue(cfg.t2e)] if cfg.t2e else []))
            o_pair(1, lambda: [aload(2), aload(3)] + ([fin_issue(cfg.t2e)] if cfg.t2e else []))
            thr_on[0] = True
            S2(P, "odone")
            if cfg.t2e:
                fin_all += lateq[:4]; lateq = lateq[4:]
            fin_issue(cfg.nfin)
        else:
            for sg in range(4): aload(sg)
            fin_issue(cfg.nfin1)
            if not cfg.eprio:
                poll_lds(P, cfg, 12, "v5", 0)
                for x in (28, 29): b2dma(x)
                poll_lds(P, cfg, 12, "v5", 16)
                for x in (30, 31): b2dma(x)
            else:
                lateq = list(range(28, 36))
        print("B2 plan typ", typ, b2log)
        nxt_a[0] = 4
        tag_setup(P, TG2, "s3", True)
        nxt_b = [18]
        BLA = 3
        ALA = cfg.ala
        slow = []
        def tagops(Q, sg):
            for r in areg[sg]:
                Q(f"v_xor_b32 v{r}, v{r}, v{TG2[0]}")
                Q(f"v_xor_b32 v{r+2}, v{r+2}, v{TG2[1]}")
            r0, r1 = areg[sg]
            Q(f"v_bitop3_b32 v2, v{r0}, v{r0+2}, v{r0} bitop3:0xf3")
            Q(f"v_bitop3_b32 v2, v{r1}, v{r1+2}, v2 bitop3:0xfb")
            Q("v_and_b32 v2, s3, v2")
            Q("v_cmp_ne_u32 vcc, 0, v2")
        def tagcheck(sg):
            Q = Prog()
            Ls, Lc = newlabel("slow"), newlabel("cont")
            tagops(Q, sg)
            B = Prog()
            B("s_cmp_lg_u64 vcc, 0")
            B(f"s_cbranch_scc1 {Ls}")
            B.label(Lc)
            T = Prog()
            Lp, Ld = newlabel("sp"), newlabel("sd")
            T.label(Ls)
            T(f"s_mov_b32 {sCNT}, {cfg.spin2}")
            if cfg.stamps: T("s_add_u32 s97, s97, 1")
            T.label(Lp)
            T(f"s_sleep {cfg.sleep}")
            aload_ins(T, sg)
            T("s_waitcnt vmcnt(0)")
            tagops(T, sg)
            T("s_nop 1")
            T("s_cmp_lg_u64 vcc, 0")
            T(f"s_cbranch_scc0 {Ld}")
            T(f"s_sub_u32 {sCNT}, {sCNT}, 1")
            T(f"s_cbranch_scc0 {Lp}")
            T.label(Ld)
            if cfg.fastslow and sg >= 4:
                for kind_, x in vmlog[vmlog.index(("a", sg)) + 1:]:
                    if kind_ == "a": aload_ins(T, x)
                    elif kind_ == "b": b2dma(x, T)
                    else:
                        T(f"buffer_load_dwordx4 {v(x[0],4)}, v4, {SX}, 0 offen")
                        T(f"buffer_load_dwordx4 {v(x[1],4)}, v4, {SX}, 0 offen offset:32")
                T(f"s_waitcnt vmcnt(@{Lc}:@)")
            else:
                for x in range(sg + 1, nxt_a[0]): aload_ins(T, x)
                T("s_waitcnt vmcnt(0)")
            T(f"s_branch {Lc}")
            slow.extend(T.ins)
            return Q.ins, B.ins
        deferred = {0: [], 2: [], 3: []}
        c0, b0 = tagcheck(0)
        P.extend(c0); P.extend(b0)
        for sg in range(36):
            if cfg.slotst and sg % 4 == 0: S2(P, f"s{sg}")
            if sg == (cfg.thrn if typ == 1 or not cfg.eprio else cfg.eprio + 2): thr_on[0] = False
            if typ == 0 and cfg.eprio and sg == 0: P("s_setprio 1")
            if typ == 0 and cfg.eprio and sg == cfg.eprio: P("s_setprio 0")
            fill = Prog()
            P_save = P.ins
            P.ins = fill.ins
            if sg >= 1 and sg - 1 < 36 - cfg.tl:
                free.extend(areg[sg - 1]); free.extend(breg[sg - 1])
            if cfg.hold and sg == cfg.hold:
                poll_lds(P, cfg, free[0], "v5", 64)
            while nxt_b[0] < 36 and nxt_b[0] <= sg + BLA:
                r = [free.pop(0), free.pop(0)]
                breg[nxt_b[0]] = r
                b2read(nxt_b[0], r); nxt_b[0] += 1
            cnt = 0
            while nxt_a[0] < 36 and len(free) >= 4 and nxt_a[0] <= (sg + ALA if (typ == 1 or not cfg.eprio or sg >= cfg.eprio) else max(7, sg + cfg.eala)) and cnt < 2:
                aload(nxt_a[0]); nxt_a[0] += 1; cnt += 1
            pg0 = cfg.pg0 if typ == 1 or not cfg.eprio else max(cfg.pg0, cfg.eprio + 1)
            if sg == pg0:
                poll_lds(P, cfg, free[0], "v5", 32)
            if fin_all and sg >= 1:
                fin_issue(1)
            elif sg > pg0 and lateq and (sg - pg0) % cfg.pgs == 0:
                b2dma(lateq.pop(0))
            if sg == 30:
                rres = [free.pop(0), free.pop(0)]
                vmlog.append(("r", rres))
                P(f"buffer_load_dwordx4 {v(rres[0],4)}, v4, {SX}, 0 offen")
                P(f"buffer_load_dwordx4 {v(rres[1],4)}, v4, {SX}, 0 offen offset:32")
            P.ins = P_save
            mf = []
            for rt in range(2):
                for ct in range(2):
                    q = ct + 2 * rt
                    a = ACC + 16 * q
                    c = "0" if sg == 0 else v(a, 16)
                    mf.append(Ins(f"v_mfma_f32_32x32x16_bf16 {v(a,16)}, {v(breg[sg][ct],4)}, {v(areg[sg][rt],4)}, {c}"))
            f = fill.ins
            tc, tb_ = tagcheck(sg + 1) if sg + 1 < 36 else ([], [])
            if any(x.kind == "label" for x in f):
                parts_ = [[], f, [], []]
            else:
                n3 = -(-len(f) // 3)
                parts_ = [[], f[:n3], f[n3:2 * n3], f[2 * n3:]]
            tcs = [tc[:4], tc[4:6], tc[6:8], tb_]
            if sg >= 36 - cfg.tl:
                k1 = [i for i, (rt, ct) in enumerate([(0, 0), (0, 1), (1, 0), (1, 1)]) if ct + 2 * rt == 1][0]
                P.extend(mf[k1:k1 + 1]); P.extend(f); P.extend(tc); P.extend(tb_)
                for q in (2, 3, 0): deferred[q].append(mf[q])
            else:
                for k in range(4):
                    P.extend(mf[k:k + 1]); P.extend(parts_[k]); P.extend(tcs[k])
        P(f"s_add_u32 {sT0}, s99, {4*SLOT}")
        P(f"v_add_u32 v12, {sT0}, v1")
        wr = {q: [Ins(f"ds_write_b128 v12, {v(ACC+16*q+4*k,4)} offset:{q*SLOT+k*1024}") for k in range(4)] for q in (1, 2, 3)}
        if cfg.tl:
            pendw = []
            for q, prevq in ((2, 1), (3, 2), (0, 3)):
                for i, m in enumerate(deferred[q]):
                    P.extend([m])
                    if i == 1: pendw += wr[prevq]
                    if pendw: P.extend([pendw.pop(0)])
                    if pendw and i >= 2: P.extend([pendw.pop(0)])
            P.extend(pendw)
        else:
            for q in range(1, 4): P.extend(wr[q])
        S2(P, "mainend")
        for q in range(1, 4):
            P(f"v_xor_b32 v{12+q}, {q*4096}, v12")
        if cfg.o64:
            P("v_bfe_u32 v6, v0, 4, 1")
            P(f"v_mul_u32_u24 v6, {16384-32}, v6")
            P("v_sub_u32 v6, v4, v6")
        for b in rres:
            P(f"v_permlane32_swap_b32 v{b}, v{b+2}")
            P(f"v_permlane32_swap_b32 v{b+1}, v{b+3}")
        for k in range(8):
            src = rres[k // 4] + (k % 4)
            P(f"v_lshlrev_b32 v2, 16, v{src}")
            P(f"v_and_b32 v3, {sHI}, v{src}")
            P(f"v_pk_add_f32 {v(ACC+2*k,2)}, {v(ACC+2*k,2)}, v[2:3]")
        P("s_waitcnt lgkmcnt(0)")
        P("s_barrier")
        for q in range(1, 4):
            for k in range(4):
                P(f"ds_read_b128 {v(ACC+16*q+4*k,4)}, v{12+q} offset:{q*SLOT+k*1024}")
        for q in range(1, 4):
            for k in range(0, 16, 2):
                P(f"v_pk_add_f32 {v(ACC+k,2)}, {v(ACC+k,2)}, {v(ACC+16*q+k,2)}")
        for k in range(8): P(f"v_cvt_pk_bf16_f32 v{ACC+k}, v{ACC+2*k}, v{ACC+2*k+1}")
        for jj in range(2):
            b = ACC + 4 * jj
            P(f"v_permlane32_swap_b32 v{b}, v{b+2}")
            P(f"v_permlane32_swap_b32 v{b+1}, v{b+3}")
            if not cfg.o64:
                P(f"buffer_store_dwordx4 {v(b,4)}, v4, {SOUT}, 0 offen offset:{32*jj}{['', ' sc1', ' sc0 sc1', ' nt'][cfg.outsc]}")
        if cfg.o64:
            for k in range(4): P(f"v_permlane16_swap_b32 v{ACC+k}, v{ACC+4+k}")
            P(f"s_mov_b32 {sT0}, 16384")
            P(f"buffer_store_dwordx4 {v(ACC,4)}, v6, {SOUT}, 0 offen{['', ' sc1', ' sc0 sc1', ' nt'][cfg.outsc]}")
            P(f"buffer_store_dwordx4 {v(ACC+4,4)}, v6, {SOUT}, {sT0} offen{['', ' sc1', ' sc0 sc1', ' nt'][cfg.outsc]}")
        S2(P, "end")
        if cfg.stamps and S2.n < len(S2.regs):
            P(f"s_mov_b32 {S2.regs[S2.n]}, s97"); S2.n += 1; S2.names.append("nslow")
        S2.dump(P, 1)
        if cfg.padT:
            Lq = newlabel("pad")
            r_ = Ins(".raw"); r_.text = f"{Lq}:\n  s_sleep 2\n  s_memrealtime s[100:101]\n  s_waitcnt lgkmcnt(0)\n  s_sub_u32 s100, s100, s96\n  s_cmp_lt_u32 s100, {cfg.padT}\n  s_cbranch_scc1 {Lq}"
            P.ins.append(r_)
        P("s_endpgm")
        raw = Ins(".raw"); raw.text = text_of(slow).rstrip("\n")
        P.ins.append(raw)
        return P, S2

    names = {"p1t1": names_p1t1, "p1t2": names_p1t2}
    for typ in range(2):
        P, S2 = p2_rest(typ)
        r, _ = finalize(P, st2, log)
        segs.append(r)
        names[f"p2t{typ+1}"] = S2.names

    hdr = open("cdna_kernels/" + NAME + ".s.ref").read().split("\n")
    head = [l for l in hdr if l.startswith(";") and "@launch" not in l and "Override launch" not in l and "grid=ceil" not in l]
    out = "\n".join(head) + f"\n; @launch grid=(256,1,1) block=(512,1,1) lds={LDS_BYTES}\n"
    out += f""".amdgcn_target "amdgcn-amd-amdhsa--gfx950"
.text
.globl {NAME}_kernel
.p2align 8
.type {NAME}_kernel,@function
{NAME}_kernel:
"""
    for sgm in segs:
        out += text_of(sgm)
    out = re.sub(r"@(L_\w+:)@", lambda m: str(VQ_AT[m.group(1)]), out)
    out += f"""L_end:
  s_endpgm
L_codeend:
{"".join(fb_text)}
.section .rodata,"a"
.p2align 6
.amdhsa_kernel {NAME}_kernel
  .amdhsa_next_free_vgpr 256
  .amdhsa_next_free_sgpr 102
  .amdhsa_accum_offset 256
  .amdhsa_group_segment_fixed_size 0
  .amdhsa_kernarg_size 88
  .amdhsa_user_sgpr_count 2
  .amdhsa_user_sgpr_kernarg_segment_ptr 1
  .amdhsa_system_sgpr_workgroup_id_x 1
.end_amdhsa_kernel
"""
    return out, names, log


if __name__ == "__main__":
    cfg = Cfg()
    outp = "cdna_kernels/" + NAME + ".s"
    for a in sys.argv[1:]:
        if a.startswith("out="): outp = a[4:]
        else:
            k, val = a.split("=")
            setattr(cfg, k, [int(c) for c in val] if isinstance(getattr(cfg, k), list) else type(getattr(cfg, k))(int(val)))
    text, names, log = gen(cfg)
    open(outp, "w").write(text)
    import json
    json.dump(names, open(outp + ".names.json", "w"))
    print("written", outp, len(text), "bytes;", log)
```

```python
import sys, math, re
from asmlib import *

NAME = "parallel_sum__linear_kernel_hedgehog__glu_gated_glu__prompt"

class Cfg:
    stamps = 0
    map84 = True
    LA = 5
    cap = 3
    spin = 1 << 16
    skew = True
    codepf = True
    nob2 = False
    dbgstage = -1
    now = False
    sleep = 1
    nosm = False
    allb = -1
    phib = 9
    vprio = 0
    kvst = 17
    kvfl = 11
    b2lag = 2
    per1 = [0,0,2,2,2,2,2,2, 4,0,2,2,1,1,0,0,2,0]
    wdelay = 0
    ofirst = 0
    cap2 = 5
    spin2 = 4096
    touch = -1
    tmajor = 0
    padT = 0
    pf2 = [0]
    xd = 3
    rotm = 1
    kprio = 0
    o64 = 1
    eprio = 0
    eala = 2
    nfin1 = 99
    tl = 0
    kvb = 0
    qb = 5
    skipb = 99
    skipw = 99
    nc = 0
    t2e = 2
    stag2 = 2
    stag1 = 2
    fastslow = 1
    thr = 4
    thrn = 6
    hold = 0
    nfin = 2
    ntx = 0
    ntw = 0
    ntb = 0
    tlb = 0
    warm = 20
    rt = 0
    b2hit = 0
    nopz = 0
    outsc = 1
    pg0 = 6
    pgs = 1
    slotst = 0
    per2 = [0,0,2,2,2,2,2,2, 2,2,2,1,1,0,0,1,0,0]
    kvn = 3
    flagA = 262
    smend2 = 14
    capC = 5
    hprio = 0
    ala = 8
    dbgout = False
    fla = 3

H_OFF = 0
KVP_OFF = 0xA00000
KVHEAD = 1152
KVREC = 4 * KVHEAD
FLAGH_OFF = 0xB00000
FLAGKV_OFF = 0xB80000
STAMP_OFF = 0xC00000
WS_BYTES = 0x1000000

SLOT = 16384
XBASE = 4 * SLOT
PHI = 6 * SLOT
VIMG = 8 * SLOT
SCR = 9 * SLOT
WPHI = SCR
KVF = SCR + 2048
ZL = SCR + 10240
LFLAG = SCR + 10752
WF = SCR + 11264
STX = SCR + 14336
XN = 4 * SLOT
XB0 = 2 * SLOT
LDS_BYTES = 10 * SLOT

SX, SWS, SDBG, SQKV, SG, SU, SD, SO, SPHI, SOUT = [f"s[{b}:{b+3}]" for b in range(28, 68, 4)]
sW, sRB, sJ, sTYPE, sROT, sR2, sC2, sNONCE = [f"s{i}" for i in range(68, 76)]
sT0, sT1, sT2, sT3, sT4, sT5 = [f"s{i}" for i in range(76, 82)]
sMASK = "s[82:83]"
sMASK2 = "s[84:85]"
sCNT = "s86"
sHI = "s87"
sC1 = "s3"
sC2K = "s26"
sC3 = "s27"

NT = ["", " nt"]
LOG2E = 0x3FB8AA3B
NLOG2E = 0xBFB8AA3B

def v(a, n=1):
    return f"v{a}" if n == 1 else f"v[{a}:{a+n-1}]"

def srd(P, name, plo, nbytes):
    b = int(name[2:name.index(":")])
    P(f"s_mov_b32 s{b}, s{plo}")
    P(f"s_mov_b32 s{b+1}, s{plo+1}")
    P(f"s_mov_b32 s{b+2}, {nbytes:#x}")
    P(f"s_mov_b32 s{b+3}, 0x20000")

_lbl = [0]
def newlabel(p):
    _lbl[0] += 1
    return f"L_{p}_{_lbl[0]}"

class Stamps:
    def __init__(self, cfg, regs):
        self.cfg = cfg; self.regs = regs; self.n = 0; self.names = []
    def __call__(self, P, name):
        if not self.cfg.stamps or self.cfg.stamps == 2: return
        assert self.n < len(self.regs), "too many stamps"
        P("s_memrealtime s[100:101]" if self.cfg.rt else "s_memtime s[100:101]")
        i = P("s_waitcnt lgkmcnt(0)"); i.pin = True
        P(f"s_mov_b32 {self.regs[self.n]}, s100")
        self.n += 1; self.names.append(name)
    def fork(self):
        s = Stamps(self.cfg, self.regs); s.n = self.n; s.names = list(self.names); return s
    def dump(self, P, role):
        if not self.cfg.stamps: return
        P(f"s_lshl_b32 {sT0}, s2, 3")
        P(f"s_add_u32 {sT0}, {sT0}, {sW}")
        P(f"s_add_u32 {sT0}, {sT0}, {4*role}")
        P(f"s_lshl_b32 {sT0}, {sT0}, 7")
        P(f"s_add_u32 {sT0}, {sT0}, {STAMP_OFF}")
        P("v_mov_b32 v12, 0")
        P("s_memrealtime s[100:101]")
        i = P("s_waitcnt lgkmcnt(0)"); i.pin = True
        P("v_mov_b32 v13, s96")
        P(f"buffer_store_dword v13, v12, {SWS}, {sT0} offen offset:120")
        P("s_nop 1")
        P("v_mov_b32 v13, s100")
        P(f"buffer_store_dword v13, v12, {SWS}, {sT0} offen offset:124")
        P("s_nop 1")
        for k in range(self.n):
            P(f"v_mov_b32 v13, {self.regs[k]}")
            P(f"buffer_store_dword v13, v12, {SWS}, {sT0} offen offset:{4*k}")
            P("s_nop 1")


def poll_global(P, cfg, vflag, vaddr, srdname, soff, need, maxv, smask, tok=None):
    L, OK = newlabel("poll"), newlabel("ok")
    P(f"s_mov_b32 {sCNT}, {cfg.spin}")
    P(f"s_add_u32 {sT5}, {sNONCE}, {need}")
    P(f"v_subrev_u32 {vflag}, {sT5}, {vflag}")
    P.label(L)
    P(f"v_cmp_lt_u32 vcc, {maxv-need}, {vflag}")
    P("s_nop 1")
    P(f"s_and_b64 vcc, vcc, {smask}")
    P(f"s_cbranch_scc0 {OK}")
    P(f"s_sleep {cfg.sleep}")
    P.ins.append(Ins(f".raw"))
    P.ins[-1].text = f"  buffer_load_dword {vflag}, {vaddr}, {srdname}, {soff} offen sc1\n  s_waitcnt vmcnt(0)\n  v_subrev_u32 {vflag}, {sT5}, {vflag}\n  s_sub_u32 {sCNT}, {sCNT}, 1\n  s_cbranch_scc0 {L}"
    P.label(OK)


def poll_nonce(P, cfg, vtmp):
    L, OK = newlabel("np"), newlabel("nok")
    P(f"s_mov_b32 {sCNT}, {cfg.spin}")
    P(f"v_readfirstlane_b32 {sNONCE}, {vtmp}")
    P.label(L)
    P("s_nop 0")
    P(f"s_cmp_lg_u32 {sNONCE}, 0")
    P(f"s_cbranch_scc1 {OK}")
    P("s_sleep 1")
    P.ins.append(Ins(".raw"))
    P.ins[-1].text = f"  buffer_load_dword {vtmp}, off, {SDBG}, 0 sc1\n  s_waitcnt vmcnt(0)\n  v_readfirstlane_b32 {sNONCE}, {vtmp}\n  s_sub_u32 {sCNT}, {sCNT}, 1\n  s_cbranch_scc0 {L}"
    P.label(OK)
    P("s_nop 1")


def poll_lds(P, cfg, vtmp4, vaddr, off):
    L, OK = newlabel("lp"), newlabel("lok")
    P(f"s_mov_b32 {sCNT}, {cfg.spin}")
    i = P("s_waitcnt lgkmcnt(0)")
    P.label(L)
    P.ins.append(Ins(".raw"))
    P.ins[-1].text = (f"  ds_read_b128 {v(vtmp4,4)}, {vaddr} offset:{off}\n  s_waitcnt lgkmcnt(0)\n"
                      f"  v_and_b32 {v(vtmp4)}, {v(vtmp4)}, {v(vtmp4+1)}\n  v_and_b32 {v(vtmp4+2)}, {v(vtmp4+2)}, {v(vtmp4+3)}\n"
                      f"  v_and_b32 {v(vtmp4)}, {v(vtmp4)}, {v(vtmp4+2)}\n  s_nop 0\n  v_readfirstlane_b32 {sT5}, {v(vtmp4)}\n  s_nop 1\n"
                      f"  s_cmp_lg_u32 {sT5}, 0\n  s_cbranch_scc1 {OK}\n  s_sleep 1\n  s_sub_u32 {sCNT}, {sCNT}, 1\n  s_cbranch_scc0 {L}")
    P.label(OK)


def weave(groups, tasks, cap):
    q = []
    for rel, dl, lst in tasks:
        for i in lst:
            q.append((i, rel, dl))
    out = []
    n = len(groups)
    for gi, grp in enumerate(groups):
        while q and q[0][2] <= gi:
            out.append(q.pop(0)[0])
        out.extend(grp)
        extra = sum(1 for i in grp[1:] if i.kind in ("sopp", "wait", "salu"))
        budget = max(cap - extra, 1)
        acc = 0
        for (i, rel, dl) in q:
            acc += i.cost
            if dl <= n and dl > gi:
                budget = max(budget, math.ceil(acc / (dl - gi)))
        valu_done = False
        while q and q[0][1] <= gi and budget > 0:
            i = q[0][0]
            if i.kind in ("ds", "vmem") and valu_done:
                break
            if i.cost > budget and valu_done:
                break
            q.pop(0)
            out.append(i)
            budget -= i.cost
            if i.kind == "valu":
                valu_done = True
    rest = [x[0] for x in q]
    return out, rest


X0 = 128
def XR(t): return X0 + 4 * t
SET = [32 + 16 * i for i in range(6)]
FR0 = 12
TA = [4, 5, 6, 7]
vL16, vRS, vMR = 1, 2, 3

def p1_common(P):
    P("v_lshrrev_b32 v8, 5, v0")
    P("v_lshlrev_b32 v8, 10, v8")
    P("v_bfe_u32 v9, v0, 2, 2")
    P("v_lshl_add_u32 v8, v9, 7, v8")
    P("v_bfe_u32 v9, v0, 3, 1")
    P("v_lshl_add_u32 v8, v9, 6, v8")
    P("v_and_b32 v9, 3, v0")
    P("v_lshl_add_u32 v8, v9, 3, v8")
    P("v_bfe_u32 v9, v0, 4, 1")


def p1_taddr(P, kind):
    if kind == "pair":
        P(f"v_lshlrev_b32 v{TA[0]}, 5, v9")
        P(f"v_xor_b32 v{TA[0]}, v{TA[0]}, v8")
        P(f"v_xor_b32 v{TA[1]}, 64, v{TA[0]}")
        P(f"v_xor_b32 v{TA[2]}, {8192+32}, v{TA[0]}")
        P(f"v_xor_b32 v{TA[3]}, {8192+96}, v{TA[0]}")
    else:
        P(f"v_mul_u32_u24 v{TA[0]}, {8192+32}, v9")
        P(f"v_xor_b32 v{TA[0]}, v{TA[0]}, v8")
        for t in range(1, 4):
            P(f"v_xor_b32 v{TA[t]}, {32*t}, v{TA[0]}")


TG1 = [2, 3]
sTM = "s89"
def tag_setup(P, T, smask, consumer=False):
    P(f"s_mul_i32 {sT0}, {sNONCE}, 0x9e3779b1")
    P(f"s_lshr_b32 {sT5}, {sT0}, 15")
    P(f"s_xor_b32 {sT0}, {sT0}, {sT5}")
    P(f"s_and_b32 {sT0}, {sT0}, 0xfffdfffd")
    P(f"s_or_b32 {sT0}, {sT0}, 0x00010001")
    P(f"s_mov_b32 {smask}, 0x00010001")
    P(f"v_and_b32 v{T[0]}, 7, v0")
    P(f"v_lshlrev_b32 v{T[0]}, 2, v{T[0]}")
    P(f"v_bfe_u32 v{T[0]}, {sT0}, v{T[0]}, 4")
    P(f"v_lshl_or_b32 v{T[0]}, v{T[0]}, 15, v{T[0]}")
    P(f"v_lshrrev_b32 v{T[1]}, 2, v{T[0]}")
    if consumer:
        P(f"v_and_b32 v{T[0]}, {smask}, v{T[0]}")
        P(f"v_and_b32 v{T[1]}, {smask}, v{T[1]}")
        P(f"v_xor_b32 v{T[1]}, {smask}, v{T[1]}")


def sigmoid_task(S, ks_sreg, ks_imm, tok):
    P = Prog()
    for i in range(8): P(f"v_mul_f32 v{S+i}, {sC1}, v{S+i}")
    for i in range(8): P(f"v_exp_f32 v{S+i}, v{S+i}")
    for i in range(8): P(f"v_add_f32 v{S+i}, 1.0, v{S+i}")
    for i in range(8): P(f"v_rcp_f32 v{S+i}, v{S+i}")
    for i in range(8): P(f"v_mul_f32 v{S+8+i}, v{S+8+i}, v{S+i}")
    for k in range(4): P(f"v_cvt_pk_bf16_f32 v{S+k}, v{S+8+2*k}, v{S+9+2*k}")
    for k in range(2): P(f"v_bfi_b32 v{S+2*k}, {sTM}, v{TG1[k]}, v{S+2*k}")
    P(f"buffer_store_dwordx4 {v(S,4)}, v{vL16}, {SWS}, {ks_sreg} offen offset:{ks_imm} sc1", tok=tok)
    return P.ins


def flag_task(toks, val):
    P = Prog()
    P(f"s_add_u32 {sT0}, {sNONCE}, {val}")
    P(f"v_mov_b32 v11, {sT0}")
    P(f"v_lshlrev_b32 v10, 26, v0")
    P.wait(*toks)
    P(f"buffer_store_dword v11, v10, {SWS}, s88 offen sc1")
    return P.ins


def softmax_core(P, Pr, T, tmp, sC2K=sC2K):
    mx, mn, s1, s2 = tmp if isinstance(tmp, (list, tuple)) else (tmp, tmp + 1, tmp + 2, tmp + 3)
    P(f"v_max3_f32 v{mx}, v{Pr}, v{Pr+1}, v{Pr+2}")
    P(f"v_min3_f32 v{mn}, v{Pr}, v{Pr+1}, v{Pr+2}")
    for k in range(3, 15, 2):
        P(f"v_max3_f32 v{mx}, v{mx}, v{Pr+k}, v{Pr+k+1}")
        P(f"v_min3_f32 v{mn}, v{mn}, v{Pr+k}, v{Pr+k+1}")
    P(f"v_max_f32 v{mx}, v{mx}, v{Pr+15}")
    P(f"v_min_f32 v{mn}, v{mn}, v{Pr+15}")
    P(f"v_mul_f32 v{mx}, {sC2K}, v{mx}")
    P(f"v_mul_f32 v{mn}, {sC2K}, v{mn}")
    for k in range(16):
        P(f"v_fma_f32 v{T+k}, v{Pr+k}, {sC2K}, -v{mx}")
        P(f"v_fma_f32 v{Pr+k}, -v{Pr+k}, {sC2K}, v{mn}")
    for k in range(16):
        P(f"v_exp_f32 v{T+k}, v{T+k}")
        P(f"v_exp_f32 v{Pr+k}, v{Pr+k}")
    P(f"v_add_f32 v{s1}, v{T}, v{T+1}")
    P(f"v_add_f32 v{s2}, v{Pr}, v{Pr+1}")
    for k in range(2, 16):
        P(f"v_add_f32 v{s1}, v{s1}, v{T+k}")
        P(f"v_add_f32 v{s2}, v{s2}, v{Pr+k}")


def softmax_pk(P, Pr, T, tm, sc):
    mx, mn = tm, tm + 1
    P(f"v_max3_f32 v{mx}, v{Pr}, v{Pr+1}, v{Pr+2}")
    P(f"v_min3_f32 v{mn}, v{Pr}, v{Pr+1}, v{Pr+2}")
    for k in range(3, 15, 2):
        P(f"v_max3_f32 v{mx}, v{mx}, v{Pr+k}, v{Pr+k+1}")
        P(f"v_min3_f32 v{mn}, v{mn}, v{Pr+k}, v{Pr+k+1}")
    P(f"v_max_f32 v{mx}, v{mx}, v{Pr+15}")
    P(f"v_min_f32 v{mn}, v{mn}, v{Pr+15}")
    P(f"v_pk_mul_f32 {v(mx,2)}, {v(mx,2)}, {sc} op_sel_hi:[1,0]")
    for k in range(0, 16, 2):
        P(f"v_pk_fma_f32 {v(T+k,2)}, {v(Pr+k,2)}, {sc}, {v(mx,2)} op_sel_hi:[1,0,0] neg_lo:[0,0,1] neg_hi:[0,0,1]")
        P(f"v_pk_fma_f32 {v(Pr+k,2)}, {v(Pr+k,2)}, {sc}, {v(mx,2)} op_sel:[0,0,1] op_sel_hi:[1,0,1] neg_lo:[1,0,0] neg_hi:[1,0,0]")
    for k in range(16):
        P(f"v_exp_f32 v{T+k}, v{T+k}")
        P(f"v_exp_f32 v{Pr+k}, v{Pr+k}")
    a, b = tm + 2, tm + 4
    P(f"v_pk_add_f32 {v(a,2)}, {v(T,2)}, {v(T+2,2)}")
    P(f"v_pk_add_f32 {v(b,2)}, {v(Pr,2)}, {v(Pr+2,2)}")
    for k in range(4, 16, 2):
        P(f"v_pk_add_f32 {v(a,2)}, {v(a,2)}, {v(T+k,2)}")
        P(f"v_pk_add_f32 {v(b,2)}, {v(b,2)}, {v(Pr+k,2)}")
    P(f"v_add_f32 v{mx}, v{a}, v{a+1}")
    P(f"v_add_f32 v{mn}, v{b}, v{b+1}")
    P(f"v_rcp_f32 v{mx}, v{mx}")
    P(f"v_rcp_f32 v{mn}, v{mn}")
    for k in range(0, 16, 2):
        P(f"v_pk_mul_f32 {v(T+k,2)}, {v(T+k,2)}, {v(mx,2)} op_sel_hi:[1,0]")
    for k in range(8):
        P(f"v_cvt_pk_bf16_f32 v{T+k}, v{T+2*k}, v{T+2*k+1}")
    for k in range(0, 16, 2):
        P(f"v_pk_mul_f32 {v(Pr+k,2)}, {v(Pr+k,2)}, {v(mx,2)} op_sel:[0,1] op_sel_hi:[1,1]")
    for k in range(8):
        P(f"v_cvt_pk_bf16_f32 v{Pr+k}, v{Pr+2*k}, v{Pr+2*k+1}")


def wphi_frags(P, lane, F, A, t0, t1):
    P(f"v_and_b32 v{t0}, 1, v{lane}")
    P(f"v_lshlrev_b32 v{t0}, 9, v{t0}")
    P(f"v_lshrrev_b32 v{t1}, 5, v{lane}")
    P(f"v_lshl_add_u32 v{t0}, v{t1}, 7, v{t0}")
    P(f"v_bfe_u32 v{t1}, v{lane}, 2, 2")
    P(f"v_lshl_add_u32 v{t0}, v{t1}, 5, v{t0}")
    P(f"v_bfe_u32 v{t1}, v{lane}, 4, 1")
    P(f"v_lshl_add_u32 v{t0}, v{t1}, 4, v{t0}")
    P(f"v_bfe_u32 v{t1}, v{lane}, 1, 1")
    P(f"v_lshl_add_u32 v{t0}, v{t1}, 3, v{t0}")
    P(f"v_add_u32 v{t0}, {WPHI}, v{t0}")
    for p in range(2):
        P(f"ds_read_b64_tr_b16 {v(F+4*p,2)}, v{t0} offset:{p*1024}")
        P(f"ds_read_b64_tr_b16 {v(F+4*p+2,2)}, v{t0} offset:{p*1024+256}")
    P(f"s_mov_b32 s82, 0x0f0f0f0f")
    P(f"s_mov_b32 s83, 0x0f0f0f0f")
    for p in range(2):
        for k in range(4):
            P(f"v_cndmask_b32 v{A+8*p+k}, 0, v{F+4*p+k}, {sMASK}")
            P(f"v_cndmask_b32 v{A+8*p+4+k}, v{F+4*p+k}, 0, {sMASK}")


def gen(cfg):
    segs = []
    log = []
    LA = cfg.LA

    P = Prog()
    P("s_cmp_ge_u32 s2, 256")
    P("s_cbranch_scc1 L_end")
    P("s_load_dwordx16 s[4:19], s[0:1], 0")
    P("s_load_dwordx4 s[20:23], s[0:1], 64")
    P("s_load_dwordx2 s[24:25], s[0:1], 80")
    if cfg.stamps:
        P("s_memrealtime s[98:99]" if cfg.rt else "s_memtime s[98:99]")
    if cfg.stamps or cfg.padT:
        P("s_memrealtime s[96:97]")
    if cfg.codepf:
        P("s_getpc_b64 s[100:101]")
        P.label("L_pcref")
        P(f"s_lshr_b32 {sT0}, s2, 3")
        P(f"s_lshl_b32 {sT0}, {sT0}, 12")
        P(f"s_min_u32 {sT0}, {sT0}, L_codeend-L_pcref-4096")
        P(f"s_add_u32 s100, s100, {sT0}")
        P("s_addc_u32 s101, s101, 0")
        P("v_lshlrev_b32 v1, 3, v0")
        P("global_load_dword v252, v1, s[100:101]")
    P("v_lshrrev_b32 v1, 6, v0")
    P("v_and_b32 v0, 63, v0")
    P(f"v_readfirstlane_b32 {sT4}, v1")
    P(f"s_and_b32 {sT0}, s2, 7")
    P(f"s_lshr_b32 {sT1}, s2, 3")
    if cfg.map84:
        P(f"s_and_b32 {sRB}, {sT0}, 1")
        P(f"s_lshl_b32 {sRB}, {sRB}, 3")
        P(f"s_lshr_b32 {sT2}, {sT1}, 2")
        P(f"s_add_u32 {sRB}, {sRB}, {sT2}")
        P(f"s_bfe_u32 {sTYPE}, {sT1}, 0x10001")
        P(f"s_and_b32 {sJ}, {sT0}, 6")
        P(f"s_and_b32 {sT2}, {sT1}, 1")
        P(f"s_add_u32 {sJ}, {sJ}, {sT2}")
        if cfg.rotm == 0:
            P(f"s_and_b32 {sT2}, {sT1}, 3")
            P(f"s_lshl_b32 {sT2}, {sT2}, 1")
        elif cfg.rotm == 1:
            P(f"s_and_b32 {sT2}, {sT1}, 1")
            P(f"s_lshl_b32 {sT2}, {sT2}, 2")
        elif cfg.rotm == 2:
            P(f"s_and_b32 {sT2}, {sT1}, 3")
            P(f"s_lshl_b32 {sT2}, {sT2}, 1")
            P(f"s_bfe_u32 {sT3}, {sT0}, 0x10001")
            P(f"s_add_u32 {sT2}, {sT2}, {sT3}")
        P(f"s_add_u32 {sROT}, {sRB}, {sT2}")
        P(f"s_and_b32 {sROT}, {sROT}, 7")
    else:
        P(f"s_and_b32 {sRB}, {sT0}, 3")
        P(f"s_lshl_b32 {sRB}, {sRB}, 2")
        P(f"s_lshr_b32 {sT2}, {sT1}, 3")
        P(f"s_add_u32 {sRB}, {sRB}, {sT2}")
        P(f"s_bfe_u32 {sTYPE}, {sT1}, 0x10002")
        P(f"s_and_b32 {sJ}, {sT0}, 4")
        P(f"s_and_b32 {sT3}, {sT1}, 3")
        P(f"s_add_u32 {sJ}, {sJ}, {sT3}")
        P(f"s_lshl_b32 {sT2}, {sT2}, 1")
        P(f"s_add_u32 {sROT}, {sT1}, {sT2}")
        P(f"s_and_b32 {sROT}, {sROT}, 7")
    P(f"s_lshl_b32 {sR2}, {sT0}, 2")
    P(f"s_lshr_b32 {sT2}, {sT1}, 3")
    P(f"s_add_u32 {sR2}, {sR2}, {sT2}")
    P(f"s_and_b32 {sC2}, {sT1}, 7")
    P(f"s_and_b32 {sW}, {sT4}, 3")
    P(f"v_lshlrev_b32 v{vL16}, 4, v0")
    P(f"s_mov_b32 {sHI}, 0xffff0000")
    P(f"s_cmp_ge_u32 {sT4}, 4")
    P("s_cbranch_scc1 L_p2")
    pro, st0 = finalize(P, None, log)
    segs.append(pro)

    stamp_regs = [f"s{i}" for i in range(40, 56)]
    P = Prog()
    ST = Stamps(cfg, stamp_regs)
    if cfg.stamps:
        ST.regs = ["s98"] + stamp_regs; ST.n = 1; ST.names = ["start"]
    NXB = 7
    P("v_lshrrev_b32 v36, 3, v0")
    P("v_lshlrev_b32 v36, 10, v36")
    P("v_lshrrev_b32 v37, 4, v0")
    P("v_and_b32 v38, 7, v0")
    P("v_xor_b32 v38, v38, v37")
    P("v_lshl_add_u32 v32, v38, 4, v36")
    P("v_xor_b32 v33, 64, v32")
    P(f"v_add_u32 v33, {8*1024-1024}, v33")
    P(f"v_add_u32 v34, {16*1024-2048}, v32")
    P(f"v_add_u32 v35, {16*1024-2048}, v33")
    P(f"s_lshl_b32 {sT0}, {sRB}, 2")
    P(f"s_add_u32 {sT0}, {sT0}, {sW}")
    P(f"s_lshl_b32 {sT1}, {sT0}, 15")
    P(f"s_mul_i32 {sT2}, {sW}, {NXB*4096}")
    P(f"s_add_u32 {sT2}, {sT2}, {XB0}")
    P("s_waitcnt lgkmcnt(0)")
    srd(P, SX, 4, 2048 * 1024)
    def xdma(b):
        P(f"s_add_u32 {sT3}, {sROT}, {b}")
        P(f"s_and_b32 {sT3}, {sT3}, 7")
        P(f"s_lshl_b32 {sT3}, {sT3}, 7")
        P(f"s_add_u32 m0, {sT2}, {(b % NXB) * 4096}")
        P(f"s_add_u32 {sT3}, {sT3}, {sT1}")
        for q in range(4):
            P(f"buffer_load_dwordx4 v{32+q}, {SX}, {sT3} offen offset:{q*1024}{NT[cfg.ntx]} lds", tok=f"x{b}")
    for b in range(cfg.xd): xdma(b)
    srd(P, SWS, 24, WS_BYTES)
    srd(P, SDBG, 22, 256)
    P(f"s_mul_i32 s27, {sT0}, {144*1024}")
    P(f"s_lshl_b32 {sT4}, {sT0}, 5")
    P(f"s_lshl_b32 {sT5}, {sTYPE}, 3")
    P(f"s_add_u32 {sT4}, {sT4}, {sT5}")
    P(f"s_add_u32 {sT4}, {sT4}, {sJ}")
    P(f"s_lshl_b32 {sT4}, {sT4}, 7")
    P(f"s_add_u32 s88, {sT4}, {FLAGH_OFF}")
    P(f"s_mov_b32 {sC1}, {NLOG2E:#x}")
    P(f"s_mov_b32 {sC2K}, {LOG2E:#x}")
    P("v_and_b32 v36, 31, v0")
    P("v_lshlrev_b32 v37, 7, v36")
    P("v_bfe_u32 v38, v0, 1, 3")
    P("v_lshrrev_b32 v39, 5, v0")
    P("v_xor_b32 v38, v38, v39")
    P("v_lshl_add_u32 v37, v38, 4, v37")
    P(f"v_add_u32 v40, {sT2}, v37")
    for t in range(1, 4):
        P(f"v_xor_b32 v{40+t}, {32*t}, v40")
    p1_common(P)
    p1_taddr(P, "pair")
    P("v_mov_b32 v44, 0x3f803f80")
    for k in range(4): P(f"v_mov_b32 v{48+k}, 0")
    def dots(bb):
        for r in range(16):
            reg = XR(4 * bb) + r
            P(f"v_dot2c_f32_bf16 v{48+2*(r&1)}, v{reg}, v44")
            P(f"v_dot2c_f32_bf16 v{49+2*(r&1)}, v{reg}, v{reg}")
    NC = cfg.nc
    def ln_task(t):
        tb = 96 + 8 * (t & 3)
        U, F, C = Prog(), Prog(), Prog()
        for d in range(4):
            if t // 4 >= NC:
                U(f"v_lshlrev_b32 v{tb+2*d}, 16, v{XR(t)+d}")
                U(f"v_and_b32 v{tb+2*d+1}, {sHI}, v{XR(t)+d}")
                F(f"v_fma_f32 v{tb+2*d}, v{tb+2*d}, v{vRS}, -v{vMR}")
                F(f"v_fma_f32 v{tb+2*d+1}, v{tb+2*d+1}, v{vRS}, -v{vMR}")
            else:
                F(f"v_fma_mix_f32 v{tb+2*d}, v{XR(t)+d}, v{vRS}, -v{vMR} op_sel_hi:[1,0,0]")
                F(f"v_fma_mix_f32 v{tb+2*d+1}, v{XR(t)+d}, v{vRS}, -v{vMR} op_sel:[1,0,0] op_sel_hi:[1,0,0]")
            C(f"v_cvt_pk_bf16_f32 v{XR(t)+d}, v{tb+2*d}, v{tb+2*d+1}")
        return U.ins, F.ins, C.ins
    def tof16(bb):
        for r0 in range(0, 16, 4):
            for r in range(r0, r0 + 4):
                reg = XR(4 * bb) + r
                P(f"v_lshlrev_b32 v{56+2*(r&3)}, 16, v{reg}")
                P(f"v_and_b32 v{57+2*(r&3)}, {sHI}, v{reg}")
            for r in range(r0, r0 + 4):
                P(f"v_cvt_pk_f16_f32 v{XR(4*bb)+r}, v{56+2*(r&3)}, v{57+2*(r&3)}")
    for b in range(8):
        if b + cfg.xd < 8:
            if b + cfg.xd >= NXB: P.wait(f"xr{b+cfg.xd-NXB}")
            xdma(b + cfg.xd)
        P.wait(f"x{b}")
        for t in range(4):
            P(f"ds_read_b128 {v(XR(4*b+t),4)}, v{40+t} offset:{(b%NXB)*4096}", tok=f"xr{b}")
        if b >= 1:
            dots(b - 1)
            if b - 1 < NC: tof16(b - 1)
        if b == 2 and NC == 0:
            for t in range(3): P.extend(ln_task(t)[0])
    P.wait("xr7")
    P(f"s_mov_b32 s84, {sT1}")
    ST(P, "xdone")
    P("s_barrier")
    P(f"s_cmp_eq_u32 {sTYPE}, 1")
    P("s_cbranch_scc1 L_p1t2")
    p1a, stA = finalize(P, st0, log)
    segs.append(p1a)
    fb_text = []
    def stats_fin(P_):
        nonlocal P
        P = P_
        P(f"buffer_load_dword v11, off, {SDBG}, 0 sc1")
        dots(7)
        P("v_pk_add_f32 v[48:49], v[48:49], v[50:51]")
        P("v_mov_b32 v50, v48")
        P("v_mov_b32 v51, v49")
        P("v_permlane32_swap_b32 v48, v50")
        P("v_permlane32_swap_b32 v49, v51")
        P("v_pk_add_f32 v[48:49], v[48:49], v[50:51]")
        if NC:
            P("v_mov_b32 v52, v49")
            P("v_cmp_nge_f32 vcc, 0x4f000000, v49")
        P("v_mul_f32 v48, 0x3b000000, v48")
        P("v_mul_f32 v49, 0x3b000000, v49")
        P("v_fma_f32 v49, -v48, v48, v49")
        P("v_max_f32 v49, 0, v49")
        P("v_add_f32 v49, 0x3727c5ac, v49")
        P(f"v_rsq_f32 v{vRS}, v49")
        P(f"v_mul_f32 v{vMR}, v48, v{vRS}")
        if NC:
            Lf, Lr = newlabel("fb"), newlabel("fbr")
            P("s_cmp_lg_u64 vcc, 0")
            P(f"s_cbranch_scc1 {Lf}")
            P.label(Lr)
            T = Prog()
            T.label(Lf)
            T("v_frexp_exp_i32_f32 v53, v52")
            T("v_add_u32 v53, 1, v53")
            T("v_ashrrev_i32 v53, 1, v53")
            T("v_subrev_u32 v53, 14, v53")
            T("v_max_i32 v53, 0, v53")
            T("v_sub_u32 v54, 0, v53")
            T(f"v_ldexp_f32 v{vRS}, v{vRS}, v53")
            T("v_and_b32 v55, 31, v0")
            T("v_lshlrev_b32 v55, 10, v55")
            T("v_lshrrev_b32 v56, 5, v0")
            T("v_lshl_add_u32 v55, v56, 4, v55")
            for b in range(8):
                T(f"s_add_u32 {sT3}, {sROT}, {b}")
                T(f"s_and_b32 {sT3}, {sT3}, 7")
                T(f"s_lshl_b32 {sT3}, {sT3}, 7")
                T(f"s_add_u32 {sT3}, {sT3}, s84")
                for t in range(4):
                    T(f"buffer_load_dwordx4 {v(XR(4*b+t),4)}, v55, {SX}, {sT3} offen offset:{32*t}")
            T("s_waitcnt vmcnt(0)")
            for r in range(128):
                reg = X0 + r
                T(f"v_lshlrev_b32 v56, 16, v{reg}")
                T(f"v_and_b32 v57, {sHI}, v{reg}")
                T("v_ldexp_f32 v56, v56, v54")
                T("v_ldexp_f32 v57, v57, v54")
                T(f"{'v_cvt_pk_f16_f32' if r // 16 < NC else 'v_cvt_pk_bf16_f32'} v{reg}, v56, v57")
            T(f"s_branch {Lr}")
            fb_text.append(text_of(T.ins))
        LN = [ln_task(t) for t in range(32)]
        P.extend(LN[0][1]); P.extend(LN[0][2])
        P.extend(LN[1][1])
        return LN

    sched = []
    NM = 320
    last_read_of_stage = {}
    first_use = {}
    last_use = {}
    def add_pass4(pid, stage0, sets, skew, stag):
        order = []
        if skew == 2:
            for tp in (0, 2):
                for c in (0, 1):
                    for tl in (tp, tp + 1):
                        for kk in range(4): order.append((c, kk, tl))
        elif skew == 1:
            for tl in range(4):
                for kk in range(4): order.append((0, kk, tl))
        for c in range(skew, 8 - abs(stag)):
            for kk in range(4):
                for tl in range(4): order.append((c, kk, tl))
        if stag:
            for tl in ((0, 1, 2, 3) if stag > 0 else (1, 0, 2, 3)):
                for c in range(8 - abs(stag), 8):
                    for kk in range(4): order.append((c, kk, tl))
        for (c, kk, tl) in order:
            sched.append((stage0 + c, kk * 2048, tl, sets[tl], 4 * c + kk, c == 0 and kk == 0, pid))
    def add_pass2(pid, stage0, sets, stag=0):
        if stag == 2:
            for cc in range(2):
                for (hh, kk, tl) in [(hh, kk, tl) for hh in range(2) for kk in range(4) for tl in range(2)]:
                    sched.append((stage0 + cc, kk * 2048, 2 * hh + tl, sets[tl], 8 * cc + 4 * hh + kk, cc == 0 and hh == 0 and kk == 0, pid))
            for tl in range(2):
                for cc in (2, 3):
                    for hh in range(2):
                        for kk in range(4):
                            sched.append((stage0 + cc, kk * 2048, 2 * hh + tl, sets[tl], 8 * cc + 4 * hh + kk, False, pid))
            return
        for cc in range(4):
            o = [(hh, kk, tl) for hh in range(2) for kk in range(4) for tl in range(2)]
            if stag and cc == 3:
                o = [(hh, kk, tl) for tl in range(2) for hh in range(2) for kk in range(4)]
            for (hh, kk, tl) in o:
                sched.append((stage0 + cc, kk * 2048, 2 * hh + tl, sets[tl], 8 * cc + 4 * hh + kk, cc == 0 and hh == 0 and kk == 0, pid))
    S0, S1, S2_, S3, S4, S5 = SET
    def build_sched(typ):
        del sched[:]
        if typ == 0:
            add_pass4(0, 0, [S0, S1, S2_, S3], 0, -1)
            add_pass4(1, 8, [S0, S1, S2_, S3], 0, 1)
            add_pass2(2, 16, [S4, S5], cfg.stag1)
        else:
            add_pass2(0, 0, [S0, S1])
            add_pass4(1, 4, [S2_, S3, S4, S5], 0, 1)
            add_pass4(2, 12, [S0, S1, S2_, S3], 2, cfg.stag2)
        assert len(sched) == NM
        first_use.clear(); last_use.clear()
        for n, e in enumerate(sched):
            last_read_of_stage[e[0]] = n
            first_use.setdefault((e[6], e[3]), n)
            last_use[(e[6], e[3])] = n

    def reads(n):
        stage, off, tl, S, xt, first, pid = sched[n]
        fb = FR0 + 4 * (n % LA)
        o = ((stage % 4) if stage < 18 else stage - 16) * SLOT + off
        return [Ins(f"ds_read_b64_tr_b16 {v(fb,2)}, v{TA[tl]} offset:{o}", tok=f"fr{n}a"),
                Ins(f"ds_read_b64_tr_b16 {v(fb+2,2)}, v{TA[tl]} offset:{o+512}", tok=f"fr{n}")]

    passed = [0]
    def group(n, pre_reads=None, lim=NM):
        stage, off, tl, S, xt, first, pid = sched[n]
        fb = FR0 + 4 * (n % LA)
        g = []
        c = "0" if first else v(S, 16)
        g.append(Ins(f"v_mfma_f32_32x32x16_bf16 {v(S,16)}, {v(fb,4)}, {v(XR(xt),4)}, {c}"))
        m = n + LA
        if m < lim:
            ns = sched[m][0]
            if ns > passed[0]:
                assert ns == passed[0] + 1
                if ns >= 2:
                    g.append(Ins("WAIT", waitfor=[f"fr{last_read_of_stage[ns-2]}"]))
                if pre_reads and ns in pre_reads:
                    g.extend(pre_reads[ns])
                if ns < 18:
                    g.append(Ins("s_barrier"))
                else:
                    g.append(Ins(f"ds_write_b32 v8, v9 offset:{16*(ns-18)}"))
                    if ns == 18:
                        for t in range(4): g.append(Ins(f"v_add_u32 v{TA[t]}, 0x10000, v{TA[t]}"))
                passed[0] = ns
            g.extend(reads(m))
        if n % 2 == 1 and n + 2 < lim:
            g.append(Ins("WAIT", waitfor=[f"fr{n+2}"]))
        return g
    BIG = 10 ** 6

    def p1_rest(typ):
        P = Prog()
        S2 = ST.fork()
        passed[0] = 0
        build_sched(typ)
        def run(lo, hi, tasks, pre, cap, lim=NM):
            groups = [group(n, pre, lim) for n in range(lo, hi)]
            t2 = [(max(r - lo, 0), d - lo, l) for (r, d, l) in tasks]
            body, rest = weave(groups, t2, cap)
            P.extend(body)
            return rest
        def progsetup():
            P(f"s_lshl_b32 {sT4}, {sW}, 2")
            P(f"s_add_u32 {sT4}, {sT4}, {LFLAG}")
            P(f"v_mov_b32 v8, {sT4}")
            P(f"v_mov_b32 v9, 1")
        def ringdone():
            P(f"ds_write_b32 v8, v9 offset:32")
        def ln_pass(LN, ng, nend, lim):
            fill = []
            for t in range(32):
                for g in range(ng):
                    a, b = 4 // ng, 8 // ng
                    f = []
                    if t + 1 < 32: f += LN[t + 1][2][a * g:a * g + a]
                    if t + 2 < 32: f += LN[t + 2][1][b * g:b * g + b]
                    if t + 3 < 32: f += LN[t + 3][0][b * g:b * g + b]
                    fill.append(f)
            for n in range(nend):
                P.extend(group(n, None, lim))
                P.extend(fill[n])
            for f in fill[nend:]: P.extend(f)
        if typ == 1: P.label("L_p1t2")
        for n in range(LA): P.extend(reads(n))
        LN = stats_fin(P)
        if typ == 1:
            P(f"s_lshl_b32 {sT1}, {sJ}, 13")
            P(f"s_add_u32 {sT1}, {sT1}, s27")
            P(f"s_add_u32 {sT2}, {sT1}, 4096")
            P(f"s_lshl_b32 {sT4}, {sW}, 12")
            P(f"s_add_u32 {sT4}, {sT4}, {7*SLOT}")
            ln_pass(LN, 2, 64 - LA, NM)
            poll_nonce(P, cfg, "v11")
            S2(P, "passQ")
            p1_taddr(P, "gu")
            P(f"v_add_u32 v10, {sT4}, v{vL16}")
            progsetup()
            pre = {}; tasks = []
            Q = Prog()
            for i, S in enumerate((S0, S1)):
                for k in range(8): Q(f"v_cvt_pk_bf16_f32 v{S+k}, v{S+2*k}, v{S+2*k+1}")
                Q(f"ds_write_b128 v10, {v(S,4)} offset:{2048*i}")
                Q(f"ds_write_b128 v10, {v(S+4,4)} offset:{2048*i+1024}", tok=f"evacQ{i}")
            tasks.append((65, 16 * cfg.qb - LA - 2, Q.ins))
            pre[cfg.qb] = [Ins("WAIT", waitfor=["evacQ1"])]
            Q = Prog(); tag_setup(Q, TG1, sTM)
            tasks.append((90, BIG, Q.ins))
            for i, S in enumerate((S2_, S3, S4, S5)):
                dl = first_use.get((2, S), BIG)
                tasks.append((last_use[(1, S)] + 2, dl, sigmoid_task(S, sT1, 1024 * i, f"hA{i}")))
            for i, S in enumerate((S0, S1, S2_, S3)):
                tasks.append((last_use[(2, S)] + 2, BIG, sigmoid_task(S, sT2, 1024 * i, f"hB{i}")))
            rest = run(64 - LA, NM, tasks, pre, cfg.cap2)
            ringdone()
            S2(P, "gemm")
            P.extend(rest)
        else:
            P(f"s_mul_i32 {sT1}, {sJ}, 6144")
            P(f"s_add_u32 {sT1}, {sT1}, s27")
            P(f"s_add_u32 {sT1}, {sT1}, {64*1024}")
            P(f"s_and_b32 {sT3}, {sJ}, 1")
            P(f"s_lshl_b32 {sT2}, {sT3}, 11")
            P(f"s_add_u32 {sT2}, {sT2}, {sT1}")
            P(f"s_xor_b32 {sT3}, {sT3}, 1")
            P(f"s_lshl_b32 {sT3}, {sT3}, 12")
            P(f"s_add_u32 {sT3}, {sT3}, {sT1}")
            P(f"s_lshl_b32 {sT4}, {sW}, 11")
            P(f"s_add_u32 {sT4}, {sT4}, {PHI}")
            ln_pass(LN, 4, 112, 128)
            poll_nonce(P, cfg, "v11")
            tasks = []
            AD = S5 + 8
            Q = Prog()
            Q(f"v_add_u32 v3, {WF}, v{vL16}")
            Q(f"v_add_u32 v{AD+2}, {sT4}, v{vL16}")
            Q(f"ds_read_b128 {v(S5,4)}, v3")
            Q(f"ds_read_b128 {v(S5+4,4)}, v3 offset:1024")
            Q(f"v_and_b32 v2, 31, v0")
            Q(f"v_lshlrev_b32 v2, 6, v2")
            Q(f"v_bfe_u32 v11, v0, 1, 2")
            Q(f"v_lshl_add_u32 v2, v11, 4, v2")
            Q(f"v_add_u32 v2, {sT4}, v2")
            Q(f"v_and_b32 v11, 32, v0")
            Q(f"v_xor_b32 v{AD}, v2, v11")
            Q(f"v_add_u32 v{AD}, {VIMG-PHI}, v{AD}")
            Q(f"v_xor_b32 v{AD+1}, 16, v{AD}")
            Q("v_lshl_add_u32 v2, v11, 8, v2")
            Q("v_xor_b32 v3, 16, v2")
            Q("v_xor_b32 v10, 32, v2")
            Q("v_xor_b32 v11, 48, v2")
            tasks.append((112, BIG, Q.ins))
            Q = Prog()
            for k in range(8): Q(f"v_cvt_pk_bf16_f32 v{S1+k}, v{S1+2*k}, v{S1+2*k+1}")
            Q(f"ds_write_b128 v{AD+2}, {v(S1,4)} offset:{2*8192}")
            Q(f"ds_write_b128 v{AD+2}, {v(S1+4,4)} offset:{3*8192}", tok="evacK")
            tasks.append((last_use[(0, S1)] + 2, BIG, Q.ins))
            Q = Prog()
            for k in range(8): Q(f"v_cvt_pk_bf16_f32 v{S0+k}, v{S0+2*k}, v{S0+2*k+1}")
            tasks.append((last_use[(0, S0)] + 2, BIG, Q.ins))
            Q = Prog()
            for k in range(8): Q(f"v_cvt_pk_bf16_f32 v{S2_+k}, v{S2_+2*k}, v{S2_+2*k+1}")
            tasks.append((last_use[(0, S2_)] + 2, BIG, Q.ins))
            rest = run(112, 128, tasks, {}, cfg.cap + 1, lim=128)
            P.extend(rest)
            P(f"v_mfma_f32_32x32x16_bf16 {v(S4,16)}, {v(S5,4)}, {v(S0,4)}, 0")
            P(f"v_mfma_f32_32x32x16_bf16 {v(S4,16)}, {v(S5+4,4)}, {v(S0+4,4)}, {v(S4,16)}")
            P.wait("evacK")
            P("s_barrier")
            passed[0] = 8
            S2(P, "passKV")
            for k in range(8): P(f"v_cvt_pk_bf16_f32 v{S3+k}, v{S3+2*k}, v{S3+2*k+1}")
            for i, S in enumerate((S2_, S3)):
                P(f"ds_write_b128 v{AD}, {v(S,4)} offset:{i*8192}")
                P(f"ds_write_b128 v{AD+1}, {v(S+4,4)} offset:{i*8192}")
            p1_taddr(P, "gu")
            Q = Prog()
            softmax_pk(Q, S4, S1, AD + 2, "s[26:27]")
            P.extend(Q.ins[:-16])
            P(f"ds_write_b128 v2, {v(S1,4)}")
            P(f"ds_write_b128 v3, {v(S1+4,4)}")
            for n in range(128, 128 + LA): P.extend(reads(n))
            P.extend(Q.ins[-16:])
            P(f"ds_write_b128 v10, {v(S4,4)}")
            P(f"ds_write_b128 v11, {v(S4+4,4)}", tok="phi0")
            if cfg.kvb:
                P.wait("phi0"); P("s_barrier")
            S2(P, "burst")
            pre = {9: [Ins("WAIT", waitfor=["phi0"])]}
            g4 = (S0, S1, S2_, S3)
            E = [(last_use[(1, S)] + 2, BIG, sigmoid_task(S, sT2, 1024 * i, f"hB{i}")) for i, S in enumerate(g4)]
            Q = Prog(); tag_setup(Q, TG1, sTM)
            rest = run(128, 256 - LA, [(150, BIG, Q.ins)] + E[:1], pre, cfg.cap)
            S2(P, "passG")
            p1_taddr(P, "pair")
            progsetup()
            tasks = [(0, BIG, rest)] + E[1:]
            tasks += [(last_use[(2, S)] + 2, BIG, sigmoid_task(S, sT3, 1024 * i, f"hC{i}")) for i, S in enumerate((S4, S5))]
            rest = run(256 - LA, NM, tasks, {}, cfg.capC)
            ringdone()
            S2(P, "gemm")
            P.extend(rest)
        if cfg.hold: P("ds_write_b32 v8, v9 offset:64")
        S2(P, "end")
        S2.dump(P, 0)
        P("s_endpgm")
        r, _ = finalize(P, stA, log)
        return r, S2.names
    p1t1, names_p1t1 = p1_rest(0)
    p1t2, names_p1t2 = p1_rest(1)
    segs.append(p1t1); segs.append(p1t2)

    VW = [2, 3, 4, 5]; VB = [6, 7]; TB = [8, 9]; VA = [10, 11]
    ACC = 16; RING = 80; B2R = 112
    sJ0, sJ1 = "s88", "s89"
    sKK = ["s90", "s91", "s92", "s93"]
    sHB2 = sT5
    p2_stamp_regs = [f"s{i}" for i in list(range(16, 22)) + [25, 60, 61, 62, 63, 36, 37, 38, 39]]

    P = Prog()
    P.label("L_p2")
    ST2 = Stamps(cfg, p2_stamp_regs)
    if cfg.stamps:
        ST2.regs = ["s98"] + p2_stamp_regs; ST2.n = 1; ST2.names = ["start"]
    P("v_lshrrev_b32 v12, 3, v0")
    P("v_and_b32 v13, 7, v0")
    P("v_lshlrev_b32 v13, 4, v13")
    P("v_bfe_u32 v14, v0, 4, 1")
    P("v_lshlrev_b32 v14, 6, v14")
    P("v_xor_b32 v13, v13, v14")
    def wvoff(P, pitch, kind="norm"):
        P(f"s_lshl_b32 {sT0}, {sW}, 4")
        P(f"v_add_u32 v14, {sT0}, v12")
        P(f"v_mul_u32_u24 v14, {pitch}, v14")
        if kind == "norm":
            P(f"v_add_u32 v{VW[0]}, v14, v13")
            P(f"v_xor_b32 v15, 32, v13")
            P(f"v_add_u32 v{VW[2]}, v14, v15")
        else:
            P(f"v_lshrrev_b32 v15, 1, v13")
            P(f"v_and_b32 v15, 32, v15")
            P(f"v_add_u32 v14, v14, v15")
            P(f"v_and_b32 v15, 16, v13")
            P(f"v_add_u32 v{VW[0]}, v14, v15")
            P(f"v_mov_b32 v{VW[2]}, v{VW[0]}")
        P(f"v_add_u32 v{VW[1]}, {8*pitch-1024}, v{VW[0]}")
        P(f"v_add_u32 v{VW[3]}, {8*pitch-1024}, v{VW[2]}")
    P("s_waitcnt lgkmcnt(0)")
    srd(P, SQKV, 6, 512 * 3072)
    srd(P, SX, 4, 2048 * 1024)
    srd(P, SG, 14, 512 * 3584)
    srd(P, SU, 16, 512 * 3584)
    P(f"s_cmp_eq_u32 {sTYPE}, 1")
    P("s_cbranch_scc1 L_p2t2")
    p2pro, st2 = finalize(P, st0, log)
    segs.append(p2pro)

    def p2_rest(typ):
        P = Prog()
        S2 = ST2.fork()
        if typ == 1: P.label("L_p2t2")
        sCL = "s3"
        sM0 = "s27"
        passes = [(0, 8, "KV"), (8, 8, "G4"), (16, 4, "G2")] if typ == 0 else [(0, 4, "Q"), (4, 8, "Ga"), (12, 8, "Gb")]

        def set_pass(kind):
            if kind in ("KV", "Q"):
                wvoff(P, 3072)
                P(f"s_lshl_b32 {sCL}, {sJ}, 7")
                if kind == "KV":
                    P(f"s_add_u32 {sCL}, {sCL}, 1024")
                    P(f"v_add_u32 v{VW[2]}, 1024, v{VW[2]}")
                    P(f"v_add_u32 v{VW[3]}, 1024, v{VW[3]}")
            elif kind == "G4":
                wvoff(P, 3584)
                P(f"s_mul_i32 {sCL}, {sJ}, 192")
                P(f"s_and_b32 {sT0}, {sJ}, 1")
                P(f"s_lshl_b32 {sT0}, {sT0}, 6")
                P(f"s_add_u32 {sCL}, {sCL}, {sT0}")
                P(f"s_add_u32 {sCL}, {sCL}, 2048")
            elif kind == "G2":
                P(f"s_lshl_b32 {sT0}, {sW}, 4")
                P(f"v_add_u32 v14, {sT0}, v12")
                P(f"v_mul_u32_u24 v14, 3584, v14")
                P(f"v_lshrrev_b32 v15, 1, v13")
                P(f"v_and_b32 v15, 32, v15")
                P(f"v_add_u32 v14, v14, v15")
                P(f"v_and_b32 v15, 16, v13")
                P(f"v_add_u32 v14, v14, v15")
                P(f"v_add_u32 v15, {8*3584-1024}, v14")
                P(f"s_mul_i32 s26, {sJ}, 192")
                P(f"s_and_b32 {sT0}, {sJ}, 1")
                P(f"s_xor_b32 {sT0}, {sT0}, 1")
                P(f"s_lshl_b32 {sT0}, {sT0}, 7")
                P(f"s_add_u32 s26, s26, {sT0}")
                P(f"s_add_u32 s26, s26, 2048")
            elif kind == "Ga":
                wvoff(P, 3584)
                P(f"s_lshl_b32 {sCL}, {sJ}, 8")
            elif kind == "Gb":
                P(f"s_add_u32 {sCL}, {sCL}, 128")

        seen_pass = set()
        def wchunk(s, sides=(0, 1)):
            s0, ns, kind = [p for p in passes if p[0] <= s < p[0] + p[1]][0]
            if kind not in seen_pass:
                set_pass(kind); seen_pass.add(kind)
            isqkv = kind in ("KV", "Q")
            pitch = 3072 if isqkv else 3584
            for side in sides:
                b = (s - s0) if ns == 8 else 2 * (s - s0) + side
                if side == 0 or ns == 4:
                    P(f"s_add_u32 {sT0}, {sROT}, {b}")
                    P(f"s_and_b32 {sT0}, {sT0}, 7")
                    P(f"s_mul_i32 {sT0}, {sT0}, {64*pitch}")
                    P(f"s_add_u32 {sT1}, {sT0}, {'s26' if kind == 'G2' else sCL}")
                if s >= cfg.skipw: P(f"s_mov_b32 {sT1}, 0x7f000000")
                P(f"s_add_u32 m0, {sM0}, {((s % 4) if s < 18 else s - 12) * SLOT + side * 8192}")
                if kind == "G2":
                    for mat in range(2):
                        mk = "s[100:101]" if (mat ^ side) == 0 else "s[84:85]"
                        P(f"s_mov_b64 exec, {mk}")
                        for q in range(2):
                            P(f"buffer_load_dwordx4 v{14+q}, {SU if mat else SG}, {sT1} offen offset:{1024*q}{NT[cfg.ntw]} lds", tok=f"w{s}")
                    P("s_mov_b64 exec, -1")
                else:
                    sr = SQKV if isqkv else (SU if side else SG)
                    for q in range(2):
                        P(f"buffer_load_dwordx4 v{VW[2*side+q]}, {sr}, {sT1} offen offset:{1024*q}{NT[cfg.ntw]} lds", tok=f"w{s}")

        P(f"s_lshl_b32 {sM0}, {sW}, 11")
        srd(P, SPHI, 8, 32 * 512)
        srd(P, SWS, 24, WS_BYTES)
        srd(P, SDBG, 22, 256)
        srd(P, SD, 18, 1792 * 1024)
        srd(P, SO, 10, 512 * 1024)
        srd(P, SOUT, 20, 2048 * 1024)
        P(f"s_mov_b32 s24, {LOG2E:#x}")
        P(f"s_lshl_b32 {sJ0}, {sW}, 1")
        P(f"s_add_u32 {sJ0}, {sJ0}, {sC2}")
        P(f"s_add_u32 {sJ1}, {sJ0}, 1")
        P(f"s_and_b32 {sJ0}, {sJ0}, 7")
        P(f"s_and_b32 {sJ1}, {sJ1}, 7")
        P(f"s_lshr_b32 {sT0}, {sC2}, 1")
        P(f"s_add_u32 {sT0}, {sT0}, {sR2}")
        for t in range(4):
            P(f"s_add_u32 {sKK[t]}, {sT0}, {t}")
            P(f"s_and_b32 {sKK[t]}, {sKK[t]}, 3")
        P(f"s_mul_i32 {sHB2}, {sR2}, {2*144*1024}")
        P(f"s_lshl_b32 {sT0}, {sC2}, 7")
        P(f"v_lshl_add_u32 v{VB[0]}, v12, 10, v13")
        P(f"v_add_u32 v{VB[0]}, {sT0}, v{VB[0]}")
        P(f"v_add_u32 v{VB[1]}, {7*1024}, v{VB[0]}")
        P("v_lshrrev_b32 v14, 5, v0")
        P("v_lshlrev_b32 v14, 9, v14")
        P("v_bfe_u32 v15, v0, 2, 2")
        P("v_lshl_add_u32 v14, v15, 7, v14")
        P("v_bfe_u32 v15, v0, 3, 1")
        P("v_lshl_add_u32 v14, v15, 6, v14")
        P("v_bfe_u32 v15, v0, 4, 1")
        P("v_lshl_add_u32 v14, v15, 5, v14")
        P("v_and_b32 v15, 3, v0")
        P("v_lshl_add_u32 v14, v15, 3, v14")
        P(f"s_and_b32 {sT0}, {sW}, 1")
        P(f"s_lshl_b32 {sT0}, {sT0}, 6")
        P(f"v_xor_b32 v14, {sT0}, v14")
        P(f"s_lshl_b32 {sT0}, {sW}, 12")
        P(f"s_add_u32 {sT0}, {sT0}, {4*SLOT}")
        P(f"v_add_u32 v{TB[0]}, {sT0}, v14")
        P(f"v_xor_b32 v{TB[1]}, 64, v{TB[0]}")
        P(f"s_lshr_b32 {sT0}, {sW}, 1")
        P(f"s_mul_i32 {sT1}, {sT0}, {144*1024}")
        P(f"s_sub_u32 {sT2}, {144*1024}, {sT1}")
        P(f"s_add_u32 {sT1}, {sT1}, {sHB2}")
        P(f"s_add_u32 {sT2}, {sT2}, {sHB2}")
        P(f"v_add_u32 v{VA[0]}, {sT1}, v1")
        P(f"v_add_u32 v{VA[1]}, {sT2}, v1")

        def kind_slots(cls, kind, nt=4):
            return [(cls, kind, jsel, t) for jsel in range(2) for t in range(nt)]
        slots = kind_slots(1, "A") + kind_slots(2, "B1") + kind_slots(2, "O") + kind_slots(2, "C1", 2) + kind_slots(2, "B2")
        assert len(slots) == 36
        KB = {(k, j): f"s{4 + 2*i + j}" for i, k in enumerate(("A", "B2", "B1", "C1", "O")) for j in range(2)}
        sKK1 = ["s14", "s15"]
        for j, sj in enumerate((sJ0, sJ1)):
            P(f"s_lshl_b32 {KB['A', j]}, {sj}, 13")
            P(f"s_add_u32 {KB['B2', j]}, {KB['A', j]}, 4096")
            P(f"s_lshl_b32 {KB['O', j]}, {sj}, 12")
            P(f"s_mul_i32 {sT0}, {sj}, 6144")
            P(f"s_and_b32 {sT1}, {sj}, 1")
            P(f"s_lshl_b32 {sT2}, {sT1}, 11")
            P(f"s_add_u32 {KB['B1', j]}, {sT0}, {sT2}")
            P(f"s_add_u32 {KB['B1', j]}, {KB['B1', j]}, {64*1024}")
            P(f"s_lshl_b32 {sT2}, {sT1}, 12")
            P(f"s_sub_u32 {KB['C1', j]}, {sT0}, {sT2}")
            P(f"s_add_u32 {KB['C1', j]}, {KB['C1', j]}, {68*1024}")
        for t in range(4): P(f"s_lshl_b32 {sKK[t]}, {sKK[t]}, 10")
        for t in range(2): P(f"s_and_b32 {sKK1[t]}, {sKK[t]}, 1024")
        P(f"s_lshl_b32 s99, {sW}, 12")

        def ks_to(P, sg, dst):
            cls, kind, jsel, t = slots[sg]
            P(f"s_add_u32 {dst}, {KB[kind, jsel]}, {sKK1[t] if kind == 'C1' else sKK[t]}")

        stagepos = {}
        def b2pos(sg):
            if sg < 18: return stagepos[sg]
            k = sg - 18
            return [8, 4, 5, 2, 3, 0, 1, 6, 7][k // 2] * SLOT + (k % 2) * 2048

        thr_on = [False]
        def throttle():
            if thr_on[0] and cfg.thr: P(f"s_waitcnt vmcnt({cfg.thr})")
        vmlog = []
        def b2dma(sg, P_=None):
            if P_ is None:
                throttle(); vmlog.append(("b", sg))
                b2dma_(P, sg)
            else:
                b2dma_(P_, sg)
        def b2dma_(P, sg):
            ks_to(P, sg, sT2)
            P(f"s_add_u32 m0, s99, {b2pos(sg)}")
            if cfg.b2hit: P(f"s_and_b32 {sT2}, {sT2}, 0x7fff")
            P(f"s_lshl_b32 {sT2}, {sT2}, 4")
            sr = SO if slots[sg][1] == "O" and not cfg.b2hit else SD
            if sg >= cfg.skipb: P(f"s_mov_b32 {sT2}, 0x7f000000")
            for q in range(2):
                P(f"buffer_load_dwordx4 v{VB[q]}, {sr}, {sT2} offen offset:{1024*q}{NT[cfg.ntb]} lds", tok=f"b{sg}")

        def b2touch(sg):
            junk = 16 if typ == 0 else 232
            ks_to(P, sg, sT2)
            P(f"s_lshl_b32 {sT2}, {sT2}, 4")
            sr = SO if slots[sg][1] == "O" else SD
            for q in range(2):
                P(f"buffer_load_dword v{junk+touchn[0]%16}, v{VB[q]}, {sr}, {sT2} offen offset:{1024*q}")
                touchn[0] += 1
        touchn = [0]
        tb_base = [4 * SLOT]
        def b2read(sg, regs):
            pos = b2pos(sg)
            want = (pos // (4 * SLOT)) * 4 * SLOT
            if want != tb_base[0]:
                d = want - tb_base[0]
                for ct in range(2):
                    if d > 0: P(f"v_add_u32 v{TB[ct]}, {d}, v{TB[ct]}")
                    else: P(f"v_subrev_u32 v{TB[ct]}, {-d}, v{TB[ct]}")
                tb_base[0] = want
            o = pos - want
            P.wait(f"b{sg}")
            for ct in range(2):
                P(f"ds_read_b64_tr_b16 {v(regs[ct],2)}, v{TB[ct]} offset:{o}")
                P(f"ds_read_b64_tr_b16 {v(regs[ct]+2,2)}, v{TB[ct]} offset:{o+1024}", tok=f"br{sg}")

        per = cfg.per2 if typ == 1 else cfg.per1
        def poswin(pos, final):
            sl = pos // SLOT
            if sl == 8: return (0, 5) if not final else ((10, 99) if typ == 0 else (0, 99))
            if sl in (4, 5): return (0, 99)
            if sl == 2: return (16, 99)
        occupant = {}
        stg = [8 * SLOT, 8 * SLOT + 2048, 4 * SLOT, 4 * SLOT + 2048, 5 * SLOT, 5 * SLOT + 2048]
        todo_reg = sorted(range(18), key=lambda x: (x >= 15 and typ == 1, slots[x][3] != 0, x)) if cfg.tmajor else list(range(18))
        todo_fin = list(range(18, 26))
        readdone = set()
        pend_reads = []
        defer = {15: 99, 16: 99, 17: 99} if typ == 1 else {}
        extra = {}
        first = {}
        last = {}
        def vpart(lst):
            if cfg.vprio: P(f"s_setprio {cfg.vprio}")
            P.extend(lst)
            if cfg.vprio: P("s_setprio 0")
        def split(smi, nparts):
            tot = sum(i.cost for i in smi)
            parts = [[] for _ in range(nparts)]
            acc = 0
            for i in smi:
                parts[min(nparts - 1, acc * nparts // tot)].append(i); acc += i.cost
            return parts

        fillv = "0x3f803f80" if typ == 0 else "0"
        for k in range(4): P(f"v_mov_b32 v{16+k}, {fillv}")
        for k in range(4): P(f"v_mov_b32 v{20+k}, 0")
        P(f"v_add_u32 v14, {sM0}, v1")
        P(f"v_add_u32 v14, {KVF}, v14")
        P(f"ds_write_b128 v14, v[16:19]")
        P(f"ds_write_b128 v14, v[16:19] offset:1024")
        P(f"v_add_u32 v14, {ZL}, v1")
        P(f"ds_write_b128 v14, v[20:23]")
        if typ == 0:
            KF = 16; A1 = 24; PP = 32; TT = 48; TM = 96; VF = 64
            P(f"s_lshl_b32 {sT0}, {sW}, 11")
            P(f"s_add_u32 {sT0}, {sT0}, {PHI+16384}")
            P("v_and_b32 v100, 31, v0")
            P("v_lshlrev_b32 v100, 6, v100")
            P("v_bfe_u32 v14, v0, 1, 2")
            P("v_lshl_add_u32 v100, v14, 4, v100")
            P("v_lshrrev_b32 v14, 5, v0")
            P("v_lshl_add_u32 v100, v14, 13, v100")
            P(f"v_add_u32 v100, {sT0}, v100")
            for q in range(1, 4): P(f"v_xor_b32 v{100+q}, {16*q}, v100")
            P(f"v_add_u32 v111, {sT0}, v1")
            P("v_lshrrev_b32 v14, 5, v0")
            P("v_lshlrev_b32 v14, 9, v14")
            P("v_bfe_u32 v15, v0, 2, 2")
            P("v_lshl_add_u32 v14, v15, 6, v14")
            P("v_and_b32 v15, 1, v0")
            P("v_lshl_add_u32 v14, v15, 5, v14")
            P("v_bfe_u32 v15, v0, 4, 1")
            P("v_lshl_add_u32 v14, v15, 4, v14")
            P("v_bfe_u32 v15, v0, 1, 1")
            P("v_lshl_add_u32 v14, v15, 3, v14")
            P("v_bfe_u32 v15, v0, 3, 1")
            P("v_lshlrev_b32 v15, 4, v15")
            P("v_xor_b32 v14, v14, v15")
            P(f"s_and_b32 {sT0}, {sW}, 1")
            P(f"s_lshl_b32 {sT0}, {sT0}, 4")
            P(f"v_xor_b32 v106, {sT0}, v14")
            P(f"s_lshr_b32 {sT0}, {sW}, 1")
            P(f"s_lshl_b32 {sT0}, {sT0}, 13")
            P(f"s_add_u32 {sT0}, {sT0}, {VIMG}")
            P(f"v_mov_b32 v96, {sT0}")
            P(f"v_mov_b32 v97, {KVF}")
            P("s_mov_b32 s82, 0x0000ffff")
            P("s_mov_b32 s83, 0x0000ffff")
            P(f"v_cndmask_b32 v96, v97, v96, {sMASK}")
            P(f"v_add_u32 v106, v96, v106")
            P(f"v_xor_b32 v107, 32, v106")
            P(f"s_lshl_b32 {sT0}, {sW}, 13")
            P(f"s_add_u32 {sT0}, {sT0}, {PHI}")
            P(f"v_add_u32 v104, {sT0}, v14")
            P(f"v_xor_b32 v105, 32, v104")
            P("v_and_b32 v14, 31, v0")
            P("v_lshrrev_b32 v15, 5, v0")
            P("v_lshlrev_b32 v108, 4, v14")
            P("v_lshl_add_u32 v108, v15, 8, v108")
            P("v_add_u32 v109, 512, v108")
            P("v_lshlrev_b32 v96, 5, v15")
            P("v_add_u32 v96, 1024, v96")
            P("v_add_u32 v97, 16, v96")
            P("v_cmp_eq_u32 vcc, 16, v14")
            P("v_cndmask_b32 v108, v108, v96, vcc")
            P("v_cndmask_b32 v109, v109, v97, vcc")
            P("v_mov_b32 v96, 0x7f000000")
            P("v_cmp_lt_u32 vcc, 16, v14")
            P("v_cndmask_b32 v108, v108, v96, vcc")
            P("v_cndmask_b32 v109, v109, v96, vcc")
            P(f"s_lshl_b32 {sT0}, {sJ}, 4")
            P(f"s_add_u32 {sT0}, {sT0}, {sRB}")
            P(f"s_lshl_b32 {sT0}, {sT0}, 2")
            P(f"s_add_u32 {sT0}, {sT0}, {sW}")
            P(f"s_mul_i32 s94, {sT0}, {KVHEAD}")
            P(f"s_add_u32 s94, s94, {KVP_OFF}")
            P(f"s_lshl_b32 s95, {sT0}, 7")
            P(f"s_add_u32 s95, s95, {FLAGKV_OFF}")
        else:
            P(f"s_lshl_b32 {sT0}, {sRB}, 2")
            P(f"s_add_u32 {sT0}, {sT0}, {sW}")
            P(f"s_mul_i32 s94, {sT0}, {144*1024}")
            P(f"s_lshl_b32 {sT1}, {sJ}, 12")
            P(f"s_add_u32 s94, s94, {sT1}")
            P(f"s_add_u32 s94, s94, {112*1024}")
            P(f"s_lshl_b32 s95, {sT0}, 5")
            P(f"s_add_u32 s95, s95, {sJ}")
            P(f"s_lshl_b32 s95, s95, 7")
            P(f"s_add_u32 s95, s95, {FLAGH_OFF + 16*128}")
        def mallwarm(which="gudo"):
            P(f"s_lshl_b32 {sT0}, s2, 2")
            P(f"s_add_u32 {sT0}, {sT0}, {sW}")
            P(f"s_mul_i32 {sT1}, {sT0}, 1792")
            P(f"s_lshl_b32 {sT2}, {sT0}, 9")
            P(f"s_mul_i32 {sT3}, {sT0}, 1536")
            P("v_lshlrev_b32 v14, 5, v0")
            P("v_lshlrev_b32 v15, 3, v0")
            j0 = 232
            for q, (ch, sr) in enumerate((("g", SG), ("u", SU), ("d", SD))):
                if ch in which: P(f"buffer_load_dword v{j0+q}, v14, {sr}, {sT1} offen")
            if "o" in which: P(f"buffer_load_dword v{j0+3}, v15, {SO}, {sT2} offen")
            if "q" in which: P(f"buffer_load_dword v{j0+4}, v14, {SQKV}, {sT3} offen")
        def wf_build():
            P.wait("wphi")
            wphi_frags(P, 0, 32, 16, 14, 15)
            if typ == 0:
                P(f"v_add_u32 v14, {WF}, v1")
                for q in range(2): P(f"ds_write_b128 v14, {v(16+4*q,4)} offset:{q*1024}", tok="wf")
        def early():
            Ln = newlabel("nn")
            P(f"s_or_b32 {sT0}, s2, {sW}")
            P(f"s_cmp_lg_u32 {sT0}, 0")
            P(f"s_cbranch_scc1 {Ln}")
            P.ins.append(Ins(".raw"))
            P.ins[-1].text = (f"  s_memrealtime s[100:101]\n  s_waitcnt lgkmcnt(0)\n  s_or_b32 {sT0}, s100, 1\n  v_mov_b32 v240, {sT0}\n  v_mov_b32 v241, 0\n"
                              f"  v_lshlrev_b32 v242, 26, v0\n  buffer_atomic_cmpswap v[240:241], v242, {SDBG}, 0 offen sc1\n  s_nop 1")
            P.label(Ln)
            P(f"s_lshl_b32 {sT1}, {sJ}, 11")
            P(f"s_mov_b32 m0, {WPHI}")
            P(f"buffer_load_dwordx4 v1, {SPHI}, {sT1} offen lds")
            P(f"buffer_load_dwordx4 v1, {SPHI}, {sT1} offen offset:1024 lds", tok="wphi")
            wchunk(0)
        if cfg.tlb:
            P("v_lshlrev_b32 v244, 18, v0")
            P(f"v_add_u32 v244, {0x3ff80}, v244")
            P(f"buffer_load_dword v245, v244, {SWS}, 0 offen")
            P("v_lshlrev_b32 v244, 16, v0")
            for q, sr in enumerate((SOUT, SD, SO, SG, SU, SQKV)):
                P(f"buffer_load_dword v{246+q}, v244, {sr}, 0 offen")
        for _ in range(cfg.wdelay): P("s_sleep 8")
        if cfg.warm == -2: mallwarm("gudoq")
        early()
        wchunk(1)
        if cfg.warm == -3: mallwarm("gudo")
        if cfg.warm == -4:
            mallwarm("gu"); last.setdefault(0, []).append(lambda: mallwarm("do"))
        wf_build()
        if typ == 0: P.wait("wf")
        P("s_waitcnt lgkmcnt(0)")

        def pubflag(tok, val, sadr, t0, t1):
            P(f"s_add_u32 {sT1}, {sNONCE}, {val}")
            P(f"v_mov_b32 v{t0}, {sT1}")
            P(f"v_lshlrev_b32 v{t1}, 26, v0")
            P.wait(tok)
            P(f"buffer_store_dword v{t0}, v{t1}, {SWS}, {sadr} offen sc1")

        if typ == 0:
            def t1_b():
                for hh in range(2):
                    P(f"ds_read_b128 {v(KF+4*hh,4)}, v111 offset:{hh*8192}")
            def t1_burst():
                P("s_setprio 2")
                P(f"v_mfma_f32_32x32x16_bf16 {v(PP,16)}, {v(A1,4)}, {v(KF,4)}, 0")
                P(f"v_mfma_f32_32x32x16_bf16 {v(PP,16)}, {v(A1+4,4)}, {v(KF+4,4)}, {v(PP,16)}")
                Q = Prog()
                softmax_pk(Q, PP, TT, 64, "s[24:25]")
                P.extend(Q.ins[:-16])
                P(f"ds_write_b128 v100, {v(TT,4)}")
                P(f"ds_write_b128 v101, {v(TT+4,4)}")
                P.extend(Q.ins[-16:])
                P(f"ds_write_b128 v102, {v(PP,4)}")
                P(f"ds_write_b128 v103, {v(PP+4,4)}", tok="phi1")
                P("s_setprio 0")
            def t1_rd():
                for ks in range(8):
                    a, b = 32 + 4 * ks, VF + 4 * ks
                    P(f"ds_read_b64_tr_b16 {v(a,2)}, v104 offset:{ks*1024}")
                    P(f"ds_read_b64_tr_b16 {v(a+2,2)}, v105 offset:{ks*1024+256}")
                    P(f"ds_read_b64_tr_b16 {v(b,2)}, v106 offset:{ks*1024}")
                    P(f"ds_read_b64_tr_b16 {v(b+2,2)}, v107 offset:{ks*1024+256}", tok="kvrd")
            def t1_kv():
                D = 16
                P("s_setprio 2")
                for ks in range(8):
                    a, b = 32 + 4 * ks, VF + 4 * ks
                    P(f"v_mfma_f32_32x32x16_bf16 {v(D,16)}, {v(a,4)}, {v(b,4)}, {'0' if ks == 0 else v(D,16)}")
            def t1_st():
                D = 16
                for k in range(8): P(f"v_cvt_pk_bf16_f32 v{D+k}, v{D+2*k}, v{D+2*k+1}")
                P(f"buffer_store_dwordx4 {v(D,4)}, v108, {SWS}, s94 offen sc1")
                P(f"buffer_store_dwordx4 {v(D+4,4)}, v109, {SWS}, s94 offen sc1", tok="kvst")
                P("s_setprio 0")
            first[8] = [t1_b]
            extra[8] = [t1_burst]
            if cfg.kvb:
                extra[8] += [lambda: P.wait("phi1"), lambda: P("s_barrier"), lambda: P("s_setprio 2"), t1_rd, t1_kv, t1_st]
            else:
                last[8] = [lambda: P.wait("phi1")]
                first[9] = [t1_rd]
                extra[9] = [t1_kv, t1_st]
            first[cfg.kvfl] = [lambda: pubflag("kvst", 1, "s95", 96, 97)]
            def t1_masks():
                P("s_mov_b32 s100, 0x33333333"); P("s_mov_b32 s101, 0x33333333")
                P("s_mov_b32 s84, 0xcccccccc"); P("s_mov_b32 s85, 0xcccccccc")
            for s_ in range(10, 16): first.setdefault(s_, []).append(t1_masks)
        else:
            A = 16; QF = 32; PP = [48, 64]; TT = 16; TM = 32; PH = 80
            def t2_b():
                P(f"s_add_u32 {sT0}, s99, {7*SLOT}")
                P(f"v_add_u32 v14, {sT0}, v1")
                for q in range(4): P(f"ds_read_b128 {v(QF+4*q,4)}, v14 offset:{q*1024}", tok="qrd")
            def t2_m():
                P("s_setprio 2")
                for p in range(2):
                    P(f"v_mfma_f32_32x32x16_bf16 {v(PP[p],16)}, {v(A+8*p,4)}, {v(QF+8*p,4)}, 0")
                    P(f"v_mfma_f32_32x32x16_bf16 {v(PP[p],16)}, {v(A+8*p+4,4)}, {v(QF+8*p+4,4)}, {v(PP[p],16)}")
                P("s_setprio 0")
            Q = Prog()
            for p in range(2):
                softmax_core(Q, PP[p], TT, TM, "s24")
                s1, s2 = TM + 2, TM + 3
                Q(f"v_rcp_f32 v{s1}, v{s1}")
                Q(f"v_rcp_f32 v{s2}, v{s2}")
                for k in range(16):
                    Q(f"v_mul_f32 v{TT+k}, v{TT+k}, v{s1}")
                    Q(f"v_mul_f32 v{PP[p]+k}, v{PP[p]+k}, v{s2}")
                for k in range(8):
                    Q(f"v_cvt_pk_bf16_f32 v{PH+16*p+k}, v{TT+2*k}, v{TT+2*k+1}")
                    Q(f"v_cvt_pk_bf16_f32 v{PH+16*p+8+k}, v{PP[p]+2*k}, v{PP[p]+2*k+1}")
            nparts = cfg.smend2 - cfg.qb + 1
            parts = split(Q.ins, nparts)
            first[cfg.qb] = [t2_b]
            for q in range(nparts):
                extra[cfg.qb + q] = [lambda q=q: vpart(parts[q])]
            extra[cfg.qb].insert(0, t2_m)
            dst = [16 + 4 * i for i in range(16)]
            KD, KI, KZ = 232, 248, 252
            def kvflagload():
                P("v_and_b32 v15, 15, v0")
                P("v_lshlrev_b32 v15, 9, v15")
                P("v_lshrrev_b32 v14, 4, v0")
                P("v_lshl_add_u32 v15, v14, 26, v15")
                P(f"s_lshl_b32 s26, {sJ}, 6")
                P(f"s_add_u32 s26, s26, {sW}")
                P(f"s_mul_i32 s84, s26, {KVHEAD}")
                P(f"s_add_u32 s84, s84, {KVP_OFF}")
                P(f"s_mul_i32 s85, {sRB}, {KVREC}")
                P(f"s_lshl_b32 s26, s26, 7")
                P(f"s_add_u32 s26, s26, {FLAGKV_OFF}")
                P(f"buffer_load_dword v14, v15, {SWS}, s26 offen sc1")
                P("v_and_b32 v12, 31, v0")
                P("v_lshrrev_b32 v13, 5, v0")
                P("v_lshlrev_b32 v13, 3, v13")
                P("v_sub_u32 v12, v12, v13")
                P("v_and_b32 v13, 1, v12")
                P("v_lshlrev_b32 v13, 4, v13")
                P(f"s_movk_i32 {sT0}, 0x3f80")
                P(f"v_lshlrev_b32 v13, v13, {sT0}")
                P("v_lshrrev_b32 v12, 1, v12")
                for k in range(4):
                    P(f"v_cmp_eq_u32 vcc, {k}, v12")
                    P(f"v_cndmask_b32 v{KI+k}, 0, v13, vcc")
            def kvissue():
                P("s_mov_b32 s82, 0xffff")
                P("s_mov_b32 s83, 0")
                poll_global(P, cfg, "v14", "v15", SWS, "s26", 1, 1, sMASK)
                S2(P, "kvflag") if not cfg.slotst else None
                P("v_lshrrev_b32 v15, 2, v0")
                P(f"v_mul_u32_u24 v15, {KVREC}, v15")
                P("v_and_b32 v13, 3, v0")
                P("v_lshl_add_u32 v15, v13, 4, v15")
                for i in range(16):
                    P(f"s_add_u32 {sT3}, s84, s85")
                    P(f"buffer_load_dwordx4 {v(dst[i],4)}, v1, {SWS}, {sT3} offen sc1")
                    P(f"s_add_u32 s85, s85, {KVREC}")
                    P(f"s_cmp_eq_u32 s85, {16*KVREC}")
                    P(f"s_cselect_b32 s85, 0, s85")
                    if i == 1: P(f"buffer_load_dwordx4 {v(KZ,4)}, v15, {SWS}, s84 offen offset:1024 sc1")
                P("v_lshlrev_b32 v13, 4, v13")
                P("v_bfe_u32 v15, v0, 4, 1")
                P("v_lshl_add_u32 v13, v15, 2, v13")
                P("v_lshrrev_b32 v14, 5, v0")
                P("v_lshl_add_u32 v13, v14, 1, v13")
                P(f"s_lshl_b32 {sT0}, {sW}, 6")
                P(f"s_add_u32 {sT0}, {sT0}, {ZL}")
                P(f"v_add_u32 v13, {sT0}, v13")
                P("v_and_b32 v12, 15, v0")
                P("v_lshlrev_b32 v12, 4, v12")
                P("v_lshl_add_u32 v12, v14, 3, v12")
                P("v_lshl_add_u32 v12, v15, 11, v12")
                P(f"s_lshr_b32 {sT0}, {sW}, 1")
                P(f"s_lshl_b32 {sT0}, {sT0}, 12")
                P(f"s_and_b32 {sT1}, {sW}, 1")
                P(f"s_mul_i32 {sT1}, {sT1}, 768")
                P(f"s_add_u32 {sT0}, {sT0}, {sT1}")
                P(f"s_add_u32 {sT0}, {sT0}, {KVF}")
                P(f"v_add_u32 v12, {sT0}, v12")
            def kvsum(hook=None):
                P("s_setprio 2")
                Z = 16
                Qz = Prog()
                for k in range(4):
                    Qz(f"v_lshlrev_b32 v{Z+2*k}, 16, v{KZ+k}")
                    Qz(f"v_and_b32 v{Z+1+2*k}, {sHI}, v{KZ+k}")
                for rr in (4, 8):
                    for k in range(8):
                        Qz(f"v_add_f32_dpp v{Z+k}, v{Z+k}, v{Z+k} row_ror:{rr} row_mask:0xf bank_mask:0xf")
                for k in range(0, 8, 2): Qz(f"v_permlane32_swap_b32 v{Z+k}, v{Z+1+k}")
                for k in range(0, 8, 2): Qz(f"v_add_f32 v{Z+k}, v{Z+k}, v{Z+1+k}")
                Qz(f"v_permlane16_swap_b32 v{Z}, v{Z+2}")
                Qz(f"v_permlane16_swap_b32 v{Z+4}, v{Z+6}")
                Qz(f"v_add_f32 v{Z}, v{Z}, v{Z+2}")
                Qz(f"v_add_f32 v{Z+4}, v{Z+4}, v{Z+6}")
                Qz(f"v_cvt_pk_bf16_f32 v{Z}, v{Z}, v{Z+4}")
                zi = Qz.ins
                for i in range(16):
                    P(f"v_mfma_f32_32x32x16_bf16 {v(KD,16)}, {v(KI,4)}, {v(dst[i],4)}, {'0' if i == 0 else v(KD,16)}")
                    if hook: hook(i)
                    if i >= 2:
                        P.extend(zi[:3]); zi = zi[3:]
                P.extend(zi)
                P(f"ds_write_b16 v13, v{Z}")
                P(f"ds_write_b16_d16_hi v13, v{Z} offset:8")
                for k in range(4): P(f"v_cvt_pk_bf16_f32 v{KD+k}, v{KD+2*k}, v{KD+2*k+1}")
                P(f"ds_write_b64 v12, {v(KD,2)}")
                P(f"ds_write_b64 v12, {v(KD+2,2)} offset:1024", tok="kvf")
                if not cfg.kprio: P("s_setprio 0")
            def o_addr():
                P(f"v_add_u32 v12, {KVF}, v1")
                P("v_lshrrev_b32 v13, 5, v0")
                P("v_lshlrev_b32 v13, 6, v13")
                P(f"v_add_u32 v13, {ZL}, v13")
                P(f"v_mov_b32 v14, {ZL+256}")
                P("s_mov_b32 s82, 0x0000ffff")
                P("s_mov_b32 s83, 0xffff0000")
                P(f"v_cndmask_b32 v13, v14, v13, {sMASK}")
            def o_pair(p, hook=None):
                KVR, ZR, NUM, DEN = 16, 32, 48, 64
                for jj in range(4):
                    P(f"ds_read_b128 {v(ZR+4*jj,4)}, v13 offset:{p*128+jj*16}")
                for jj in range(4):
                    P(f"ds_read_b128 {v(KVR+4*jj,4)}, v12 offset:{p*4096+jj*1024}")
                P("s_setprio 2")
                for jj in range(4):
                    P(f"v_mfma_f32_32x32x16_bf16 {v(DEN,16)}, {v(ZR+4*jj,4)}, {v(PH+16*p+4*jj,4)}, {'0' if jj == 0 else v(DEN,16)}")
                for jj in range(4):
                    P(f"v_mfma_f32_32x32x16_bf16 {v(NUM,16)}, {v(KVR+4*jj,4)}, {v(PH+16*p+4*jj,4)}, {'0' if jj == 0 else v(NUM,16)}")
                if hook: hook()
                for h in range(2):
                    P(f"v_add_f32 v{DEN+8*h}, 0x358637bd, v{DEN+8*h}")
                for h in range(2):
                    P(f"v_rcp_f32 v{DEN+8*h}, v{DEN+8*h}")
                for k in range(16):
                    P(f"v_mul_f32 v{NUM+k}, v{NUM+k}, v{DEN+8*(k>>3)}")
                for k in range(8): P(f"v_cvt_pk_bf16_f32 v{NUM+k}, v{NUM+2*k}, v{NUM+2*k+1}")
                for k in range(4): P(f"v_bfi_b32 v{NUM+2*k}, s3, v{2+(k&1)}, v{NUM+2*k}")
                P(f"buffer_store_dwordx4 {v(NUM,4)}, v1, {SWS}, s94 offen offset:{2048*p} sc1")
                P(f"buffer_store_dwordx4 {v(NUM+4,4)}, v1, {SWS}, s94 offen offset:{2048*p+1024} sc1", tok=f"o{p}")
                if p == 1 or not cfg.kprio: P("s_setprio 0")
            ks_ = cfg.kvst
            assert cfg.smend2 < ks_
            extra.setdefault(ks_ - 1, []).append(kvflagload)
            if ks_ <= 16: extra[ks_] = [kvissue]

        if cfg.touch >= 0:
            tl = [24, 26, 28, 32] + ([20] if typ == 1 else [])
            last.setdefault(cfg.touch, []).append(lambda: [b2touch(x) for x in tl])
        if 0 <= cfg.warm < 10:
            last.setdefault(cfg.warm, []).append(mallwarm)
        elif cfg.warm >= 10:
            a_, b_ = cfg.warm // 10 - 1, cfg.warm % 10
            last.setdefault(a_, []).append(lambda: mallwarm("gu"))
            last.setdefault(b_, []).append(lambda: mallwarm("do"))
        def codepf2():
            L = newlabel("pc")
            P("s_getpc_b64 s[100:101]")
            P.label(L)
            P(f"s_lshr_b32 {sT0}, s2, 3")
            P(f"s_lshl_b32 {sT0}, {sT0}, 2")
            P(f"s_add_u32 {sT0}, {sT0}, {sW}")
            P(f"s_mul_i32 {sT0}, {sT0}, 640")
            P(f"s_min_u32 {sT0}, {sT0}, L_codeend-L_pcref-1024")
            P(f"s_sub_u32 s100, s100, {L}-L_pcref")
            P("s_subb_u32 s101, s101, 0")
            P(f"s_add_u32 s100, s100, {sT0}")
            P("s_addc_u32 s101, s101, 0")
            P(f"global_load_dword v237, v1, s[100:101]")
        for st_ in cfg.pf2:
            if st_: last.setdefault(st_, []).append(codepf2)
        TG2 = [14, 15]
        free = [RING + 4 * i for i in range(8)]
        areg = {}
        breg = {sg: [B2R + 8 * sg, B2R + 8 * sg + 4] for sg in range(18)}
        checked = [0]
        flagged = [0]
        nxt_a = [0]
        def p2setup():
            P("v_and_b32 v4, 31, v0")
            P("v_lshlrev_b32 v4, 10, v4")
            P("v_lshrrev_b32 v5, 5, v0")
            P("v_lshl_add_u32 v4, v5, 4, v4")
            P(f"s_lshl_b32 {sT0}, {sR2}, 1")
            P(f"s_lshr_b32 {sT1}, {sW}, 1")
            P(f"s_add_u32 {sT0}, {sT0}, {sT1}")
            P(f"s_lshl_b32 {sT0}, {sT0}, 15")
            P(f"s_lshl_b32 {sT1}, {sC2}, 7")
            P(f"s_add_u32 {sT0}, {sT0}, {sT1}")
            P(f"s_and_b32 {sT1}, {sW}, 1")
            P(f"s_lshl_b32 {sT1}, {sT1}, 6")
            P(f"s_add_u32 {sT0}, {sT0}, {sT1}")
            P(f"v_add_u32 v4, {sT0}, v4")
        def resload():
            P(f"buffer_load_dwordx4 v[32:35], v4, {SX}, 0 offen")
            P(f"buffer_load_dwordx4 v[36:39], v4, {SX}, 0 offen offset:32")
        def residual():
            P(f"s_mov_b32 {sT1}, 0xffff0000")
            for jj in range(2):
                b = 32 + 4 * jj
                P(f"v_permlane32_swap_b32 v{b}, v{b+2}")
                P(f"v_permlane32_swap_b32 v{b+1}, v{b+3}")
            for k in range(8):
                P(f"v_lshlrev_b32 v{ACC+2*k}, 16, v{32+k}")
                P(f"v_and_b32 v{ACC+2*k+1}, {sT1}, v{32+k}")
        def aload_ins(Px, sg):
            ks_to(Px, sg, sT2)
            if slots[sg][1] == "O": Px(f"s_add_u32 {sT2}, {sT2}, {112*1024}")
            for rt in range(2):
                Px(f"buffer_load_dwordx4 {v(areg[sg][rt],4)}, v{VA[rt]}, {SWS}, {sT2} offen sc1")
        def aload(sg):
            throttle()
            areg[sg] = [free.pop(0), free.pop(0)]
            vmlog.append(("a", sg))
            aload_ins(P, sg)
        first.setdefault(16, []).append(p2setup)
        if typ == 1 and cfg.kprio: first[16].append(lambda: tag_setup(P, [2, 3], 's3'))
        wextra = {10: (18, (0,)), 11: (18, (1,)), 12: (19, (0,)), 13: (19, (1,))} if typ == 0 else {13: (18, (0, 1)), 14: (19, (0, 1))}

        b2log = []
        for s in range(18):
            P.wait(*([f"w{s}"] if s < 17 else ["w17", "w18", "w19"]))
            P("s_barrier")
            if s == 17: break
            if s == 0 or (cfg.allb >= 0 and cfg.allb <= s < cfg.allb + 8): S2(P, f"B{s}")
            if s == 0:
                wchunk(2); wchunk(3)
            if s == 1:
                P(f"buffer_load_dword v110, off, {SDBG}, 0 sc1")
            if s == 3:
                poll_nonce(P, cfg, "v110")
            for f in first.get(s, []): f()
            if s + 2 < 18 and s >= 2:
                wchunk(s + 2)
            if s in wextra: wchunk(*wextra[s])
            for f in extra.get(s, []): f()
            lag = cfg.b2lag
            todo = [sg for (sg, st_) in pend_reads if st_ <= s - lag and s >= defer.get(sg, 0)]
            pend_reads = [(sg, st_) for (sg, st_) in pend_reads if sg not in todo]
            for sg in todo:
                b2read(sg, breg[sg]); readdone.add(sg)
            n_issue = per[s]
            while n_issue > 0:
                n_issue -= 1
                cand = None
                if todo_reg:
                    for pos in stg:
                        lo, hi = poswin(pos, False)
                        oc = occupant.get(pos)
                        if lo <= s <= hi and (oc is None or oc in readdone):
                            cand = (todo_reg.pop(0), pos); break
                if cand is None:
                    for sg in todo_fin:
                        pos = b2pos(sg)
                        lo, hi = poswin(pos, True)
                        oc = occupant.get(pos)
                        stg_ok = (pos not in stg) or (not todo_reg) or (s > poswin(pos, False)[1])
                        if lo <= s <= hi and (oc is None or oc in readdone) and stg_ok:
                            todo_fin.remove(sg); cand = (sg, pos); break
                if cand is None: break
                sg, pos = cand
                oc = occupant.get(pos)
                if oc is not None: P.wait(f"br{oc}")
                occupant[pos] = sg
                if sg < 18:
                    stagepos[sg] = pos
                    pend_reads.append((sg, s))
                b2dma(sg)
                b2log.append((s, sg))
            for f in last.get(s, []): f()
            if typ == 0 and s == 7:
                for pos in stg[:2]:
                    assert occupant.get(pos) in readdone
                    P.wait(f"br{occupant[pos]}")
        S2(P, "ringend")
        thr_on[0] = True
        assert not todo_reg
        if cfg.stamps: P("s_mov_b32 s97, s98")
        P(f"v_mov_b32 v5, {LFLAG}")
        fin_all = todo_fin + [26, 27]
        lateq = list(range(32, 36)) if typ == 0 else list(range(28, 36))
        def fin_issue(n, only=None):
            for _ in range(n):
                c = [x for x in fin_all if only is None or x in only]
                if not c: return
                sg = c[0]; fin_all.remove(sg)
                oc = occupant.get(b2pos(sg))
                if oc is not None: P.wait(f"br{oc}")
                b2dma(sg); b2log.append((20, sg))
        if typ == 1:
            thr_on[0] = False
            if cfg.kprio: P("s_setprio 2")
            if cfg.kvst == 17: kvissue()
            kvsum(lambda i: fin_issue(1, (24, 25, 26, 27)) if (cfg.t2e and i >= 8 and i % 2 == 0) else None)
            thr_on[0] = True
            P(f"s_lshl_b32 {sT0}, {sW}, 2")
            P(f"v_add_u32 v14, {sT0}, v5")
            P("v_mov_b32 v15, 1")
            P.wait("kvf")
            P("ds_write_b32 v14, v15 offset:48")
        for sg, _ in pend_reads:
            b2read(sg, breg[sg]); readdone.add(sg)
        if typ == 1:
            if not cfg.kprio: tag_setup(P, [2, 3], "s3")
            poll_lds(P, cfg, 12, "v5", 48)
            if cfg.t2e: poll_lds(P, cfg, 12, "v5", 16)
            S2(P, "kvx") if not cfg.slotst else None
            o_addr()
            thr_on[0] = False
            o_pair(0, lambda: [aload(0), aload(1)] + ([fin_issue(cfg.t2e)] if cfg.t2e else []))
            o_pair(1, lambda: [aload(2), aload(3)] + ([fin_issue(cfg.t2e)] if cfg.t2e else []))
            thr_on[0] = True
            S2(P, "odone")
            if cfg.t2e:
                fin_all += lateq[:4]; lateq = lateq[4:]
            fin_issue(cfg.nfin)
        else:
            for sg in range(4): aload(sg)
            fin_issue(cfg.nfin1)
            if not cfg.eprio:
                poll_lds(P, cfg, 12, "v5", 0)
                for x in (28, 29): b2dma(x)
                poll_lds(P, cfg, 12, "v5", 16)
                for x in (30, 31): b2dma(x)
            else:
                lateq = list(range(28, 36))
        print("B2 plan typ", typ, b2log)
        nxt_a[0] = 4
        tag_setup(P, TG2, "s3", True)
        nxt_b = [18]
        BLA = 3
        ALA = cfg.ala
        slow = []
        def tagops(Q, sg):
            for r in areg[sg]:
                Q(f"v_xor_b32 v{r}, v{r}, v{TG2[0]}")
                Q(f"v_xor_b32 v{r+2}, v{r+2}, v{TG2[1]}")
            r0, r1 = areg[sg]
            Q(f"v_bitop3_b32 v2, v{r0}, v{r0+2}, v{r0} bitop3:0xf3")
            Q(f"v_bitop3_b32 v2, v{r1}, v{r1+2}, v2 bitop3:0xfb")
            Q("v_and_b32 v2, s3, v2")
            Q("v_cmp_ne_u32 vcc, 0, v2")
        def tagcheck(sg):
            Q = Prog()
            Ls, Lc = newlabel("slow"), newlabel("cont")
            tagops(Q, sg)
            B = Prog()
            B("s_cmp_lg_u64 vcc, 0")
            B(f"s_cbranch_scc1 {Ls}")
            B.label(Lc)
            T = Prog()
            Lp, Ld = newlabel("sp"), newlabel("sd")
            T.label(Ls)
            T(f"s_mov_b32 {sCNT}, {cfg.spin2}")
            if cfg.stamps: T("s_add_u32 s97, s97, 1")
            T.label(Lp)
            T(f"s_sleep {cfg.sleep}")
            aload_ins(T, sg)
            T("s_waitcnt vmcnt(0)")
            tagops(T, sg)
            T("s_nop 1")
            T("s_cmp_lg_u64 vcc, 0")
            T(f"s_cbranch_scc0 {Ld}")
            T(f"s_sub_u32 {sCNT}, {sCNT}, 1")
            T(f"s_cbranch_scc0 {Lp}")
            T.label(Ld)
            if cfg.fastslow and sg >= 4:
                for kind_, x in vmlog[vmlog.index(("a", sg)) + 1:]:
                    if kind_ == "a": aload_ins(T, x)
                    elif kind_ == "b": b2dma(x, T)
                    else:
                        T(f"buffer_load_dwordx4 {v(x[0],4)}, v4, {SX}, 0 offen")
                        T(f"buffer_load_dwordx4 {v(x[1],4)}, v4, {SX}, 0 offen offset:32")
                T(f"s_waitcnt vmcnt(@{Lc}:@)")
            else:
                for x in range(sg + 1, nxt_a[0]): aload_ins(T, x)
                T("s_waitcnt vmcnt(0)")
            T(f"s_branch {Lc}")
            slow.extend(T.ins)
            return Q.ins, B.ins
        deferred = {0: [], 2: [], 3: []}
        c0, b0 = tagcheck(0)
        P.extend(c0); P.extend(b0)
        for sg in range(36):
            if cfg.slotst and sg % 4 == 0: S2(P, f"s{sg}")
            if sg == (cfg.thrn if typ == 1 or not cfg.eprio else cfg.eprio + 2): thr_on[0] = False
            if typ == 0 and cfg.eprio and sg == 0: P("s_setprio 1")
            if typ == 0 and cfg.eprio and sg == cfg.eprio: P("s_setprio 0")
            fill = Prog()
            P_save = P.ins
            P.ins = fill.ins
            if sg >= 1 and sg - 1 < 36 - cfg.tl:
                free.extend(areg[sg - 1]); free.extend(breg[sg - 1])
            if cfg.hold and sg == cfg.hold:
                poll_lds(P, cfg, free[0], "v5", 64)
            while nxt_b[0] < 36 and nxt_b[0] <= sg + BLA:
                r = [free.pop(0), free.pop(0)]
                breg[nxt_b[0]] = r
                b2read(nxt_b[0], r); nxt_b[0] += 1
            cnt = 0
            while nxt_a[0] < 36 and len(free) >= 4 and nxt_a[0] <= (sg + ALA if (typ == 1 or not cfg.eprio or sg >= cfg.eprio) else max(7, sg + cfg.eala)) and cnt < 2:
                aload(nxt_a[0]); nxt_a[0] += 1; cnt += 1
            pg0 = cfg.pg0 if typ == 1 or not cfg.eprio else max(cfg.pg0, cfg.eprio + 1)
            if sg == pg0:
                poll_lds(P, cfg, free[0], "v5", 32)
            if fin_all and sg >= 1:
                fin_issue(1)
            elif sg > pg0 and lateq and (sg - pg0) % cfg.pgs == 0:
                b2dma(lateq.pop(0))
            if sg == 30:
                rres = [free.pop(0), free.pop(0)]
                vmlog.append(("r", rres))
                P(f"buffer_load_dwordx4 {v(rres[0],4)}, v4, {SX}, 0 offen")
                P(f"buffer_load_dwordx4 {v(rres[1],4)}, v4, {SX}, 0 offen offset:32")
            P.ins = P_save
            mf = []
            for rt in range(2):
                for ct in range(2):
                    q = ct + 2 * rt
                    a = ACC + 16 * q
                    c = "0" if sg == 0 else v(a, 16)
                    mf.append(Ins(f"v_mfma_f32_32x32x16_bf16 {v(a,16)}, {v(breg[sg][ct],4)}, {v(areg[sg][rt],4)}, {c}"))
            f = fill.ins
            tc, tb_ = tagcheck(sg + 1) if sg + 1 < 36 else ([], [])
            if any(x.kind == "label" for x in f):
                parts_ = [[], f, [], []]
            else:
                n3 = -(-len(f) // 3)
                parts_ = [[], f[:n3], f[n3:2 * n3], f[2 * n3:]]
            tcs = [tc[:4], tc[4:6], tc[6:8], tb_]
            if sg >= 36 - cfg.tl:
                k1 = [i for i, (rt, ct) in enumerate([(0, 0), (0, 1), (1, 0), (1, 1)]) if ct + 2 * rt == 1][0]
                P.extend(mf[k1:k1 + 1]); P.extend(f); P.extend(tc); P.extend(tb_)
                for q in (2, 3, 0): deferred[q].append(mf[q])
            else:
                for k in range(4):
                    P.extend(mf[k:k + 1]); P.extend(parts_[k]); P.extend(tcs[k])
        P(f"s_add_u32 {sT0}, s99, {4*SLOT}")
        P(f"v_add_u32 v12, {sT0}, v1")
        wr = {q: [Ins(f"ds_write_b128 v12, {v(ACC+16*q+4*k,4)} offset:{q*SLOT+k*1024}") for k in range(4)] for q in (1, 2, 3)}
        if cfg.tl:
            pendw = []
            for q, prevq in ((2, 1), (3, 2), (0, 3)):
                for i, m in enumerate(deferred[q]):
                    P.extend([m])
                    if i == 1: pendw += wr[prevq]
                    if pendw: P.extend([pendw.pop(0)])
                    if pendw and i >= 2: P.extend([pendw.pop(0)])
            P.extend(pendw)
        else:
            for q in range(1, 4): P.extend(wr[q])
        S2(P, "mainend")
        for q in range(1, 4):
            P(f"v_xor_b32 v{12+q}, {q*4096}, v12")
        if cfg.o64:
            P("v_bfe_u32 v6, v0, 4, 1")
            P(f"v_mul_u32_u24 v6, {16384-32}, v6")
            P("v_sub_u32 v6, v4, v6")
        for b in rres:
            P(f"v_permlane32_swap_b32 v{b}, v{b+2}")
            P(f"v_permlane32_swap_b32 v{b+1}, v{b+3}")
        for k in range(8):
            src = rres[k // 4] + (k % 4)
            P(f"v_lshlrev_b32 v2, 16, v{src}")
            P(f"v_and_b32 v3, {sHI}, v{src}")
            P(f"v_pk_add_f32 {v(ACC+2*k,2)}, {v(ACC+2*k,2)}, v[2:3]")
        P("s_waitcnt lgkmcnt(0)")
        P("s_barrier")
        for q in range(1, 4):
            for k in range(4):
                P(f"ds_read_b128 {v(ACC+16*q+4*k,4)}, v{12+q} offset:{q*SLOT+k*1024}")
        for q in range(1, 4):
            for k in range(0, 16, 2):
                P(f"v_pk_add_f32 {v(ACC+k,2)}, {v(ACC+k,2)}, {v(ACC+16*q+k,2)}")
        for k in range(8): P(f"v_cvt_pk_bf16_f32 v{ACC+k}, v{ACC+2*k}, v{ACC+2*k+1}")
        for jj in range(2):
            b = ACC + 4 * jj
            P(f"v_permlane32_swap_b32 v{b}, v{b+2}")
            P(f"v_permlane32_swap_b32 v{b+1}, v{b+3}")
            if not cfg.o64:
                P(f"buffer_store_dwordx4 {v(b,4)}, v4, {SOUT}, 0 offen offset:{32*jj}{['', ' sc1', ' sc0 sc1', ' nt'][cfg.outsc]}")
        if cfg.o64:
            for k in range(4): P(f"v_permlane16_swap_b32 v{ACC+k}, v{ACC+4+k}")
            P(f"s_mov_b32 {sT0}, 16384")
            P(f"buffer_store_dwordx4 {v(ACC,4)}, v6, {SOUT}, 0 offen{['', ' sc1', ' sc0 sc1', ' nt'][cfg.outsc]}")
            P(f"buffer_store_dwordx4 {v(ACC+4,4)}, v6, {SOUT}, {sT0} offen{['', ' sc1', ' sc0 sc1', ' nt'][cfg.outsc]}")
        S2(P, "end")
        if cfg.stamps and S2.n < len(S2.regs):
            P(f"s_mov_b32 {S2.regs[S2.n]}, s97"); S2.n += 1; S2.names.append("nslow")
        S2.dump(P, 1)
        if cfg.padT:
            Lq = newlabel("pad")
            r_ = Ins(".raw"); r_.text = f"{Lq}:\n  s_sleep 2\n  s_memrealtime s[100:101]\n  s_waitcnt lgkmcnt(0)\n  s_sub_u32 s100, s100, s96\n  s_cmp_lt_u32 s100, {cfg.padT}\n  s_cbranch_scc1 {Lq}"
            P.ins.append(r_)
        P("s_endpgm")
        raw = Ins(".raw"); raw.text = text_of(slow).rstrip("\n")
        P.ins.append(raw)
        return P, S2

    names = {"p1t1": names_p1t1, "p1t2": names_p1t2}
    for typ in range(2):
        P, S2 = p2_rest(typ)
        r, _ = finalize(P, st2, log)
        segs.append(r)
        names[f"p2t{typ+1}"] = S2.names

    hdr = open("cdna_kernels/" + NAME + ".s.ref").read().split("\n")
    head = [l for l in hdr if l.startswith(";") and "@launch" not in l and "Override launch" not in l and "grid=ceil" not in l]
    out = "\n".join(head) + f"\n; @launch grid=(256,1,1) block=(512,1,1) lds={LDS_BYTES}\n"
    out += f""".amdgcn_target "amdgcn-amd-amdhsa--gfx950"
.text
.globl {NAME}_kernel
.p2align 8
.type {NAME}_kernel,@function
{NAME}_kernel:
"""
    for sgm in segs:
        out += text_of(sgm)
    out = re.sub(r"@(L_\w+:)@", lambda m: str(VQ_AT[m.group(1)]), out)
    out += f"""L_end:
  s_endpgm
L_codeend:
{"".join(fb_text)}
.section .rodata,"a"
.p2align 6
.amdhsa_kernel {NAME}_kernel
  .amdhsa_next_free_vgpr 256
  .amdhsa_next_free_sgpr 102
  .amdhsa_accum_offset 256
  .amdhsa_group_segment_fixed_size 0
  .amdhsa_kernarg_size 88
  .amdhsa_user_sgpr_count 2
  .amdhsa_user_sgpr_kernarg_segment_ptr 1
  .amdhsa_system_sgpr_workgroup_id_x 1
.end_amdhsa_kernel
"""
    return out, names, log


if __name__ == "__main__":
    cfg = Cfg()
    outp = "cdna_kernels/" + NAME + ".s"
    for a in sys.argv[1:]:
        if a.startswith("out="): outp = a[4:]
        else:
            k, val = a.split("=")
            setattr(cfg, k, [int(c) for c in val] if isinstance(getattr(cfg, k), list) else type(getattr(cfg, k))(int(val)))
    text, names, log = gen(cfg)
    open(outp, "w").write(text)
    import json
    json.dump(names, open(outp + ".names.json", "w"))
    print("written", outp, len(text), "bytes;", log)
```

```python
import sys, math, re
from asmlib import *

NAME = "parallel_sum__linear_kernel_hedgehog__glu_gated_glu__prompt"

class Cfg:
    stamps = 0
    map84 = True
    LA = 5
    cap = 3
    spin = 1 << 16
    skew = True
    codepf = True
    nob2 = False
    dbgstage = -1
    now = False
    sleep = 1
    nosm = False
    allb = -1
    phib = 9
    vprio = 0
    kvst = 17
    kvfl = 10
    b2lag = 2
    per1 = [0,0,2,2,2,2,2,2, 4,0,2,2,1,1,0,0,2,0]
    wdelay = 0
    ofirst = 0
    cap2 = 5
    spin2 = 65536
    touch = -1
    tmajor = 0
    padT = 0
    wt2 = 0
    omode = 1
    wfirst = 0
    wflate = 1
    w1late = 0
    pf2 = [0]
    xd = 3
    rotm = 1
    kprio = 1
    o64 = 1
    eprio = 0
    eala = 2
    nfin1 = 99
    tl = 4
    kvb = 1
    qb = 6
    skipb = 99
    skipw = 99
    nc = 0
    t2e = 2
    stag2 = 2
    stag1 = 2
    fastslow = 1
    thr = 4
    thrn = 6
    hold = 0
    nfin = 2
    ntx = 0
    ntw = 0
    ntb = 0
    tlb = 0
    warm = 20
    rt = 0
    b2hit = 0
    nopz = 0
    outsc = 1
    pg0 = 6
    pgs = 1
    slotst = 0
    per2 = [0,0,2,2,2,2,2,2, 2,2,2,1,1,0,0,1,0,0]
    kvn = 3
    flagA = 262
    smend2 = 16
    capC = 5
    hprio = 0
    ala = 8
    dbgout = False
    fla = 3

H_OFF = 0
KVP_OFF = 0xA00000
KVHEAD = 1152
KVREC = 4 * KVHEAD
FLAGH_OFF = 0xB00000
FLAGKV_OFF = 0xB80000
STAMP_OFF = 0xC00000
WS_BYTES = 0x1000000

SLOT = 16384
XBASE = 4 * SLOT
PHI = 6 * SLOT
VIMG = 8 * SLOT
SCR = 9 * SLOT
WPHI = SCR
KVF = SCR + 2048
ZL = SCR + 10240
LFLAG = SCR + 10752
WF = SCR + 11264
STX = SCR + 14336
XN = 4 * SLOT
XB0 = 2 * SLOT
LDS_BYTES = 10 * SLOT

SX, SWS, SDBG, SQKV, SG, SU, SD, SO, SPHI, SOUT = [f"s[{b}:{b+3}]" for b in range(28, 68, 4)]
sW, sRB, sJ, sTYPE, sROT, sR2, sC2, sNONCE = [f"s{i}" for i in range(68, 76)]
sT0, sT1, sT2, sT3, sT4, sT5 = [f"s{i}" for i in range(76, 82)]
sMASK = "s[82:83]"
sMASK2 = "s[84:85]"
sCNT = "s86"
sHI = "s87"
sC1 = "s3"
sC2K = "s26"
sC3 = "s27"

NT = ["", " nt"]
LOG2E = 0x3FB8AA3B
NLOG2E = 0xBFB8AA3B

def v(a, n=1):
    return f"v{a}" if n == 1 else f"v[{a}:{a+n-1}]"

def srd(P, name, plo, nbytes):
    b = int(name[2:name.index(":")])
    P(f"s_mov_b32 s{b}, s{plo}")
    P(f"s_mov_b32 s{b+1}, s{plo+1}")
    P(f"s_mov_b32 s{b+2}, {nbytes:#x}")
    P(f"s_mov_b32 s{b+3}, 0x20000")

_lbl = [0]
def newlabel(p):
    _lbl[0] += 1
    return f"L_{p}_{_lbl[0]}"

class Stamps:
    def __init__(self, cfg, regs):
        self.cfg = cfg; self.regs = regs; self.n = 0; self.names = []
    def __call__(self, P, name):
        if not self.cfg.stamps or self.cfg.stamps == 2: return
        assert self.n < len(self.regs), "too many stamps"
        P("s_memrealtime s[100:101]" if self.cfg.rt else "s_memtime s[100:101]")
        i = P("s_waitcnt lgkmcnt(0)"); i.pin = True
        P(f"s_mov_b32 {self.regs[self.n]}, s100")
        self.n += 1; self.names.append(name)
    def fork(self):
        s = Stamps(self.cfg, self.regs); s.n = self.n; s.names = list(self.names); return s
    def dump(self, P, role):
        if not self.cfg.stamps: return
        P(f"s_lshl_b32 {sT0}, s2, 3")
        P(f"s_add_u32 {sT0}, {sT0}, {sW}")
        P(f"s_add_u32 {sT0}, {sT0}, {4*role}")
        P(f"s_lshl_b32 {sT0}, {sT0}, 7")
        P(f"s_add_u32 {sT0}, {sT0}, {STAMP_OFF}")
        P("v_mov_b32 v12, 0")
        P("s_memrealtime s[100:101]")
        i = P("s_waitcnt lgkmcnt(0)"); i.pin = True
        P("v_mov_b32 v13, s96")
        P(f"buffer_store_dword v13, v12, {SWS}, {sT0} offen offset:120")
        P("s_nop 1")
        P("v_mov_b32 v13, s100")
        P(f"buffer_store_dword v13, v12, {SWS}, {sT0} offen offset:124")
        P("s_nop 1")
        for k in range(self.n):
            P(f"v_mov_b32 v13, {self.regs[k]}")
            P(f"buffer_store_dword v13, v12, {SWS}, {sT0} offen offset:{4*k}")
            P("s_nop 1")


def poll_global(P, cfg, vflag, vaddr, srdname, soff, need, maxv, smask, tok=None):
    L, OK = newlabel("poll"), newlabel("ok")
    P(f"s_mov_b32 {sCNT}, {cfg.spin}")
    P(f"s_add_u32 {sT5}, {sNONCE}, {need}")
    P(f"v_subrev_u32 {vflag}, {sT5}, {vflag}")
    P.label(L)
    P(f"v_cmp_lt_u32 vcc, {maxv-need}, {vflag}")
    P("s_nop 1")
    P(f"s_and_b64 vcc, vcc, {smask}")
    P(f"s_cbranch_scc0 {OK}")
    P(f"s_sleep {cfg.sleep}")
    P.ins.append(Ins(f".raw"))
    P.ins[-1].text = f"  buffer_load_dword {vflag}, {vaddr}, {srdname}, {soff} offen sc1\n  s_waitcnt vmcnt(0)\n  v_subrev_u32 {vflag}, {sT5}, {vflag}\n  s_sub_u32 {sCNT}, {sCNT}, 1\n  s_cbranch_scc0 {L}"
    P.label(OK)


def poll_nonce(P, cfg, vtmp):
    L, OK = newlabel("np"), newlabel("nok")
    P(f"s_mov_b32 {sCNT}, {cfg.spin}")
    P(f"v_readfirstlane_b32 {sNONCE}, {vtmp}")
    P.label(L)
    P("s_nop 0")
    P(f"s_cmp_lg_u32 {sNONCE}, 0")
    P(f"s_cbranch_scc1 {OK}")
    P("s_sleep 1")
    P.ins.append(Ins(".raw"))
    P.ins[-1].text = f"  buffer_load_dword {vtmp}, off, {SDBG}, 0 sc1\n  s_waitcnt vmcnt(0)\n  v_readfirstlane_b32 {sNONCE}, {vtmp}\n  s_sub_u32 {sCNT}, {sCNT}, 1\n  s_cbranch_scc0 {L}"
    P.label(OK)
    P("s_nop 1")


def poll_lds(P, cfg, vtmp4, vaddr, off):
    L, OK = newlabel("lp"), newlabel("lok")
    P(f"s_mov_b32 {sCNT}, {cfg.spin * 32}")
    i = P("s_waitcnt lgkmcnt(0)")
    P.label(L)
    P.ins.append(Ins(".raw"))
    P.ins[-1].text = (f"  ds_read_b128 {v(vtmp4,4)}, {vaddr} offset:{off}\n  s_waitcnt lgkmcnt(0)\n"
                      f"  v_and_b32 {v(vtmp4)}, {v(vtmp4)}, {v(vtmp4+1)}\n  v_and_b32 {v(vtmp4+2)}, {v(vtmp4+2)}, {v(vtmp4+3)}\n"
                      f"  v_and_b32 {v(vtmp4)}, {v(vtmp4)}, {v(vtmp4+2)}\n  s_nop 0\n  v_readfirstlane_b32 {sT5}, {v(vtmp4)}\n  s_nop 1\n"
                      f"  s_cmp_lg_u32 {sT5}, 0\n  s_cbranch_scc1 {OK}\n  s_sleep 1\n  s_sub_u32 {sCNT}, {sCNT}, 1\n  s_cbranch_scc0 {L}")
    P.label(OK)


def weave(groups, tasks, cap):
    q = []
    for rel, dl, lst in tasks:
        for i in lst:
            q.append((i, rel, dl))
    out = []
    n = len(groups)
    for gi, grp in enumerate(groups):
        while q and q[0][2] <= gi:
            out.append(q.pop(0)[0])
        out.extend(grp)
        extra = sum(1 for i in grp[1:] if i.kind in ("sopp", "wait", "salu"))
        budget = max(cap - extra, 1)
        acc = 0
        for (i, rel, dl) in q:
            acc += i.cost
            if dl <= n and dl > gi:
                budget = max(budget, math.ceil(acc / (dl - gi)))
        valu_done = False
        while q and q[0][1] <= gi and budget > 0:
            i = q[0][0]
            if i.kind in ("ds", "vmem") and valu_done:
                break
            if i.cost > budget and valu_done:
                break
            q.pop(0)
            out.append(i)
            budget -= i.cost
            if i.kind == "valu":
                valu_done = True
    rest = [x[0] for x in q]
    return out, rest


X0 = 128
def XR(t): return X0 + 4 * t
SET = [32 + 16 * i for i in range(6)]
FR0 = 12
TA = [4, 5, 6, 7]
vL16, vRS, vMR = 1, 2, 3

def p1_common(P):
    P("v_lshrrev_b32 v8, 5, v0")
    P("v_lshlrev_b32 v8, 10, v8")
    P("v_bfe_u32 v9, v0, 2, 2")
    P("v_lshl_add_u32 v8, v9, 7, v8")
    P("v_bfe_u32 v9, v0, 3, 1")
    P("v_lshl_add_u32 v8, v9, 6, v8")
    P("v_and_b32 v9, 3, v0")
    P("v_lshl_add_u32 v8, v9, 3, v8")
    P("v_bfe_u32 v9, v0, 4, 1")


def p1_taddr(P, kind):
    if kind == "pair":
        P(f"v_lshlrev_b32 v{TA[0]}, 5, v9")
        P(f"v_xor_b32 v{TA[0]}, v{TA[0]}, v8")
        P(f"v_xor_b32 v{TA[1]}, 64, v{TA[0]}")
        P(f"v_xor_b32 v{TA[2]}, {8192+32}, v{TA[0]}")
        P(f"v_xor_b32 v{TA[3]}, {8192+96}, v{TA[0]}")
    else:
        P(f"v_mul_u32_u24 v{TA[0]}, {8192+32}, v9")
        P(f"v_xor_b32 v{TA[0]}, v{TA[0]}, v8")
        for t in range(1, 4):
            P(f"v_xor_b32 v{TA[t]}, {32*t}, v{TA[0]}")


TG1 = [2, 3]
sTM = "s89"
def tag_setup(P, T, smask, consumer=False):
    P(f"s_mul_i32 {sT0}, {sNONCE}, 0x9e3779b1")
    P(f"s_lshr_b32 {sT5}, {sT0}, 15")
    P(f"s_xor_b32 {sT0}, {sT0}, {sT5}")
    P(f"s_and_b32 {sT0}, {sT0}, 0xfffdfffd")
    P(f"s_or_b32 {sT0}, {sT0}, 0x00010001")
    P(f"s_mov_b32 {smask}, 0x00010001")
    P(f"v_and_b32 v{T[0]}, 7, v0")
    P(f"v_lshlrev_b32 v{T[0]}, 2, v{T[0]}")
    P(f"v_bfe_u32 v{T[0]}, {sT0}, v{T[0]}, 4")
    P(f"v_lshl_or_b32 v{T[0]}, v{T[0]}, 15, v{T[0]}")
    P(f"v_lshrrev_b32 v{T[1]}, 2, v{T[0]}")
    if consumer:
        P(f"v_and_b32 v{T[0]}, {smask}, v{T[0]}")
        P(f"v_and_b32 v{T[1]}, {smask}, v{T[1]}")
        P(f"v_xor_b32 v{T[1]}, {smask}, v{T[1]}")


def sigmoid_task(S, ks_sreg, ks_imm, tok):
    P = Prog()
    for i in range(8): P(f"v_mul_f32 v{S+i}, {sC1}, v{S+i}")
    for i in range(8): P(f"v_exp_f32 v{S+i}, v{S+i}")
    for i in range(8): P(f"v_add_f32 v{S+i}, 1.0, v{S+i}")
    for i in range(8): P(f"v_rcp_f32 v{S+i}, v{S+i}")
    for i in range(8): P(f"v_mul_f32 v{S+8+i}, v{S+8+i}, v{S+i}")
    for k in range(4): P(f"v_cvt_pk_bf16_f32 v{S+k}, v{S+8+2*k}, v{S+9+2*k}")
    for k in range(2): P(f"v_bfi_b32 v{S+2*k}, {sTM}, v{TG1[k]}, v{S+2*k}")
    P(f"buffer_store_dwordx4 {v(S,4)}, v{vL16}, {SWS}, {ks_sreg} offen offset:{ks_imm} sc1", tok=tok)
    return P.ins


def flag_task(toks, val):
    P = Prog()
    P(f"s_add_u32 {sT0}, {sNONCE}, {val}")
    P(f"v_mov_b32 v11, {sT0}")
    P(f"v_lshlrev_b32 v10, 26, v0")
    P.wait(*toks)
    P(f"buffer_store_dword v11, v10, {SWS}, s88 offen sc1")
    return P.ins


def softmax_core(P, Pr, T, tmp, sC2K=sC2K):
    mx, mn, s1, s2 = tmp if isinstance(tmp, (list, tuple)) else (tmp, tmp + 1, tmp + 2, tmp + 3)
    P(f"v_max3_f32 v{mx}, v{Pr}, v{Pr+1}, v{Pr+2}")
    P(f"v_min3_f32 v{mn}, v{Pr}, v{Pr+1}, v{Pr+2}")
    for k in range(3, 15, 2):
        P(f"v_max3_f32 v{mx}, v{mx}, v{Pr+k}, v{Pr+k+1}")
        P(f"v_min3_f32 v{mn}, v{mn}, v{Pr+k}, v{Pr+k+1}")
    P(f"v_max_f32 v{mx}, v{mx}, v{Pr+15}")
    P(f"v_min_f32 v{mn}, v{mn}, v{Pr+15}")
    P(f"v_mul_f32 v{mx}, {sC2K}, v{mx}")
    P(f"v_mul_f32 v{mn}, {sC2K}, v{mn}")
    for k in range(16):
        P(f"v_fma_f32 v{T+k}, v{Pr+k}, {sC2K}, -v{mx}")
        P(f"v_fma_f32 v{Pr+k}, -v{Pr+k}, {sC2K}, v{mn}")
    for k in range(16):
        P(f"v_exp_f32 v{T+k}, v{T+k}")
        P(f"v_exp_f32 v{Pr+k}, v{Pr+k}")
    P(f"v_add_f32 v{s1}, v{T}, v{T+1}")
    P(f"v_add_f32 v{s2}, v{Pr}, v{Pr+1}")
    for k in range(2, 16):
        P(f"v_add_f32 v{s1}, v{s1}, v{T+k}")
        P(f"v_add_f32 v{s2}, v{s2}, v{Pr+k}")


def softmax_pk(P, Pr, T, tm, sc):
    mx, mn = tm, tm + 1
    P(f"v_max3_f32 v{mx}, v{Pr}, v{Pr+1}, v{Pr+2}")
    P(f"v_min3_f32 v{mn}, v{Pr}, v{Pr+1}, v{Pr+2}")
    for k in range(3, 15, 2):
        P(f"v_max3_f32 v{mx}, v{mx}, v{Pr+k}, v{Pr+k+1}")
        P(f"v_min3_f32 v{mn}, v{mn}, v{Pr+k}, v{Pr+k+1}")
    P(f"v_max_f32 v{mx}, v{mx}, v{Pr+15}")
    P(f"v_min_f32 v{mn}, v{mn}, v{Pr+15}")
    P(f"v_pk_mul_f32 {v(mx,2)}, {v(mx,2)}, {sc} op_sel_hi:[1,0]")
    for k in range(0, 16, 2):
        P(f"v_pk_fma_f32 {v(T+k,2)}, {v(Pr+k,2)}, {sc}, {v(mx,2)} op_sel_hi:[1,0,0] neg_lo:[0,0,1] neg_hi:[0,0,1]")
        P(f"v_pk_fma_f32 {v(Pr+k,2)}, {v(Pr+k,2)}, {sc}, {v(mx,2)} op_sel:[0,0,1] op_sel_hi:[1,0,1] neg_lo:[1,0,0] neg_hi:[1,0,0]")
    for k in range(16):
        P(f"v_exp_f32 v{T+k}, v{T+k}")
        P(f"v_exp_f32 v{Pr+k}, v{Pr+k}")
    a, b = tm + 2, tm + 4
    P(f"v_pk_add_f32 {v(a,2)}, {v(T,2)}, {v(T+2,2)}")
    P(f"v_pk_add_f32 {v(b,2)}, {v(Pr,2)}, {v(Pr+2,2)}")
    for k in range(4, 16, 2):
        P(f"v_pk_add_f32 {v(a,2)}, {v(a,2)}, {v(T+k,2)}")
        P(f"v_pk_add_f32 {v(b,2)}, {v(b,2)}, {v(Pr+k,2)}")
    P(f"v_add_f32 v{mx}, v{a}, v{a+1}")
    P(f"v_add_f32 v{mn}, v{b}, v{b+1}")
    P(f"v_rcp_f32 v{mx}, v{mx}")
    P(f"v_rcp_f32 v{mn}, v{mn}")
    for k in range(0, 16, 2):
        P(f"v_pk_mul_f32 {v(T+k,2)}, {v(T+k,2)}, {v(mx,2)} op_sel_hi:[1,0]")
    for k in range(8):
        P(f"v_cvt_pk_bf16_f32 v{T+k}, v{T+2*k}, v{T+2*k+1}")
    for k in range(0, 16, 2):
        P(f"v_pk_mul_f32 {v(Pr+k,2)}, {v(Pr+k,2)}, {v(mx,2)} op_sel:[0,1] op_sel_hi:[1,1]")
    for k in range(8):
        P(f"v_cvt_pk_bf16_f32 v{Pr+k}, v{Pr+2*k}, v{Pr+2*k+1}")


def wphi_frags(P, lane, F, A, t0, t1):
    P(f"v_and_b32 v{t0}, 1, v{lane}")
    P(f"v_lshlrev_b32 v{t0}, 9, v{t0}")
    P(f"v_lshrrev_b32 v{t1}, 5, v{lane}")
    P(f"v_lshl_add_u32 v{t0}, v{t1}, 7, v{t0}")
    P(f"v_bfe_u32 v{t1}, v{lane}, 2, 2")
    P(f"v_lshl_add_u32 v{t0}, v{t1}, 5, v{t0}")
    P(f"v_bfe_u32 v{t1}, v{lane}, 4, 1")
    P(f"v_lshl_add_u32 v{t0}, v{t1}, 4, v{t0}")
    P(f"v_bfe_u32 v{t1}, v{lane}, 1, 1")
    P(f"v_lshl_add_u32 v{t0}, v{t1}, 3, v{t0}")
    P(f"v_add_u32 v{t0}, {WPHI}, v{t0}")
    for p in range(2):
        P(f"ds_read_b64_tr_b16 {v(F+4*p,2)}, v{t0} offset:{p*1024}")
        P(f"ds_read_b64_tr_b16 {v(F+4*p+2,2)}, v{t0} offset:{p*1024+256}")
    P(f"s_mov_b32 s82, 0x0f0f0f0f")
    P(f"s_mov_b32 s83, 0x0f0f0f0f")
    for p in range(2):
        for k in range(4):
            P(f"v_cndmask_b32 v{A+8*p+k}, 0, v{F+4*p+k}, {sMASK}")
            P(f"v_cndmask_b32 v{A+8*p+4+k}, v{F+4*p+k}, 0, {sMASK}")


def gen(cfg):
    segs = []
    log = []
    LA = cfg.LA

    P = Prog()
    P("s_cmp_ge_u32 s2, 256")
    P("s_cbranch_scc1 L_end")
    P("s_load_dwordx16 s[4:19], s[0:1], 0")
    P("s_load_dwordx4 s[20:23], s[0:1], 64")
    P("s_load_dwordx2 s[24:25], s[0:1], 80")
    if cfg.stamps:
        P("s_memrealtime s[98:99]" if cfg.rt else "s_memtime s[98:99]")
    if cfg.stamps or cfg.padT:
        P("s_memrealtime s[96:97]")
    if cfg.codepf:
        P("s_getpc_b64 s[100:101]")
        P.label("L_pcref")
        P(f"s_lshr_b32 {sT0}, s2, 3")
        P(f"s_lshl_b32 {sT0}, {sT0}, 12")
        P(f"s_min_u32 {sT0}, {sT0}, L_codeend-L_pcref-4096")
        P(f"s_add_u32 s100, s100, {sT0}")
        P("s_addc_u32 s101, s101, 0")
        P("v_lshlrev_b32 v1, 3, v0")
        P("global_load_dword v252, v1, s[100:101]")
    P("v_lshrrev_b32 v1, 6, v0")
    P("v_and_b32 v0, 63, v0")
    P(f"v_readfirstlane_b32 {sT4}, v1")
    P(f"s_and_b32 {sT0}, s2, 7")
    P(f"s_lshr_b32 {sT1}, s2, 3")
    if cfg.map84:
        P(f"s_and_b32 {sRB}, {sT0}, 1")
        P(f"s_lshl_b32 {sRB}, {sRB}, 3")
        P(f"s_lshr_b32 {sT2}, {sT1}, 2")
        P(f"s_add_u32 {sRB}, {sRB}, {sT2}")
        P(f"s_bfe_u32 {sTYPE}, {sT1}, 0x10001")
        P(f"s_and_b32 {sJ}, {sT0}, 6")
        P(f"s_and_b32 {sT2}, {sT1}, 1")
        P(f"s_add_u32 {sJ}, {sJ}, {sT2}")
        if cfg.rotm == 0:
            P(f"s_and_b32 {sT2}, {sT1}, 3")
            P(f"s_lshl_b32 {sT2}, {sT2}, 1")
        elif cfg.rotm == 1:
            P(f"s_and_b32 {sT2}, {sT1}, 1")
            P(f"s_lshl_b32 {sT2}, {sT2}, 2")
        elif cfg.rotm == 2:
            P(f"s_and_b32 {sT2}, {sT1}, 3")
            P(f"s_lshl_b32 {sT2}, {sT2}, 1")
            P(f"s_bfe_u32 {sT3}, {sT0}, 0x10001")
            P(f"s_add_u32 {sT2}, {sT2}, {sT3}")
        P(f"s_add_u32 {sROT}, {sRB}, {sT2}")
        P(f"s_and_b32 {sROT}, {sROT}, 7")
    else:
        P(f"s_and_b32 {sRB}, {sT0}, 3")
        P(f"s_lshl_b32 {sRB}, {sRB}, 2")
        P(f"s_lshr_b32 {sT2}, {sT1}, 3")
        P(f"s_add_u32 {sRB}, {sRB}, {sT2}")
        P(f"s_bfe_u32 {sTYPE}, {sT1}, 0x10002")
        P(f"s_and_b32 {sJ}, {sT0}, 4")
        P(f"s_and_b32 {sT3}, {sT1}, 3")
        P(f"s_add_u32 {sJ}, {sJ}, {sT3}")
        P(f"s_lshl_b32 {sT2}, {sT2}, 1")
        P(f"s_add_u32 {sROT}, {sT1}, {sT2}")
        P(f"s_and_b32 {sROT}, {sROT}, 7")
    P(f"s_lshl_b32 {sR2}, {sT0}, 2")
    P(f"s_lshr_b32 {sT2}, {sT1}, 3")
    P(f"s_add_u32 {sR2}, {sR2}, {sT2}")
    P(f"s_and_b32 {sC2}, {sT1}, 7")
    P(f"s_and_b32 {sW}, {sT4}, 3")
    P(f"v_lshlrev_b32 v{vL16}, 4, v0")
    P(f"s_mov_b32 {sHI}, 0xffff0000")
    P(f"s_cmp_ge_u32 {sT4}, 4")
    P("s_cbranch_scc1 L_p2")
    pro, st0 = finalize(P, None, log)
    segs.append(pro)

    stamp_regs = [f"s{i}" for i in range(40, 56)]
    P = Prog()
    ST = Stamps(cfg, stamp_regs)
    if cfg.stamps:
        ST.regs = ["s98"] + stamp_regs; ST.n = 1; ST.names = ["start"]
    NXB = 7
    P("v_lshrrev_b32 v36, 3, v0")
    P("v_lshlrev_b32 v36, 10, v36")
    P("v_lshrrev_b32 v37, 4, v0")
    P("v_and_b32 v38, 7, v0")
    P("v_xor_b32 v38, v38, v37")
    P("v_lshl_add_u32 v32, v38, 4, v36")
    P("v_xor_b32 v33, 64, v32")
    P(f"v_add_u32 v33, {8*1024-1024}, v33")
    P(f"v_add_u32 v34, {16*1024-2048}, v32")
    P(f"v_add_u32 v35, {16*1024-2048}, v33")
    P(f"s_lshl_b32 {sT0}, {sRB}, 2")
    P(f"s_add_u32 {sT0}, {sT0}, {sW}")
    P(f"s_lshl_b32 {sT1}, {sT0}, 15")
    P(f"s_mul_i32 {sT2}, {sW}, {NXB*4096}")
    P(f"s_add_u32 {sT2}, {sT2}, {XB0}")
    P("s_waitcnt lgkmcnt(0)")
    srd(P, SX, 4, 2048 * 1024)
    def xdma(b):
        P(f"s_add_u32 {sT3}, {sROT}, {b}")
        P(f"s_and_b32 {sT3}, {sT3}, 7")
        P(f"s_lshl_b32 {sT3}, {sT3}, 7")
        P(f"s_add_u32 m0, {sT2}, {(b % NXB) * 4096}")
        P(f"s_add_u32 {sT3}, {sT3}, {sT1}")
        for q in range(4):
            P(f"buffer_load_dwordx4 v{32+q}, {SX}, {sT3} offen offset:{q*1024}{NT[cfg.ntx]} lds", tok=f"x{b}")
    for b in range(cfg.xd): xdma(b)
    srd(P, SWS, 24, WS_BYTES)
    srd(P, SDBG, 22, 256)
    P(f"s_mul_i32 s27, {sT0}, {144*1024}")
    P(f"s_lshl_b32 {sT4}, {sT0}, 5")
    P(f"s_lshl_b32 {sT5}, {sTYPE}, 3")
    P(f"s_add_u32 {sT4}, {sT4}, {sT5}")
    P(f"s_add_u32 {sT4}, {sT4}, {sJ}")
    P(f"s_lshl_b32 {sT4}, {sT4}, 7")
    P(f"s_add_u32 s88, {sT4}, {FLAGH_OFF}")
    P(f"s_mov_b32 {sC1}, {NLOG2E:#x}")
    P(f"s_mov_b32 {sC2K}, {LOG2E:#x}")
    P("v_and_b32 v36, 31, v0")
    P("v_lshlrev_b32 v37, 7, v36")
    P("v_bfe_u32 v38, v0, 1, 3")
    P("v_lshrrev_b32 v39, 5, v0")
    P("v_xor_b32 v38, v38, v39")
    P("v_lshl_add_u32 v37, v38, 4, v37")
    P(f"v_add_u32 v40, {sT2}, v37")
    for t in range(1, 4):
        P(f"v_xor_b32 v{40+t}, {32*t}, v40")
    p1_common(P)
    p1_taddr(P, "pair")
    P("v_mov_b32 v44, 0x3f803f80")
    for k in range(4): P(f"v_mov_b32 v{48+k}, 0")
    def dots(bb):
        for r in range(16):
            reg = XR(4 * bb) + r
            P(f"v_dot2c_f32_bf16 v{48+2*(r&1)}, v{reg}, v44")
            P(f"v_dot2c_f32_bf16 v{49+2*(r&1)}, v{reg}, v{reg}")
    NC = cfg.nc
    def ln_task(t):
        tb = 96 + 8 * (t & 3)
        U, F, C = Prog(), Prog(), Prog()
        for d in range(4):
            if t // 4 >= NC:
                U(f"v_lshlrev_b32 v{tb+2*d}, 16, v{XR(t)+d}")
                U(f"v_and_b32 v{tb+2*d+1}, {sHI}, v{XR(t)+d}")
                F(f"v_fma_f32 v{tb+2*d}, v{tb+2*d}, v{vRS}, -v{vMR}")
                F(f"v_fma_f32 v{tb+2*d+1}, v{tb+2*d+1}, v{vRS}, -v{vMR}")
            else:
                F(f"v_fma_mix_f32 v{tb+2*d}, v{XR(t)+d}, v{vRS}, -v{vMR} op_sel_hi:[1,0,0]")
                F(f"v_fma_mix_f32 v{tb+2*d+1}, v{XR(t)+d}, v{vRS}, -v{vMR} op_sel:[1,0,0] op_sel_hi:[1,0,0]")
            C(f"v_cvt_pk_bf16_f32 v{XR(t)+d}, v{tb+2*d}, v{tb+2*d+1}")
        return U.ins, F.ins, C.ins
    def tof16(bb):
        for r0 in range(0, 16, 4):
            for r in range(r0, r0 + 4):
                reg = XR(4 * bb) + r
                P(f"v_lshlrev_b32 v{56+2*(r&3)}, 16, v{reg}")
                P(f"v_and_b32 v{57+2*(r&3)}, {sHI}, v{reg}")
            for r in range(r0, r0 + 4):
                P(f"v_cvt_pk_f16_f32 v{XR(4*bb)+r}, v{56+2*(r&3)}, v{57+2*(r&3)}")
    for b in range(8):
        if b + cfg.xd < 8:
            if b + cfg.xd >= NXB: P.wait(f"xr{b+cfg.xd-NXB}")
            xdma(b + cfg.xd)
        P.wait(f"x{b}")
        for t in range(4):
            P(f"ds_read_b128 {v(XR(4*b+t),4)}, v{40+t} offset:{(b%NXB)*4096}", tok=f"xr{b}")
        if b >= 1:
            dots(b - 1)
            if b - 1 < NC: tof16(b - 1)
        if b == 2 and NC == 0:
            for t in range(3): P.extend(ln_task(t)[0])
    P.wait("xr7")
    P(f"s_mov_b32 s84, {sT1}")
    ST(P, "xdone")
    P("s_barrier")
    P(f"s_cmp_eq_u32 {sTYPE}, 1")
    P("s_cbranch_scc1 L_p1t2")
    p1a, stA = finalize(P, st0, log)
    segs.append(p1a)
    fb_text = []
    def stats_fin(P_):
        nonlocal P
        P = P_
        P(f"buffer_load_dword v11, off, {SDBG}, 0 sc1")
        dots(7)
        P("v_pk_add_f32 v[48:49], v[48:49], v[50:51]")
        P("v_mov_b32 v50, v48")
        P("v_mov_b32 v51, v49")
        P("v_permlane32_swap_b32 v48, v50")
        P("v_permlane32_swap_b32 v49, v51")
        P("v_pk_add_f32 v[48:49], v[48:49], v[50:51]")
        if NC:
            P("v_mov_b32 v52, v49")
            P("v_cmp_nge_f32 vcc, 0x4f000000, v49")
        P("v_mul_f32 v48, 0x3b000000, v48")
        P("v_mul_f32 v49, 0x3b000000, v49")
        P("v_fma_f32 v49, -v48, v48, v49")
        P("v_max_f32 v49, 0, v49")
        P("v_add_f32 v49, 0x3727c5ac, v49")
        P(f"v_rsq_f32 v{vRS}, v49")
        P(f"v_mul_f32 v{vMR}, v48, v{vRS}")
        if NC:
            Lf, Lr = newlabel("fb"), newlabel("fbr")
            P("s_cmp_lg_u64 vcc, 0")
            P(f"s_cbranch_scc1 {Lf}")
            P.label(Lr)
            T = Prog()
            T.label(Lf)
            T("v_frexp_exp_i32_f32 v53, v52")
            T("v_add_u32 v53, 1, v53")
            T("v_ashrrev_i32 v53, 1, v53")
            T("v_subrev_u32 v53, 14, v53")
            T("v_max_i32 v53, 0, v53")
            T("v_sub_u32 v54, 0, v53")
            T(f"v_ldexp_f32 v{vRS}, v{vRS}, v53")
            T("v_and_b32 v55, 31, v0")
            T("v_lshlrev_b32 v55, 10, v55")
            T("v_lshrrev_b32 v56, 5, v0")
            T("v_lshl_add_u32 v55, v56, 4, v55")
            for b in range(8):
                T(f"s_add_u32 {sT3}, {sROT}, {b}")
                T(f"s_and_b32 {sT3}, {sT3}, 7")
                T(f"s_lshl_b32 {sT3}, {sT3}, 7")
                T(f"s_add_u32 {sT3}, {sT3}, s84")
                for t in range(4):
                    T(f"buffer_load_dwordx4 {v(XR(4*b+t),4)}, v55, {SX}, {sT3} offen offset:{32*t}")
            T("s_waitcnt vmcnt(0)")
            for r in range(128):
                reg = X0 + r
                T(f"v_lshlrev_b32 v56, 16, v{reg}")
                T(f"v_and_b32 v57, {sHI}, v{reg}")
                T("v_ldexp_f32 v56, v56, v54")
                T("v_ldexp_f32 v57, v57, v54")
                T(f"{'v_cvt_pk_f16_f32' if r // 16 < NC else 'v_cvt_pk_bf16_f32'} v{reg}, v56, v57")
            T(f"s_branch {Lr}")
            fb_text.append(text_of(T.ins))
        LN = [ln_task(t) for t in range(32)]
        P.extend(LN[0][1]); P.extend(LN[0][2])
        P.extend(LN[1][1])
        return LN

    sched = []
    NM = 320
    last_read_of_stage = {}
    first_use = {}
    last_use = {}
    def add_pass4(pid, stage0, sets, skew, stag):
        order = []
        if skew == 2:
            for tp in (0, 2):
                for c in (0, 1):
                    for tl in (tp, tp + 1):
                        for kk in range(4): order.append((c, kk, tl))
        elif skew == 1:
            for tl in range(4):
                for kk in range(4): order.append((0, kk, tl))
        for c in range(skew, 8 - abs(stag)):
            for kk in range(4):
                for tl in range(4): order.append((c, kk, tl))
        if stag:
            for tl in ((0, 1, 2, 3) if stag > 0 else (1, 0, 2, 3)):
                for c in range(8 - abs(stag), 8):
                    for kk in range(4): order.append((c, kk, tl))
        for (c, kk, tl) in order:
            sched.append((stage0 + c, kk * 2048, tl, sets[tl], 4 * c + kk, c == 0 and kk == 0, pid))
    def add_pass2(pid, stage0, sets, stag=0):
        if stag == 2:
            for cc in range(2):
                for (hh, kk, tl) in [(hh, kk, tl) for hh in range(2) for kk in range(4) for tl in range(2)]:
                    sched.append((stage0 + cc, kk * 2048, 2 * hh + tl, sets[tl], 8 * cc + 4 * hh + kk, cc == 0 and hh == 0 and kk == 0, pid))
            for tl in range(2):
                for cc in (2, 3):
                    for hh in range(2):
                        for kk in range(4):
                            sched.append((stage0 + cc, kk * 2048, 2 * hh + tl, sets[tl], 8 * cc + 4 * hh + kk, False, pid))
            return
        for cc in range(4):
            o = [(hh, kk, tl) for hh in range(2) for kk in range(4) for tl in range(2)]
            if stag and cc == 3:
                o = [(hh, kk, tl) for tl in range(2) for hh in range(2) for kk in range(4)]
            for (hh, kk, tl) in o:
                sched.append((stage0 + cc, kk * 2048, 2 * hh + tl, sets[tl], 8 * cc + 4 * hh + kk, cc == 0 and hh == 0 and kk == 0, pid))
    S0, S1, S2_, S3, S4, S5 = SET
    def build_sched(typ):
        del sched[:]
        if typ == 0:
            add_pass4(0, 0, [S0, S1, S2_, S3], 0, -1)
            add_pass4(1, 8, [S0, S1, S2_, S3], 0, 1)
            add_pass2(2, 16, [S4, S5], cfg.stag1)
        else:
            add_pass2(0, 0, [S0, S1])
            add_pass4(1, 4, [S2_, S3, S4, S5], 0, 1)
            add_pass4(2, 12, [S0, S1, S2_, S3], 2, cfg.stag2)
        assert len(sched) == NM
        first_use.clear(); last_use.clear()
        for n, e in enumerate(sched):
            last_read_of_stage[e[0]] = n
            first_use.setdefault((e[6], e[3]), n)
            last_use[(e[6], e[3])] = n

    def reads(n):
        stage, off, tl, S, xt, first, pid = sched[n]
        fb = FR0 + 4 * (n % LA)
        o = ((stage % 4) if stage < 18 else stage - 16) * SLOT + off
        return [Ins(f"ds_read_b64_tr_b16 {v(fb,2)}, v{TA[tl]} offset:{o}", tok=f"fr{n}a"),
                Ins(f"ds_read_b64_tr_b16 {v(fb+2,2)}, v{TA[tl]} offset:{o+512}", tok=f"fr{n}")]

    passed = [0]
    def group(n, pre_reads=None, lim=NM):
        stage, off, tl, S, xt, first, pid = sched[n]
        fb = FR0 + 4 * (n % LA)
        g = []
        c = "0" if first else v(S, 16)
        g.append(Ins(f"v_mfma_f32_32x32x16_bf16 {v(S,16)}, {v(fb,4)}, {v(XR(xt),4)}, {c}"))
        m = n + LA
        if m < lim:
            ns = sched[m][0]
            if ns > passed[0]:
                assert ns == passed[0] + 1
                if ns >= 2:
                    g.append(Ins("WAIT", waitfor=[f"fr{last_read_of_stage[ns-2]}"]))
                if pre_reads and ns in pre_reads:
                    g.extend(pre_reads[ns])
                if ns < 18:
                    g.append(Ins("s_barrier"))
                else:
                    g.append(Ins(f"ds_write_b32 v8, v9 offset:{16*(ns-18)}"))
                    if ns == 18:
                        for t in range(4): g.append(Ins(f"v_add_u32 v{TA[t]}, 0x10000, v{TA[t]}"))
                passed[0] = ns
            g.extend(reads(m))
        if n % 2 == 1 and n + 2 < lim:
            g.append(Ins("WAIT", waitfor=[f"fr{n+2}"]))
        return g
    BIG = 10 ** 6

    def p1_rest(typ):
        P = Prog()
        S2 = ST.fork()
        passed[0] = 0
        build_sched(typ)
        def run(lo, hi, tasks, pre, cap, lim=NM):
            groups = [group(n, pre, lim) for n in range(lo, hi)]
            t2 = [(max(r - lo, 0), d - lo, l) for (r, d, l) in tasks]
            body, rest = weave(groups, t2, cap)
            P.extend(body)
            return rest
        def progsetup():
            P(f"s_lshl_b32 {sT4}, {sW}, 2")
            P(f"s_add_u32 {sT4}, {sT4}, {LFLAG}")
            P(f"v_mov_b32 v8, {sT4}")
            P(f"v_mov_b32 v9, 1")
        def ringdone():
            P(f"ds_write_b32 v8, v9 offset:32")
        def ln_pass(LN, ng, nend, lim):
            fill = []
            for t in range(32):
                for g in range(ng):
                    a, b = 4 // ng, 8 // ng
                    f = []
                    if t + 1 < 32: f += LN[t + 1][2][a * g:a * g + a]
                    if t + 2 < 32: f += LN[t + 2][1][b * g:b * g + b]
                    if t + 3 < 32: f += LN[t + 3][0][b * g:b * g + b]
                    fill.append(f)
            for n in range(nend):
                P.extend(group(n, None, lim))
                P.extend(fill[n])
            for f in fill[nend:]: P.extend(f)
        if typ == 1: P.label("L_p1t2")
        for n in range(LA): P.extend(reads(n))
        LN = stats_fin(P)
        if typ == 1:
            P(f"s_lshl_b32 {sT1}, {sJ}, 13")
            P(f"s_add_u32 {sT1}, {sT1}, s27")
            P(f"s_add_u32 {sT2}, {sT1}, 4096")
            P(f"s_lshl_b32 {sT4}, {sW}, 12")
            P(f"s_add_u32 {sT4}, {sT4}, {7*SLOT}")
            ln_pass(LN, 2, 64 - LA, NM)
            poll_nonce(P, cfg, "v11")
            S2(P, "passQ")
            p1_taddr(P, "gu")
            P(f"v_add_u32 v10, {sT4}, v{vL16}")
            progsetup()
            pre = {}; tasks = []
            Q = Prog()
            for i, S in enumerate((S0, S1)):
                for k in range(8): Q(f"v_cvt_pk_bf16_f32 v{S+k}, v{S+2*k}, v{S+2*k+1}")
                Q(f"ds_write_b128 v10, {v(S,4)} offset:{2048*i}")
                Q(f"ds_write_b128 v10, {v(S+4,4)} offset:{2048*i+1024}", tok=f"evacQ{i}")
            tasks.append((65, 16 * cfg.qb - LA - 2, Q.ins))
            pre[cfg.qb] = [Ins("WAIT", waitfor=["evacQ1"])]
            Q = Prog(); tag_setup(Q, TG1, sTM)
            tasks.append((90, BIG, Q.ins))
            for i, S in enumerate((S2_, S3, S4, S5)):
                dl = first_use.get((2, S), BIG)
                tasks.append((last_use[(1, S)] + 2, dl, sigmoid_task(S, sT1, 1024 * i, f"hA{i}")))
            for i, S in enumerate((S0, S1, S2_, S3)):
                tasks.append((last_use[(2, S)] + 2, BIG, sigmoid_task(S, sT2, 1024 * i, f"hB{i}")))
            rest = run(64 - LA, NM, tasks, pre, cfg.cap2)
            ringdone()
            S2(P, "gemm")
            P.extend(rest)
        else:
            P(f"s_mul_i32 {sT1}, {sJ}, 6144")
            P(f"s_add_u32 {sT1}, {sT1}, s27")
            P(f"s_add_u32 {sT1}, {sT1}, {64*1024}")
            P(f"s_and_b32 {sT3}, {sJ}, 1")
            P(f"s_lshl_b32 {sT2}, {sT3}, 11")
            P(f"s_add_u32 {sT2}, {sT2}, {sT1}")
            P(f"s_xor_b32 {sT3}, {sT3}, 1")
            P(f"s_lshl_b32 {sT3}, {sT3}, 12")
            P(f"s_add_u32 {sT3}, {sT3}, {sT1}")
            P(f"s_lshl_b32 {sT4}, {sW}, 11")
            P(f"s_add_u32 {sT4}, {sT4}, {PHI}")
            ln_pass(LN, 4, 112, 128)
            poll_nonce(P, cfg, "v11")
            tasks = []
            AD = S5 + 8
            Q = Prog()
            Q(f"v_add_u32 v3, {WF}, v{vL16}")
            Q(f"v_add_u32 v{AD+2}, {sT4}, v{vL16}")
            Q(f"ds_read_b128 {v(S5,4)}, v3")
            Q(f"ds_read_b128 {v(S5+4,4)}, v3 offset:1024")
            Q(f"v_and_b32 v2, 31, v0")
            Q(f"v_lshlrev_b32 v2, 6, v2")
            Q(f"v_bfe_u32 v11, v0, 1, 2")
            Q(f"v_lshl_add_u32 v2, v11, 4, v2")
            Q(f"v_add_u32 v2, {sT4}, v2")
            Q(f"v_and_b32 v11, 32, v0")
            Q(f"v_xor_b32 v{AD}, v2, v11")
            Q(f"v_add_u32 v{AD}, {VIMG-PHI}, v{AD}")
            Q(f"v_xor_b32 v{AD+1}, 16, v{AD}")
            Q("v_lshl_add_u32 v2, v11, 8, v2")
            Q("v_xor_b32 v3, 16, v2")
            Q("v_xor_b32 v10, 32, v2")
            Q("v_xor_b32 v11, 48, v2")
            tasks.append((112, BIG, Q.ins))
            Q = Prog()
            for k in range(8): Q(f"v_cvt_pk_bf16_f32 v{S1+k}, v{S1+2*k}, v{S1+2*k+1}")
            Q(f"ds_write_b128 v{AD+2}, {v(S1,4)} offset:{2*8192}")
            Q(f"ds_write_b128 v{AD+2}, {v(S1+4,4)} offset:{3*8192}", tok="evacK")
            tasks.append((last_use[(0, S1)] + 2, BIG, Q.ins))
            Q = Prog()
            for k in range(8): Q(f"v_cvt_pk_bf16_f32 v{S0+k}, v{S0+2*k}, v{S0+2*k+1}")
            tasks.append((last_use[(0, S0)] + 2, BIG, Q.ins))
            Q = Prog()
            for k in range(8): Q(f"v_cvt_pk_bf16_f32 v{S2_+k}, v{S2_+2*k}, v{S2_+2*k+1}")
            tasks.append((last_use[(0, S2_)] + 2, BIG, Q.ins))
            rest = run(112, 128, tasks, {}, cfg.cap + 1, lim=128)
            P.extend(rest)
            P(f"v_mfma_f32_32x32x16_bf16 {v(S4,16)}, {v(S5,4)}, {v(S0,4)}, 0")
            P(f"v_mfma_f32_32x32x16_bf16 {v(S4,16)}, {v(S5+4,4)}, {v(S0+4,4)}, {v(S4,16)}")
            P.wait("evacK")
            P("s_barrier")
            passed[0] = 8
            S2(P, "passKV")
            for k in range(8): P(f"v_cvt_pk_bf16_f32 v{S3+k}, v{S3+2*k}, v{S3+2*k+1}")
            for i, S in enumerate((S2_, S3)):
                P(f"ds_write_b128 v{AD}, {v(S,4)} offset:{i*8192}")
                P(f"ds_write_b128 v{AD+1}, {v(S+4,4)} offset:{i*8192}")
            p1_taddr(P, "gu")
            Q = Prog()
            softmax_pk(Q, S4, S1, AD + 2, "s[26:27]")
            P.extend(Q.ins[:-16])
            P(f"ds_write_b128 v2, {v(S1,4)}")
            P(f"ds_write_b128 v3, {v(S1+4,4)}")
            for n in range(128, 128 + LA): P.extend(reads(n))
            P.extend(Q.ins[-16:])
            P(f"ds_write_b128 v10, {v(S4,4)}")
            P(f"ds_write_b128 v11, {v(S4+4,4)}", tok="phi0")
            if cfg.kvb:
                P.wait("phi0"); P("s_barrier")
            S2(P, "burst")
            pre = {9: [Ins("WAIT", waitfor=["phi0"])]}
            g4 = (S0, S1, S2_, S3)
            E = [(last_use[(1, S)] + 2, BIG, sigmoid_task(S, sT2, 1024 * i, f"hB{i}")) for i, S in enumerate(g4)]
            Q = Prog(); tag_setup(Q, TG1, sTM)
            rest = run(128, 256 - LA, [(150, BIG, Q.ins)] + E[:1], pre, cfg.cap)
            S2(P, "passG")
            p1_taddr(P, "pair")
            progsetup()
            tasks = [(0, BIG, rest)] + E[1:]
            tasks += [(last_use[(2, S)] + 2, BIG, sigmoid_task(S, sT3, 1024 * i, f"hC{i}")) for i, S in enumerate((S4, S5))]
            rest = run(256 - LA, NM, tasks, {}, cfg.capC)
            ringdone()
            S2(P, "gemm")
            P.extend(rest)
        if cfg.hold: P("ds_write_b32 v8, v9 offset:64")
        S2(P, "end")
        S2.dump(P, 0)
        P("s_endpgm")
        r, _ = finalize(P, stA, log)
        return r, S2.names
    p1t1, names_p1t1 = p1_rest(0)
    p1t2, names_p1t2 = p1_rest(1)
    segs.append(p1t1); segs.append(p1t2)

    VW = [2, 3, 4, 5]; VB = [6, 7]; TB = [8, 9]; VA = [10, 11]
    ACC = 16; RING = 80; B2R = 112
    sJ0, sJ1 = "s88", "s89"
    sKK = ["s90", "s91", "s92", "s93"]
    sHB2 = sT5
    p2_stamp_regs = [f"s{i}" for i in list(range(16, 22)) + [25, 60, 61, 62, 63, 36, 37, 38, 39]]

    P = Prog()
    P.label("L_p2")
    ST2 = Stamps(cfg, p2_stamp_regs)
    if cfg.stamps:
        ST2.regs = ["s98"] + p2_stamp_regs; ST2.n = 1; ST2.names = ["start"]
    P("v_lshrrev_b32 v12, 3, v0")
    P("v_and_b32 v13, 7, v0")
    P("v_lshlrev_b32 v13, 4, v13")
    P("v_bfe_u32 v14, v0, 4, 1")
    P("v_lshlrev_b32 v14, 6, v14")
    P("v_xor_b32 v13, v13, v14")
    def wvoff(P, pitch, kind="norm"):
        P(f"s_lshl_b32 {sT0}, {sW}, 4")
        P(f"v_add_u32 v14, {sT0}, v12")
        P(f"v_mul_u32_u24 v14, {pitch}, v14")
        if kind == "norm":
            P(f"v_add_u32 v{VW[0]}, v14, v13")
            P(f"v_xor_b32 v15, 32, v13")
            P(f"v_add_u32 v{VW[2]}, v14, v15")
        else:
            P(f"v_lshrrev_b32 v15, 1, v13")
            P(f"v_and_b32 v15, 32, v15")
            P(f"v_add_u32 v14, v14, v15")
            P(f"v_and_b32 v15, 16, v13")
            P(f"v_add_u32 v{VW[0]}, v14, v15")
            P(f"v_mov_b32 v{VW[2]}, v{VW[0]}")
        P(f"v_add_u32 v{VW[1]}, {8*pitch-1024}, v{VW[0]}")
        P(f"v_add_u32 v{VW[3]}, {8*pitch-1024}, v{VW[2]}")
    P("s_waitcnt lgkmcnt(0)")
    srd(P, SQKV, 6, 512 * 3072)
    srd(P, SX, 4, 2048 * 1024)
    srd(P, SG, 14, 512 * 3584)
    srd(P, SU, 16, 512 * 3584)
    P(f"s_cmp_eq_u32 {sTYPE}, 1")
    P("s_cbranch_scc1 L_p2t2")
    p2pro, st2 = finalize(P, st0, log)
    segs.append(p2pro)

    def p2_rest(typ):
        P = Prog()
        S2 = ST2.fork()
        if typ == 1: P.label("L_p2t2")
        sCL = "s3"
        sM0 = "s27"
        passes = [(0, 8, "KV"), (8, 8, "G4"), (16, 4, "G2")] if typ == 0 else [(0, 4, "Q"), (4, 8, "Ga"), (12, 8, "Gb")]

        def set_pass(kind):
            if kind in ("KV", "Q"):
                wvoff(P, 3072)
                P(f"s_lshl_b32 {sCL}, {sJ}, 7")
                if kind == "KV":
                    P(f"s_add_u32 {sCL}, {sCL}, 1024")
                    P(f"v_add_u32 v{VW[2]}, 1024, v{VW[2]}")
                    P(f"v_add_u32 v{VW[3]}, 1024, v{VW[3]}")
            elif kind == "G4":
                wvoff(P, 3584)
                P(f"s_mul_i32 {sCL}, {sJ}, 192")
                P(f"s_and_b32 {sT0}, {sJ}, 1")
                P(f"s_lshl_b32 {sT0}, {sT0}, 6")
                P(f"s_add_u32 {sCL}, {sCL}, {sT0}")
                P(f"s_add_u32 {sCL}, {sCL}, 2048")
            elif kind == "G2":
                P(f"s_lshl_b32 {sT0}, {sW}, 4")
                P(f"v_add_u32 v14, {sT0}, v12")
                P(f"v_mul_u32_u24 v14, 3584, v14")
                P(f"v_lshrrev_b32 v15, 1, v13")
                P(f"v_and_b32 v15, 32, v15")
                P(f"v_add_u32 v14, v14, v15")
                P(f"v_and_b32 v15, 16, v13")
                P(f"v_add_u32 v14, v14, v15")
                P(f"v_add_u32 v15, {8*3584-1024}, v14")
                P(f"s_mul_i32 s26, {sJ}, 192")
                P(f"s_and_b32 {sT0}, {sJ}, 1")
                P(f"s_xor_b32 {sT0}, {sT0}, 1")
                P(f"s_lshl_b32 {sT0}, {sT0}, 7")
                P(f"s_add_u32 s26, s26, {sT0}")
                P(f"s_add_u32 s26, s26, 2048")
            elif kind == "Ga":
                wvoff(P, 3584)
                P(f"s_lshl_b32 {sCL}, {sJ}, 8")
            elif kind == "Gb":
                P(f"s_add_u32 {sCL}, {sCL}, 128")

        seen_pass = set()
        def wchunk(s, sides=(0, 1)):
            s0, ns, kind = [p for p in passes if p[0] <= s < p[0] + p[1]][0]
            if kind not in seen_pass:
                set_pass(kind); seen_pass.add(kind)
            isqkv = kind in ("KV", "Q")
            pitch = 3072 if isqkv else 3584
            for side in sides:
                b = (s - s0) if ns == 8 else 2 * (s - s0) + side
                if side == 0 or ns == 4:
                    P(f"s_add_u32 {sT0}, {sROT}, {b}")
                    P(f"s_and_b32 {sT0}, {sT0}, 7")
                    P(f"s_mul_i32 {sT0}, {sT0}, {64*pitch}")
                    P(f"s_add_u32 {sT1}, {sT0}, {'s26' if kind == 'G2' else sCL}")
                if s >= cfg.skipw: P(f"s_mov_b32 {sT1}, 0x7f000000")
                P(f"s_add_u32 m0, {sM0}, {((s % 4) if s < 18 else s - 12) * SLOT + side * 8192}")
                if kind == "G2":
                    for mat in range(2):
                        mk = "s[100:101]" if (mat ^ side) == 0 else "s[84:85]"
                        P(f"s_mov_b64 exec, {mk}")
                        for q in range(2):
                            P(f"buffer_load_dwordx4 v{14+q}, {SU if mat else SG}, {sT1} offen offset:{1024*q}{NT[cfg.ntw]} lds", tok=f"w{s}")
                    P("s_mov_b64 exec, -1")
                else:
                    sr = SQKV if isqkv else (SU if side else SG)
                    for q in range(2):
                        P(f"buffer_load_dwordx4 v{VW[2*side+q]}, {sr}, {sT1} offen offset:{1024*q}{NT[cfg.ntw]} lds", tok=f"w{s}")

        P(f"s_lshl_b32 {sM0}, {sW}, 11")
        if cfg.wfirst: wchunk(0)
        srd(P, SPHI, 8, 32 * 512)
        srd(P, SWS, 24, WS_BYTES)
        srd(P, SDBG, 22, 256)
        srd(P, SD, 18, 1792 * 1024)
        srd(P, SO, 10, 512 * 1024)
        srd(P, SOUT, 20, 2048 * 1024)
        P(f"s_mov_b32 s24, {LOG2E:#x}")
        P(f"s_lshl_b32 {sJ0}, {sW}, 1")
        P(f"s_add_u32 {sJ0}, {sJ0}, {sC2}")
        P(f"s_add_u32 {sJ1}, {sJ0}, 1")
        P(f"s_and_b32 {sJ0}, {sJ0}, 7")
        P(f"s_and_b32 {sJ1}, {sJ1}, 7")
        P(f"s_lshr_b32 {sT0}, {sC2}, 1")
        P(f"s_add_u32 {sT0}, {sT0}, {sR2}")
        for t in range(4):
            P(f"s_add_u32 {sKK[t]}, {sT0}, {t}")
            P(f"s_and_b32 {sKK[t]}, {sKK[t]}, 3")
        P(f"s_mul_i32 {sHB2}, {sR2}, {2*144*1024}")
        P(f"s_lshl_b32 {sT0}, {sC2}, 7")
        P(f"v_lshl_add_u32 v{VB[0]}, v12, 10, v13")
        P(f"v_add_u32 v{VB[0]}, {sT0}, v{VB[0]}")
        P(f"v_add_u32 v{VB[1]}, {7*1024}, v{VB[0]}")
        P("v_lshrrev_b32 v14, 5, v0")
        P("v_lshlrev_b32 v14, 9, v14")
        P("v_bfe_u32 v15, v0, 2, 2")
        P("v_lshl_add_u32 v14, v15, 7, v14")
        P("v_bfe_u32 v15, v0, 3, 1")
        P("v_lshl_add_u32 v14, v15, 6, v14")
        P("v_bfe_u32 v15, v0, 4, 1")
        P("v_lshl_add_u32 v14, v15, 5, v14")
        P("v_and_b32 v15, 3, v0")
        P("v_lshl_add_u32 v14, v15, 3, v14")
        P(f"s_and_b32 {sT0}, {sW}, 1")
        P(f"s_lshl_b32 {sT0}, {sT0}, 6")
        P(f"v_xor_b32 v14, {sT0}, v14")
        P(f"s_lshl_b32 {sT0}, {sW}, 12")
        P(f"s_add_u32 {sT0}, {sT0}, {4*SLOT}")
        P(f"v_add_u32 v{TB[0]}, {sT0}, v14")
        P(f"v_xor_b32 v{TB[1]}, 64, v{TB[0]}")
        P(f"s_lshr_b32 {sT0}, {sW}, 1")
        P(f"s_mul_i32 {sT1}, {sT0}, {144*1024}")
        P(f"s_sub_u32 {sT2}, {144*1024}, {sT1}")
        P(f"s_add_u32 {sT1}, {sT1}, {sHB2}")
        P(f"s_add_u32 {sT2}, {sT2}, {sHB2}")
        P(f"v_add_u32 v{VA[0]}, {sT1}, v1")
        P(f"v_add_u32 v{VA[1]}, {sT2}, v1")

        def kind_slots(cls, kind, nt=4):
            return [(cls, kind, jsel, t) for jsel in range(2) for t in range(nt)]
        slots = kind_slots(1, "A") + kind_slots(2, "B1") + kind_slots(2, "O") + kind_slots(2, "C1", 2) + kind_slots(2, "B2")
        assert len(slots) == 36
        KB = {(k, j): f"s{4 + 2*i + j}" for i, k in enumerate(("A", "B2", "B1", "C1", "O")) for j in range(2)}
        sKK1 = ["s14", "s15"]
        for j, sj in enumerate((sJ0, sJ1)):
            P(f"s_lshl_b32 {KB['A', j]}, {sj}, 13")
            P(f"s_add_u32 {KB['B2', j]}, {KB['A', j]}, 4096")
            P(f"s_lshl_b32 {KB['O', j]}, {sj}, 12")
            P(f"s_mul_i32 {sT0}, {sj}, 6144")
            P(f"s_and_b32 {sT1}, {sj}, 1")
            P(f"s_lshl_b32 {sT2}, {sT1}, 11")
            P(f"s_add_u32 {KB['B1', j]}, {sT0}, {sT2}")
            P(f"s_add_u32 {KB['B1', j]}, {KB['B1', j]}, {64*1024}")
            P(f"s_lshl_b32 {sT2}, {sT1}, 12")
            P(f"s_sub_u32 {KB['C1', j]}, {sT0}, {sT2}")
            P(f"s_add_u32 {KB['C1', j]}, {KB['C1', j]}, {68*1024}")
        for t in range(4): P(f"s_lshl_b32 {sKK[t]}, {sKK[t]}, 10")
        for t in range(2): P(f"s_and_b32 {sKK1[t]}, {sKK[t]}, 1024")
        P(f"s_lshl_b32 s99, {sW}, 12")

        def ks_to(P, sg, dst):
            cls, kind, jsel, t = slots[sg]
            P(f"s_add_u32 {dst}, {KB[kind, jsel]}, {sKK1[t] if kind == 'C1' else sKK[t]}")

        stagepos = {}
        def b2pos(sg):
            if sg < 18: return stagepos[sg]
            k = sg - 18
            return [8, 4, 5, 2, 3, 0, 1, 6, 7][k // 2] * SLOT + (k % 2) * 2048

        thr_on = [False]
        def throttle():
            if thr_on[0] and cfg.thr: P(f"s_waitcnt vmcnt({cfg.thr})")
        vmlog = []
        def b2dma(sg, P_=None):
            if P_ is None:
                throttle(); vmlog.append(("b", sg))
                b2dma_(P, sg)
            else:
                b2dma_(P_, sg)
        def b2dma_(P, sg):
            ks_to(P, sg, sT2)
            P(f"s_add_u32 m0, s99, {b2pos(sg)}")
            if cfg.b2hit: P(f"s_and_b32 {sT2}, {sT2}, 0x7fff")
            P(f"s_lshl_b32 {sT2}, {sT2}, 4")
            sr = SO if slots[sg][1] == "O" and not cfg.b2hit else SD
            if sg >= cfg.skipb: P(f"s_mov_b32 {sT2}, 0x7f000000")
            for q in range(2):
                P(f"buffer_load_dwordx4 v{VB[q]}, {sr}, {sT2} offen offset:{1024*q}{NT[cfg.ntb]} lds", tok=f"b{sg}")

        def b2touch(sg):
            junk = 16 if typ == 0 else 232
            ks_to(P, sg, sT2)
            P(f"s_lshl_b32 {sT2}, {sT2}, 4")
            sr = SO if slots[sg][1] == "O" else SD
            for q in range(2):
                P(f"buffer_load_dword v{junk+touchn[0]%16}, v{VB[q]}, {sr}, {sT2} offen offset:{1024*q}")
                touchn[0] += 1
        touchn = [0]
        tb_base = [4 * SLOT]
        def b2read(sg, regs):
            pos = b2pos(sg)
            want = (pos // (4 * SLOT)) * 4 * SLOT
            if want != tb_base[0]:
                d = want - tb_base[0]
                for ct in range(2):
                    if d > 0: P(f"v_add_u32 v{TB[ct]}, {d}, v{TB[ct]}")
                    else: P(f"v_subrev_u32 v{TB[ct]}, {-d}, v{TB[ct]}")
                tb_base[0] = want
            o = pos - want
            P.wait(f"b{sg}")
            for ct in range(2):
                P(f"ds_read_b64_tr_b16 {v(regs[ct],2)}, v{TB[ct]} offset:{o}")
                P(f"ds_read_b64_tr_b16 {v(regs[ct]+2,2)}, v{TB[ct]} offset:{o+1024}", tok=f"br{sg}")

        per = cfg.per2 if typ == 1 else cfg.per1
        def poswin(pos, final):
            sl = pos // SLOT
            if sl == 8: return (0, 5) if not final else ((10, 99) if typ == 0 else (0, 99))
            if sl in (4, 5): return (0, 99)
            if sl == 2: return (16, 99)
        occupant = {}
        stg = [8 * SLOT, 8 * SLOT + 2048, 4 * SLOT, 4 * SLOT + 2048, 5 * SLOT, 5 * SLOT + 2048]
        todo_reg = sorted(range(18), key=lambda x: (x >= 15 and typ == 1, slots[x][3] != 0, x)) if cfg.tmajor else list(range(18))
        todo_fin = list(range(18, 26))
        readdone = set()
        pend_reads = []
        defer = {15: 99, 16: 99, 17: 99} if typ == 1 else {}
        extra = {}
        first = {}
        last = {}
        def vpart(lst):
            if cfg.vprio: P(f"s_setprio {cfg.vprio}")
            P.extend(lst)
            if cfg.vprio: P("s_setprio 0")
        def split(smi, nparts):
            tot = sum(i.cost for i in smi)
            parts = [[] for _ in range(nparts)]
            acc = 0
            for i in smi:
                parts[min(nparts - 1, acc * nparts // tot)].append(i); acc += i.cost
            return parts

        fillv = "0x3f803f80" if typ == 0 else "0"
        for k in range(4): P(f"v_mov_b32 v{16+k}, {fillv}")
        for k in range(4): P(f"v_mov_b32 v{20+k}, 0")
        P(f"v_add_u32 v14, {sM0}, v1")
        P(f"v_add_u32 v14, {KVF}, v14")
        P(f"ds_write_b128 v14, v[16:19]")
        P(f"ds_write_b128 v14, v[16:19] offset:1024")
        P(f"v_add_u32 v14, {ZL}, v1")
        P(f"ds_write_b128 v14, v[20:23]")
        if typ == 0:
            KF = 16; A1 = 24; PP = 32; TT = 48; TM = 96; VF = 64
            P(f"s_lshl_b32 {sT0}, {sW}, 11")
            P(f"s_add_u32 {sT0}, {sT0}, {PHI+16384}")
            P("v_and_b32 v100, 31, v0")
            P("v_lshlrev_b32 v100, 6, v100")
            P("v_bfe_u32 v14, v0, 1, 2")
            P("v_lshl_add_u32 v100, v14, 4, v100")
            P("v_lshrrev_b32 v14, 5, v0")
            P("v_lshl_add_u32 v100, v14, 13, v100")
            P(f"v_add_u32 v100, {sT0}, v100")
            for q in range(1, 4): P(f"v_xor_b32 v{100+q}, {16*q}, v100")
            P(f"v_add_u32 v111, {sT0}, v1")
            P("v_lshrrev_b32 v14, 5, v0")
            P("v_lshlrev_b32 v14, 9, v14")
            P("v_bfe_u32 v15, v0, 2, 2")
            P("v_lshl_add_u32 v14, v15, 6, v14")
            P("v_and_b32 v15, 1, v0")
            P("v_lshl_add_u32 v14, v15, 5, v14")
            P("v_bfe_u32 v15, v0, 4, 1")
            P("v_lshl_add_u32 v14, v15, 4, v14")
            P("v_bfe_u32 v15, v0, 1, 1")
            P("v_lshl_add_u32 v14, v15, 3, v14")
            P("v_bfe_u32 v15, v0, 3, 1")
            P("v_lshlrev_b32 v15, 4, v15")
            P("v_xor_b32 v14, v14, v15")
            P(f"s_and_b32 {sT0}, {sW}, 1")
            P(f"s_lshl_b32 {sT0}, {sT0}, 4")
            P(f"v_xor_b32 v106, {sT0}, v14")
            P(f"s_lshr_b32 {sT0}, {sW}, 1")
            P(f"s_lshl_b32 {sT0}, {sT0}, 13")
            P(f"s_add_u32 {sT0}, {sT0}, {VIMG}")
            P(f"v_mov_b32 v96, {sT0}")
            P(f"v_mov_b32 v97, {KVF}")
            P("s_mov_b32 s82, 0x0000ffff")
            P("s_mov_b32 s83, 0x0000ffff")
            P(f"v_cndmask_b32 v96, v97, v96, {sMASK}")
            P(f"v_add_u32 v106, v96, v106")
            P(f"v_xor_b32 v107, 32, v106")
            P(f"s_lshl_b32 {sT0}, {sW}, 13")
            P(f"s_add_u32 {sT0}, {sT0}, {PHI}")
            P(f"v_add_u32 v104, {sT0}, v14")
            P(f"v_xor_b32 v105, 32, v104")
            P("v_and_b32 v14, 31, v0")
            P("v_lshrrev_b32 v15, 5, v0")
            P("v_lshlrev_b32 v108, 4, v14")
            P("v_lshl_add_u32 v108, v15, 8, v108")
            P("v_add_u32 v109, 512, v108")
            P("v_lshlrev_b32 v96, 5, v15")
            P("v_add_u32 v96, 1024, v96")
            P("v_add_u32 v97, 16, v96")
            P("v_cmp_eq_u32 vcc, 16, v14")
            P("v_cndmask_b32 v108, v108, v96, vcc")
            P("v_cndmask_b32 v109, v109, v97, vcc")
            P("v_mov_b32 v96, 0x7f000000")
            P("v_cmp_lt_u32 vcc, 16, v14")
            P("v_cndmask_b32 v108, v108, v96, vcc")
            P("v_cndmask_b32 v109, v109, v96, vcc")
            P(f"s_lshl_b32 {sT0}, {sJ}, 4")
            P(f"s_add_u32 {sT0}, {sT0}, {sRB}")
            P(f"s_lshl_b32 {sT0}, {sT0}, 2")
            P(f"s_add_u32 {sT0}, {sT0}, {sW}")
            P(f"s_mul_i32 s94, {sT0}, {KVHEAD}")
            P(f"s_add_u32 s94, s94, {KVP_OFF}")
            P(f"s_lshl_b32 s95, {sT0}, 7")
            P(f"s_add_u32 s95, s95, {FLAGKV_OFF}")
        else:
            P(f"s_lshl_b32 {sT0}, {sRB}, 2")
            P(f"s_add_u32 {sT0}, {sT0}, {sW}")
            P(f"s_mul_i32 s94, {sT0}, {144*1024}")
            P(f"s_lshl_b32 {sT1}, {sJ}, 12")
            P(f"s_add_u32 s94, s94, {sT1}")
            P(f"s_add_u32 s94, s94, {112*1024}")
            P(f"s_lshl_b32 s95, {sT0}, 5")
            P(f"s_add_u32 s95, s95, {sJ}")
            P(f"s_lshl_b32 s95, s95, 7")
            P(f"s_add_u32 s95, s95, {FLAGH_OFF + 16*128}")
        def mallwarm(which="gudo"):
            if cfg.wt2 and typ == 0: return
            for rep in range(2 if cfg.wt2 else 1):
                if cfg.wt2:
                    P(f"s_xor_b32 {sT0}, s2, {16*rep}")
                    P(f"s_lshl_b32 {sT0}, {sT0}, 2")
                else:
                    P(f"s_lshl_b32 {sT0}, s2, 2")
                P(f"s_add_u32 {sT0}, {sT0}, {sW}")
                P(f"s_mul_i32 {sT1}, {sT0}, 1792")
                P(f"s_lshl_b32 {sT2}, {sT0}, 9")
                P(f"s_mul_i32 {sT3}, {sT0}, 1536")
                P("v_lshlrev_b32 v14, 5, v0")
                P("v_lshlrev_b32 v15, 3, v0")
                j0 = 232 + 8 * rep
                for q, (ch, sr) in enumerate((("g", SG), ("u", SU), ("d", SD))):
                    if ch in which: P(f"buffer_load_dword v{j0+q}, v14, {sr}, {sT1} offen")
                if "o" in which: P(f"buffer_load_dword v{j0+3}, v15, {SO}, {sT2} offen")
                if "q" in which: P(f"buffer_load_dword v{j0+4}, v14, {SQKV}, {sT3} offen")
        def wf_build():
            P.wait("wphi")
            wphi_frags(P, 0, 32, 16, 14, 15)
            if typ == 0:
                P(f"v_add_u32 v14, {WF}, v1")
                for q in range(2): P(f"ds_write_b128 v14, {v(16+4*q,4)} offset:{q*1024}", tok="wf")
        def early():
            Ln = newlabel("nn")
            P(f"s_or_b32 {sT0}, s2, {sW}")
            P(f"s_cmp_lg_u32 {sT0}, 0")
            P(f"s_cbranch_scc1 {Ln}")
            P.ins.append(Ins(".raw"))
            P.ins[-1].text = (f"  s_memrealtime s[100:101]\n  s_waitcnt lgkmcnt(0)\n  s_or_b32 {sT0}, s100, 1\n  v_mov_b32 v240, {sT0}\n  v_mov_b32 v241, 0\n"
                              f"  v_lshlrev_b32 v242, 26, v0\n  buffer_atomic_cmpswap v[240:241], v242, {SDBG}, 0 offen sc1\n  s_nop 1")
            P.label(Ln)
            P(f"s_lshl_b32 {sT1}, {sJ}, 11")
            P(f"s_mov_b32 m0, {WPHI}")
            P(f"buffer_load_dwordx4 v1, {SPHI}, {sT1} offen lds")
            P(f"buffer_load_dwordx4 v1, {SPHI}, {sT1} offen offset:1024 lds", tok="wphi")
            if not cfg.wfirst: wchunk(0)
        if cfg.tlb:
            P("v_lshlrev_b32 v244, 18, v0")
            P(f"v_add_u32 v244, {0x3ff80}, v244")
            P(f"buffer_load_dword v245, v244, {SWS}, 0 offen")
            P("v_lshlrev_b32 v244, 16, v0")
            for q, sr in enumerate((SOUT, SD, SO, SG, SU, SQKV)):
                P(f"buffer_load_dword v{246+q}, v244, {sr}, 0 offen")
        for _ in range(cfg.wdelay): P("s_sleep 8")
        if cfg.warm == -2: mallwarm("gudoq")
        early()
        if not cfg.w1late: wchunk(1)
        if cfg.warm == -3: mallwarm("gudo")
        if cfg.warm == -4:
            mallwarm("gu"); last.setdefault(0, []).append(lambda: mallwarm("do"))
        if cfg.wflate:
            extra.setdefault(1, []).append(wf_build)
            if typ == 0: last.setdefault(1, []).append(lambda: P.wait("wf"))
        else:
            wf_build()
            if typ == 0: P.wait("wf")
        P("s_waitcnt lgkmcnt(0)")

        def pubflag(tok, val, sadr, t0, t1):
            P(f"s_add_u32 {sT1}, {sNONCE}, {val}")
            P(f"v_mov_b32 v{t0}, {sT1}")
            P(f"v_lshlrev_b32 v{t1}, 26, v0")
            P.wait(tok)
            P(f"buffer_store_dword v{t0}, v{t1}, {SWS}, {sadr} offen sc1")

        if typ == 0:
            def t1_b():
                for hh in range(2):
                    P(f"ds_read_b128 {v(KF+4*hh,4)}, v111 offset:{hh*8192}")
            def t1_burst():
                P("s_setprio 2")
                P(f"v_mfma_f32_32x32x16_bf16 {v(PP,16)}, {v(A1,4)}, {v(KF,4)}, 0")
                P(f"v_mfma_f32_32x32x16_bf16 {v(PP,16)}, {v(A1+4,4)}, {v(KF+4,4)}, {v(PP,16)}")
                Q = Prog()
                softmax_pk(Q, PP, TT, 64, "s[24:25]")
                P.extend(Q.ins[:-16])
                P(f"ds_write_b128 v100, {v(TT,4)}")
                P(f"ds_write_b128 v101, {v(TT+4,4)}")
                P.extend(Q.ins[-16:])
                P(f"ds_write_b128 v102, {v(PP,4)}")
                P(f"ds_write_b128 v103, {v(PP+4,4)}", tok="phi1")
                P("s_setprio 0")
            def t1_rd():
                for ks in range(8):
                    a, b = 32 + 4 * ks, VF + 4 * ks
                    P(f"ds_read_b64_tr_b16 {v(a,2)}, v104 offset:{ks*1024}")
                    P(f"ds_read_b64_tr_b16 {v(a+2,2)}, v105 offset:{ks*1024+256}")
                    P(f"ds_read_b64_tr_b16 {v(b,2)}, v106 offset:{ks*1024}")
                    P(f"ds_read_b64_tr_b16 {v(b+2,2)}, v107 offset:{ks*1024+256}", tok="kvrd")
            def t1_kv():
                D = 16
                P("s_setprio 2")
                for ks in range(8):
                    a, b = 32 + 4 * ks, VF + 4 * ks
                    P(f"v_mfma_f32_32x32x16_bf16 {v(D,16)}, {v(a,4)}, {v(b,4)}, {'0' if ks == 0 else v(D,16)}")
            def t1_st():
                D = 16
                for k in range(8): P(f"v_cvt_pk_bf16_f32 v{D+k}, v{D+2*k}, v{D+2*k+1}")
                P(f"buffer_store_dwordx4 {v(D,4)}, v108, {SWS}, s94 offen sc1")
                P(f"buffer_store_dwordx4 {v(D+4,4)}, v109, {SWS}, s94 offen sc1", tok="kvst")
                P("s_setprio 0")
            first[8] = [t1_b]
            extra[8] = [t1_burst]
            if cfg.kvb:
                extra[8] += [lambda: P.wait("phi1"), lambda: P("s_barrier"), lambda: P("s_setprio 2"), t1_rd, t1_kv, t1_st]
            else:
                last[8] = [lambda: P.wait("phi1")]
                first[9] = [t1_rd]
                extra[9] = [t1_kv, t1_st]
            first[cfg.kvfl] = [lambda: pubflag("kvst", 1, "s95", 96, 97)]
            def t1_masks():
                P("s_mov_b32 s100, 0x33333333"); P("s_mov_b32 s101, 0x33333333")
                P("s_mov_b32 s84, 0xcccccccc"); P("s_mov_b32 s85, 0xcccccccc")
            for s_ in range(10, 16): first.setdefault(s_, []).append(t1_masks)
        else:
            A = 16; QF = 32; PP = [48, 64]; TT = 16; TM = 32; PH = 80
            def t2_b():
                P(f"s_add_u32 {sT0}, s99, {7*SLOT}")
                P(f"v_add_u32 v14, {sT0}, v1")
                for q in range(4): P(f"ds_read_b128 {v(QF+4*q,4)}, v14 offset:{q*1024}", tok="qrd")
            def t2_m():
                P("s_setprio 2")
                for p in range(2):
                    P(f"v_mfma_f32_32x32x16_bf16 {v(PP[p],16)}, {v(A+8*p,4)}, {v(QF+8*p,4)}, 0")
                    P(f"v_mfma_f32_32x32x16_bf16 {v(PP[p],16)}, {v(A+8*p+4,4)}, {v(QF+8*p+4,4)}, {v(PP[p],16)}")
                P("s_setprio 0")
            Q = Prog()
            for p in range(2):
                softmax_core(Q, PP[p], TT, TM, "s24")
                s1, s2 = TM + 2, TM + 3
                Q(f"v_rcp_f32 v{s1}, v{s1}")
                Q(f"v_rcp_f32 v{s2}, v{s2}")
                for k in range(16):
                    Q(f"v_mul_f32 v{TT+k}, v{TT+k}, v{s1}")
                    Q(f"v_mul_f32 v{PP[p]+k}, v{PP[p]+k}, v{s2}")
                for k in range(8):
                    Q(f"v_cvt_pk_bf16_f32 v{PH+16*p+k}, v{TT+2*k}, v{TT+2*k+1}")
                    Q(f"v_cvt_pk_bf16_f32 v{PH+16*p+8+k}, v{PP[p]+2*k}, v{PP[p]+2*k+1}")
            nparts = cfg.smend2 - cfg.qb + 1
            parts = split(Q.ins, nparts)
            first[cfg.qb] = [t2_b]
            for q in range(nparts):
                extra[cfg.qb + q] = [lambda q=q: vpart(parts[q])]
            extra[cfg.qb].insert(0, t2_m)
            dst = [16 + 4 * i for i in range(16)]
            KD, KI, KZ = 232, 248, 252
            def kvflagload():
                P("v_and_b32 v15, 15, v0")
                P("v_lshlrev_b32 v15, 9, v15")
                P("v_lshrrev_b32 v14, 4, v0")
                P("v_lshl_add_u32 v15, v14, 26, v15")
                P(f"s_lshl_b32 s26, {sJ}, 6")
                P(f"s_add_u32 s26, s26, {sW}")
                P(f"s_mul_i32 s84, s26, {KVHEAD}")
                P(f"s_add_u32 s84, s84, {KVP_OFF}")
                P(f"s_mul_i32 s85, {sRB}, {KVREC}")
                P(f"s_lshl_b32 s26, s26, 7")
                P(f"s_add_u32 s26, s26, {FLAGKV_OFF}")
                P(f"buffer_load_dword v14, v15, {SWS}, s26 offen sc1")
                P("v_and_b32 v12, 31, v0")
                P("v_lshrrev_b32 v13, 5, v0")
                P("v_lshlrev_b32 v13, 3, v13")
                P("v_sub_u32 v12, v12, v13")
                P("v_and_b32 v13, 1, v12")
                P("v_lshlrev_b32 v13, 4, v13")
                P(f"s_movk_i32 {sT0}, 0x3f80")
                P(f"v_lshlrev_b32 v13, v13, {sT0}")
                P("v_lshrrev_b32 v12, 1, v12")
                for k in range(4):
                    P(f"v_cmp_eq_u32 vcc, {k}, v12")
                    P(f"v_cndmask_b32 v{KI+k}, 0, v13, vcc")
            def kvissue():
                P("s_mov_b32 s82, 0xffff")
                P("s_mov_b32 s83, 0")
                poll_global(P, cfg, "v14", "v15", SWS, "s26", 1, 1, sMASK)
                S2(P, "kvflag") if not cfg.slotst else None
                P("v_lshrrev_b32 v15, 2, v0")
                P(f"v_mul_u32_u24 v15, {KVREC}, v15")
                P("v_and_b32 v13, 3, v0")
                P("v_lshl_add_u32 v15, v13, 4, v15")
                for i in range(16):
                    P(f"s_add_u32 {sT3}, s84, s85")
                    P(f"buffer_load_dwordx4 {v(dst[i],4)}, v1, {SWS}, {sT3} offen sc1")
                    P(f"s_add_u32 s85, s85, {KVREC}")
                    P(f"s_cmp_eq_u32 s85, {16*KVREC}")
                    P(f"s_cselect_b32 s85, 0, s85")
                    if i == 1: P(f"buffer_load_dwordx4 {v(KZ,4)}, v15, {SWS}, s84 offen offset:1024 sc1")
                P("v_lshlrev_b32 v13, 4, v13")
                P("v_bfe_u32 v15, v0, 4, 1")
                P("v_lshl_add_u32 v13, v15, 2, v13")
                P("v_lshrrev_b32 v14, 5, v0")
                P("v_lshl_add_u32 v13, v14, 1, v13")
                P(f"s_lshl_b32 {sT0}, {sW}, 6")
                P(f"s_add_u32 {sT0}, {sT0}, {ZL}")
                P(f"v_add_u32 v13, {sT0}, v13")
                P("v_and_b32 v12, 15, v0")
                P("v_lshlrev_b32 v12, 4, v12")
                P("v_lshl_add_u32 v12, v14, 3, v12")
                P("v_lshl_add_u32 v12, v15, 11, v12")
                P(f"s_lshr_b32 {sT0}, {sW}, 1")
                P(f"s_lshl_b32 {sT0}, {sT0}, 12")
                P(f"s_and_b32 {sT1}, {sW}, 1")
                P(f"s_mul_i32 {sT1}, {sT1}, 768")
                P(f"s_add_u32 {sT0}, {sT0}, {sT1}")
                P(f"s_add_u32 {sT0}, {sT0}, {KVF}")
                P(f"v_add_u32 v12, {sT0}, v12")
            def kvsum(hook=None):
                P("s_setprio 2")
                Z = 16
                Qz = Prog()
                for k in range(4):
                    Qz(f"v_lshlrev_b32 v{Z+2*k}, 16, v{KZ+k}")
                    Qz(f"v_and_b32 v{Z+1+2*k}, {sHI}, v{KZ+k}")
                for rr in (4, 8):
                    for k in range(8):
                        Qz(f"v_add_f32_dpp v{Z+k}, v{Z+k}, v{Z+k} row_ror:{rr} row_mask:0xf bank_mask:0xf")
                for k in range(0, 8, 2): Qz(f"v_permlane32_swap_b32 v{Z+k}, v{Z+1+k}")
                for k in range(0, 8, 2): Qz(f"v_add_f32 v{Z+k}, v{Z+k}, v{Z+1+k}")
                Qz(f"v_permlane16_swap_b32 v{Z}, v{Z+2}")
                Qz(f"v_permlane16_swap_b32 v{Z+4}, v{Z+6}")
                Qz(f"v_add_f32 v{Z}, v{Z}, v{Z+2}")
                Qz(f"v_add_f32 v{Z+4}, v{Z+4}, v{Z+6}")
                Qz(f"v_cvt_pk_bf16_f32 v{Z}, v{Z}, v{Z+4}")
                zi = Qz.ins
                for i in range(16):
                    P(f"v_mfma_f32_32x32x16_bf16 {v(KD,16)}, {v(KI,4)}, {v(dst[i],4)}, {'0' if i == 0 else v(KD,16)}")
                    if hook: hook(i)
                    if i >= 2:
                        P.extend(zi[:3]); zi = zi[3:]
                P.extend(zi)
                P(f"ds_write_b16 v13, v{Z}")
                P(f"ds_write_b16_d16_hi v13, v{Z} offset:8")
                for k in range(4): P(f"v_cvt_pk_bf16_f32 v{KD+k}, v{KD+2*k}, v{KD+2*k+1}")
                P(f"ds_write_b64 v12, {v(KD,2)}")
                P(f"ds_write_b64 v12, {v(KD+2,2)} offset:1024", tok="kvf")
                if not cfg.kprio: P("s_setprio 0")
            def o_addr():
                P(f"v_add_u32 v12, {KVF}, v1")
                P("v_lshrrev_b32 v13, 5, v0")
                P("v_lshlrev_b32 v13, 6, v13")
                P(f"v_add_u32 v13, {ZL}, v13")
                P(f"v_mov_b32 v14, {ZL+256}")
                P("s_mov_b32 s82, 0x0000ffff")
                P("s_mov_b32 s83, 0xffff0000")
                P(f"v_cndmask_b32 v13, v14, v13, {sMASK}")
            def o_pair(p, hook=None):
                KVR, ZR, NUM, DEN = 16, 32, 48, 64
                for jj in range(4):
                    P(f"ds_read_b128 {v(ZR+4*jj,4)}, v13 offset:{p*128+jj*16}")
                for jj in range(4):
                    P(f"ds_read_b128 {v(KVR+4*jj,4)}, v12 offset:{p*4096+jj*1024}")
                P("s_setprio 2")
                for jj in range(4):
                    P(f"v_mfma_f32_32x32x16_bf16 {v(DEN,16)}, {v(ZR+4*jj,4)}, {v(PH+16*p+4*jj,4)}, {'0' if jj == 0 else v(DEN,16)}")
                for jj in range(4):
                    P(f"v_mfma_f32_32x32x16_bf16 {v(NUM,16)}, {v(KVR+4*jj,4)}, {v(PH+16*p+4*jj,4)}, {'0' if jj == 0 else v(NUM,16)}")
                if hook: hook()
                for h in range(2):
                    P(f"v_add_f32 v{DEN+8*h}, 0x358637bd, v{DEN+8*h}")
                for h in range(2):
                    P(f"v_rcp_f32 v{DEN+8*h}, v{DEN+8*h}")
                for k in range(16):
                    P(f"v_mul_f32 v{NUM+k}, v{NUM+k}, v{DEN+8*(k>>3)}")
                for k in range(8): P(f"v_cvt_pk_bf16_f32 v{NUM+k}, v{NUM+2*k}, v{NUM+2*k+1}")
                for k in range(4): P(f"v_bfi_b32 v{NUM+2*k}, s3, v{2+(k&1)}, v{NUM+2*k}")
                P(f"buffer_store_dwordx4 {v(NUM,4)}, v1, {SWS}, s94 offen offset:{2048*p} sc1")
                P(f"buffer_store_dwordx4 {v(NUM+4,4)}, v1, {SWS}, s94 offen offset:{2048*p+1024} sc1", tok=f"o{p}")
                if p == 1 or not cfg.kprio: P("s_setprio 0")
            def o_both(h0, h1):
                ZR, KVR, DEN, NUM = 16, 32, 48, 64
                P("s_setprio 2")
                for jj in range(4): P(f"ds_read_b128 {v(ZR+4*jj,4)}, v13 offset:{jj*16}")
                for jj in range(4): P(f"ds_read_b128 {v(KVR+4*jj,4)}, v12 offset:{jj*1024}")
                def fin(p, N, D):
                    Q = Prog()
                    for h in range(2): Q(f"v_add_f32 v{D+8*h}, 0x358637bd, v{D+8*h}")
                    for h in range(2): Q(f"v_rcp_f32 v{D+8*h}, v{D+8*h}")
                    for k in range(16): Q(f"v_mul_f32 v{N+k}, v{N+k}, v{D+8*(k>>3)}")
                    for k in range(8): Q(f"v_cvt_pk_bf16_f32 v{N+k}, v{N+2*k}, v{N+2*k+1}")
                    for k in range(4): Q(f"v_bfi_b32 v{N+2*k}, s3, v{2+(k&1)}, v{N+2*k}")
                    Q(f"buffer_store_dwordx4 {v(N,4)}, v1, {SWS}, s94 offen offset:{2048*p} sc1")
                    Q(f"buffer_store_dwordx4 {v(N+4,4)}, v1, {SWS}, s94 offen offset:{2048*p+1024} sc1", tok=f"o{p}")
                    return Q.ins
                for jj in range(4):
                    P(f"v_mfma_f32_32x32x16_bf16 {v(DEN,16)}, {v(ZR+4*jj,4)}, {v(PH+4*jj,4)}, {'0' if jj == 0 else v(DEN,16)}")
                    P(f"ds_read_b128 {v(ZR+4*jj,4)}, v13 offset:{128+jj*16}")
                for jj in range(4):
                    P(f"v_mfma_f32_32x32x16_bf16 {v(NUM,16)}, {v(KVR+4*jj,4)}, {v(PH+4*jj,4)}, {'0' if jj == 0 else v(NUM,16)}")
                    P(f"ds_read_b128 {v(KVR+4*jj,4)}, v12 offset:{4096+jj*1024}")
                D1 = PH
                f0 = fin(0, NUM, DEN)
                for jj in range(4):
                    P(f"v_mfma_f32_32x32x16_bf16 {v(D1,16)}, {v(ZR+4*jj,4)}, {v(PH+16+4*jj,4)}, {'0' if jj == 0 else v(D1,16)}")
                    n_ = 4 if jj == 0 else (0 if jj == 1 else 5)
                    P.extend(f0[:n_]); f0 = f0[n_:]
                N1 = ZR
                for jj in range(4):
                    P(f"v_mfma_f32_32x32x16_bf16 {v(N1,16)}, {v(KVR+4*jj,4)}, {v(PH+16+4*jj,4)}, {'0' if jj == 0 else v(N1,16)}")
                    P.extend(f0[:5]); f0 = f0[5:]
                P.extend(f0)
                free[:] = [PH + 16, PH + 20, PH + 24, PH + 28, PH, PH + 4, PH + 8, PH + 12]
                h0()
                P.extend(fin(1, N1, D1))
                h1()
                P("s_setprio 0")
            ks_ = cfg.kvst
            assert cfg.smend2 < ks_
            extra.setdefault(ks_ - 1, []).append(kvflagload)
            if ks_ <= 16: extra[ks_] = [kvissue]

        if cfg.touch >= 0:
            tl = [24, 26, 28, 32] + ([20] if typ == 1 else [])
            last.setdefault(cfg.touch, []).append(lambda: [b2touch(x) for x in tl])
        if 0 <= cfg.warm < 10:
            last.setdefault(cfg.warm, []).append(mallwarm)
        elif cfg.warm >= 10:
            a_, b_ = cfg.warm // 10 - 1, cfg.warm % 10
            last.setdefault(a_, []).append(lambda: mallwarm("gu"))
            last.setdefault(b_, []).append(lambda: mallwarm("do"))
        def codepf2():
            L = newlabel("pc")
            P("s_getpc_b64 s[100:101]")
            P.label(L)
            P(f"s_lshr_b32 {sT0}, s2, 3")
            P(f"s_lshl_b32 {sT0}, {sT0}, 2")
            P(f"s_add_u32 {sT0}, {sT0}, {sW}")
            P(f"s_mul_i32 {sT0}, {sT0}, 640")
            P(f"s_min_u32 {sT0}, {sT0}, L_codeend-L_pcref-1024")
            P(f"s_sub_u32 s100, s100, {L}-L_pcref")
            P("s_subb_u32 s101, s101, 0")
            P(f"s_add_u32 s100, s100, {sT0}")
            P("s_addc_u32 s101, s101, 0")
            P(f"global_load_dword v237, v1, s[100:101]")
        for st_ in cfg.pf2:
            if st_: last.setdefault(st_, []).append(codepf2)
        TG2 = [14, 15]
        free = [RING + 4 * i for i in range(8)]
        areg = {}
        breg = {sg: [B2R + 8 * sg, B2R + 8 * sg + 4] for sg in range(18)}
        checked = [0]
        flagged = [0]
        nxt_a = [0]
        def p2setup():
            P("v_and_b32 v4, 31, v0")
            P("v_lshlrev_b32 v4, 10, v4")
            P("v_lshrrev_b32 v5, 5, v0")
            P("v_lshl_add_u32 v4, v5, 4, v4")
            P(f"s_lshl_b32 {sT0}, {sR2}, 1")
            P(f"s_lshr_b32 {sT1}, {sW}, 1")
            P(f"s_add_u32 {sT0}, {sT0}, {sT1}")
            P(f"s_lshl_b32 {sT0}, {sT0}, 15")
            P(f"s_lshl_b32 {sT1}, {sC2}, 7")
            P(f"s_add_u32 {sT0}, {sT0}, {sT1}")
            P(f"s_and_b32 {sT1}, {sW}, 1")
            P(f"s_lshl_b32 {sT1}, {sT1}, 6")
            P(f"s_add_u32 {sT0}, {sT0}, {sT1}")
            P(f"v_add_u32 v4, {sT0}, v4")
        def resload():
            P(f"buffer_load_dwordx4 v[32:35], v4, {SX}, 0 offen")
            P(f"buffer_load_dwordx4 v[36:39], v4, {SX}, 0 offen offset:32")
        def residual():
            P(f"s_mov_b32 {sT1}, 0xffff0000")
            for jj in range(2):
                b = 32 + 4 * jj
                P(f"v_permlane32_swap_b32 v{b}, v{b+2}")
                P(f"v_permlane32_swap_b32 v{b+1}, v{b+3}")
            for k in range(8):
                P(f"v_lshlrev_b32 v{ACC+2*k}, 16, v{32+k}")
                P(f"v_and_b32 v{ACC+2*k+1}, {sT1}, v{32+k}")
        def aload_ins(Px, sg):
            ks_to(Px, sg, sT2)
            if slots[sg][1] == "O": Px(f"s_add_u32 {sT2}, {sT2}, {112*1024}")
            for rt in range(2):
                Px(f"buffer_load_dwordx4 {v(areg[sg][rt],4)}, v{VA[rt]}, {SWS}, {sT2} offen sc1")
        def aload(sg):
            throttle()
            areg[sg] = [free.pop(0), free.pop(0)]
            vmlog.append(("a", sg))
            aload_ins(P, sg)
        first.setdefault(16, []).append(p2setup)
        if typ == 1 and cfg.kprio: first[16].append(lambda: tag_setup(P, [2, 3], 's3'))
        wextra = {10: (18, (0,)), 11: (18, (1,)), 12: (19, (0,)), 13: (19, (1,))} if typ == 0 else {13: (18, (0, 1)), 14: (19, (0, 1))}

        b2log = []
        for s in range(18):
            P.wait(*([f"w{s}"] if s < 17 else ["w17", "w18", "w19"]))
            P("s_barrier")
            if s == 17: break
            if s == 0 or (cfg.allb >= 0 and cfg.allb <= s < cfg.allb + 8): S2(P, f"B{s}")
            if s == 0:
                if cfg.w1late: wchunk(1)
                wchunk(2); wchunk(3)
            if s == 1:
                P(f"buffer_load_dword v110, off, {SDBG}, 0 sc1")
            if s == 3:
                poll_nonce(P, cfg, "v110")
            for f in first.get(s, []): f()
            if s + 2 < 18 and s >= 2:
                wchunk(s + 2)
            if s in wextra: wchunk(*wextra[s])
            for f in extra.get(s, []): f()
            lag = cfg.b2lag
            todo = [sg for (sg, st_) in pend_reads if st_ <= s - lag and s >= defer.get(sg, 0)]
            pend_reads = [(sg, st_) for (sg, st_) in pend_reads if sg not in todo]
            for sg in todo:
                b2read(sg, breg[sg]); readdone.add(sg)
            n_issue = per[s]
            while n_issue > 0:
                n_issue -= 1
                cand = None
                if todo_reg:
                    for pos in stg:
                        lo, hi = poswin(pos, False)
                        oc = occupant.get(pos)
                        if lo <= s <= hi and (oc is None or oc in readdone):
                            cand = (todo_reg.pop(0), pos); break
                if cand is None:
                    for sg in todo_fin:
                        pos = b2pos(sg)
                        lo, hi = poswin(pos, True)
                        oc = occupant.get(pos)
                        stg_ok = (pos not in stg) or (not todo_reg) or (s > poswin(pos, False)[1])
                        if lo <= s <= hi and (oc is None or oc in readdone) and stg_ok:
                            todo_fin.remove(sg); cand = (sg, pos); break
                if cand is None: break
                sg, pos = cand
                oc = occupant.get(pos)
                if oc is not None: P.wait(f"br{oc}")
                occupant[pos] = sg
                if sg < 18:
                    stagepos[sg] = pos
                    pend_reads.append((sg, s))
                b2dma(sg)
                b2log.append((s, sg))
            for f in last.get(s, []): f()
            if typ == 0 and s == 7:
                for pos in stg[:2]:
                    assert occupant.get(pos) in readdone
                    P.wait(f"br{occupant[pos]}")
        S2(P, "ringend")
        thr_on[0] = True
        assert not todo_reg
        if cfg.stamps: P("s_mov_b32 s97, s98")
        P(f"v_mov_b32 v5, {LFLAG}")
        fin_all = todo_fin + [26, 27]
        lateq = list(range(32, 36)) if typ == 0 else list(range(28, 36))
        def fin_issue(n, only=None):
            for _ in range(n):
                c = [x for x in fin_all if only is None or x in only]
                if not c: return
                sg = c[0]; fin_all.remove(sg)
                oc = occupant.get(b2pos(sg))
                if oc is not None: P.wait(f"br{oc}")
                b2dma(sg); b2log.append((20, sg))
        if typ == 1:
            thr_on[0] = False
            if cfg.kprio: P("s_setprio 2")
            if cfg.kvst == 17: kvissue()
            kvsum(lambda i: fin_issue(1, (24, 25, 26, 27)) if (cfg.t2e and i >= 8 and i % 2 == 0) else None)
            thr_on[0] = True
            P(f"s_lshl_b32 {sT0}, {sW}, 2")
            P(f"v_add_u32 v14, {sT0}, v5")
            P("v_mov_b32 v15, 1")
            P.wait("kvf")
            P("ds_write_b32 v14, v15 offset:48")
        for sg, _ in pend_reads:
            b2read(sg, breg[sg]); readdone.add(sg)
        if typ == 1:
            if not cfg.kprio: tag_setup(P, [2, 3], "s3")
            poll_lds(P, cfg, 12, "v5", 48)
            if cfg.t2e: poll_lds(P, cfg, 12, "v5", 16)
            S2(P, "kvx") if not cfg.slotst else None
            o_addr()
            thr_on[0] = False
            if cfg.omode == 0:
                o_pair(0, lambda: [aload(0), aload(1)] + ([fin_issue(cfg.t2e)] if cfg.t2e else []))
                o_pair(1, lambda: [aload(2), aload(3)] + ([fin_issue(cfg.t2e)] if cfg.t2e else []))
            else:
                o_both(lambda: [aload(0), aload(1)], lambda: [aload(2), aload(3)])
                fin_issue(2 * cfg.t2e)
            thr_on[0] = True
            S2(P, "odone")
            if cfg.t2e:
                fin_all += lateq[:4]; lateq = lateq[4:]
            fin_issue(cfg.nfin)
        else:
            for sg in range(4): aload(sg)
            fin_issue(cfg.nfin1)
            if not cfg.eprio:
                poll_lds(P, cfg, 12, "v5", 0)
                for x in (28, 29): b2dma(x)
                poll_lds(P, cfg, 12, "v5", 16)
                for x in (30, 31): b2dma(x)
            else:
                lateq = list(range(28, 36))
        print("B2 plan typ", typ, b2log)
        nxt_a[0] = 4
        tag_setup(P, TG2, "s3", True)
        nxt_b = [18]
        BLA = 3
        ALA = cfg.ala
        slow = []
        def tagops(Q, sg):
            for r in areg[sg]:
                Q(f"v_xor_b32 v{r}, v{r}, v{TG2[0]}")
                Q(f"v_xor_b32 v{r+2}, v{r+2}, v{TG2[1]}")
            r0, r1 = areg[sg]
            Q(f"v_bitop3_b32 v2, v{r0}, v{r0+2}, v{r0} bitop3:0xf3")
            Q(f"v_bitop3_b32 v2, v{r1}, v{r1+2}, v2 bitop3:0xfb")
            Q("v_and_b32 v2, s3, v2")
            Q("v_cmp_ne_u32 vcc, 0, v2")
        def tagcheck(sg):
            Q = Prog()
            Ls, Lc = newlabel("slow"), newlabel("cont")
            tagops(Q, sg)
            B = Prog()
            B("s_cmp_lg_u64 vcc, 0")
            B(f"s_cbranch_scc1 {Ls}")
            B.label(Lc)
            T = Prog()
            Lp, Ld = newlabel("sp"), newlabel("sd")
            T.label(Ls)
            T(f"s_mov_b32 {sCNT}, {cfg.spin2}")
            if cfg.stamps: T("s_add_u32 s97, s97, 1")
            T.label(Lp)
            T(f"s_sleep {cfg.sleep}")
            aload_ins(T, sg)
            T("s_waitcnt vmcnt(0)")
            tagops(T, sg)
            T("s_nop 1")
            T("s_cmp_lg_u64 vcc, 0")
            T(f"s_cbranch_scc0 {Ld}")
            T(f"s_sub_u32 {sCNT}, {sCNT}, 1")
            T(f"s_cbranch_scc0 {Lp}")
            T.label(Ld)
            if cfg.fastslow and sg >= 4:
                for kind_, x in vmlog[vmlog.index(("a", sg)) + 1:]:
                    if kind_ == "a": aload_ins(T, x)
                    elif kind_ == "b": b2dma(x, T)
                    else:
                        T(f"buffer_load_dwordx4 {v(x[0],4)}, v4, {SX}, 0 offen")
                        T(f"buffer_load_dwordx4 {v(x[1],4)}, v4, {SX}, 0 offen offset:32")
                T(f"s_waitcnt vmcnt(@{Lc}:@)")
            else:
                for x in range(sg + 1, nxt_a[0]): aload_ins(T, x)
                T("s_waitcnt vmcnt(0)")
            T(f"s_branch {Lc}")
            slow.extend(T.ins)
            return Q.ins, B.ins
        deferred = {0: [], 2: [], 3: []}
        c0, b0 = tagcheck(0)
        P.extend(c0); P.extend(b0)
        for sg in range(36):
            if cfg.slotst and sg % 4 == 0: S2(P, f"s{sg}")
            if sg == (cfg.thrn if typ == 1 or not cfg.eprio else cfg.eprio + 2): thr_on[0] = False
            if typ == 0 and cfg.eprio and sg == 0: P("s_setprio 1")
            if typ == 0 and cfg.eprio and sg == cfg.eprio: P("s_setprio 0")
            fill = Prog()
            P_save = P.ins
            P.ins = fill.ins
            if sg >= 1 and sg - 1 < 36 - cfg.tl:
                free.extend(areg[sg - 1]); free.extend(breg[sg - 1])
            if cfg.hold and sg == cfg.hold:
                poll_lds(P, cfg, free[0], "v5", 64)
            while nxt_b[0] < 36 and nxt_b[0] <= sg + BLA:
                r = [free.pop(0), free.pop(0)]
                breg[nxt_b[0]] = r
                b2read(nxt_b[0], r); nxt_b[0] += 1
            cnt = 0
            while nxt_a[0] < 36 and len(free) >= 4 and nxt_a[0] <= (sg + ALA if (typ == 1 or not cfg.eprio or sg >= cfg.eprio) else max(7, sg + cfg.eala)) and cnt < 2:
                aload(nxt_a[0]); nxt_a[0] += 1; cnt += 1
            pg0 = cfg.pg0 if typ == 1 or not cfg.eprio else max(cfg.pg0, cfg.eprio + 1)
            if sg == pg0:
                poll_lds(P, cfg, free[0], "v5", 32)
            if fin_all and sg >= 1:
                fin_issue(1)
            elif sg > pg0 and lateq and (sg - pg0) % cfg.pgs == 0:
                b2dma(lateq.pop(0))
            if sg == 30:
                rres = [free.pop(0), free.pop(0)]
                vmlog.append(("r", rres))
                P(f"buffer_load_dwordx4 {v(rres[0],4)}, v4, {SX}, 0 offen")
                P(f"buffer_load_dwordx4 {v(rres[1],4)}, v4, {SX}, 0 offen offset:32")
            P.ins = P_save
            mf = []
            for rt in range(2):
                for ct in range(2):
                    q = ct + 2 * rt
                    a = ACC + 16 * q
                    c = "0" if sg == 0 else v(a, 16)
                    mf.append(Ins(f"v_mfma_f32_32x32x16_bf16 {v(a,16)}, {v(breg[sg][ct],4)}, {v(areg[sg][rt],4)}, {c}"))
            f = fill.ins
            tc, tb_ = tagcheck(sg + 1) if sg + 1 < 36 else ([], [])
            if any(x.kind == "label" for x in f):
                parts_ = [[], f, [], []]
            else:
                n3 = -(-len(f) // 3)
                parts_ = [[], f[:n3], f[n3:2 * n3], f[2 * n3:]]
            tcs = [tc[:4], tc[4:6], tc[6:8], tb_]
            if sg >= 36 - cfg.tl:
                k1 = [i for i, (rt, ct) in enumerate([(0, 0), (0, 1), (1, 0), (1, 1)]) if ct + 2 * rt == 1][0]
                P.extend(mf[k1:k1 + 1]); P.extend(f); P.extend(tc); P.extend(tb_)
                for q in (2, 3, 0): deferred[q].append(mf[q])
            else:
                for k in range(4):
                    P.extend(mf[k:k + 1]); P.extend(parts_[k]); P.extend(tcs[k])
        P(f"s_add_u32 {sT0}, s99, {4*SLOT}")
        P(f"v_add_u32 v12, {sT0}, v1")
        wr = {q: [Ins(f"ds_write_b128 v12, {v(ACC+16*q+4*k,4)} offset:{q*SLOT+k*1024}") for k in range(4)] for q in (1, 2, 3)}
        if cfg.tl:
            pendw = []
            for q, prevq in ((2, 1), (3, 2), (0, 3)):
                for i, m in enumerate(deferred[q]):
                    P.extend([m])
                    if i == 1: pendw += wr[prevq]
                    if pendw: P.extend([pendw.pop(0)])
                    if pendw and i >= 2: P.extend([pendw.pop(0)])
            P.extend(pendw)
        else:
            for q in range(1, 4): P.extend(wr[q])
        S2(P, "mainend")
        for q in range(1, 4):
            P(f"v_xor_b32 v{12+q}, {q*4096}, v12")
        if cfg.o64:
            P("v_bfe_u32 v6, v0, 4, 1")
            P(f"v_mul_u32_u24 v6, {16384-32}, v6")
            P("v_sub_u32 v6, v4, v6")
        for b in rres:
            P(f"v_permlane32_swap_b32 v{b}, v{b+2}")
            P(f"v_permlane32_swap_b32 v{b+1}, v{b+3}")
        for k in range(8):
            src = rres[k // 4] + (k % 4)
            P(f"v_lshlrev_b32 v2, 16, v{src}")
            P(f"v_and_b32 v3, {sHI}, v{src}")
            P(f"v_pk_add_f32 {v(ACC+2*k,2)}, {v(ACC+2*k,2)}, v[2:3]")
        P("s_waitcnt lgkmcnt(0)")
        P("s_barrier")
        for q in range(1, 4):
            for k in range(4):
                P(f"ds_read_b128 {v(ACC+16*q+4*k,4)}, v{12+q} offset:{q*SLOT+k*1024}")
        for q in range(1, 4):
            for k in range(0, 16, 2):
                P(f"v_pk_add_f32 {v(ACC+k,2)}, {v(ACC+k,2)}, {v(ACC+16*q+k,2)}")
        for k in range(8): P(f"v_cvt_pk_bf16_f32 v{ACC+k}, v{ACC+2*k}, v{ACC+2*k+1}")
        for jj in range(2):
            b = ACC + 4 * jj
            P(f"v_permlane32_swap_b32 v{b}, v{b+2}")
            P(f"v_permlane32_swap_b32 v{b+1}, v{b+3}")
            if not cfg.o64:
                P(f"buffer_store_dwordx4 {v(b,4)}, v4, {SOUT}, 0 offen offset:{32*jj}{['', ' sc1', ' sc0 sc1', ' nt'][cfg.outsc]}")
        if cfg.o64:
            for k in range(4): P(f"v_permlane16_swap_b32 v{ACC+k}, v{ACC+4+k}")
            P(f"s_mov_b32 {sT0}, 16384")
            P(f"buffer_store_dwordx4 {v(ACC,4)}, v6, {SOUT}, 0 offen{['', ' sc1', ' sc0 sc1', ' nt'][cfg.outsc]}")
            P(f"buffer_store_dwordx4 {v(ACC+4,4)}, v6, {SOUT}, {sT0} offen{['', ' sc1', ' sc0 sc1', ' nt'][cfg.outsc]}")
        S2(P, "end")
        if cfg.stamps and S2.n < len(S2.regs):
            P(f"s_mov_b32 {S2.regs[S2.n]}, s97"); S2.n += 1; S2.names.append("nslow")
        S2.dump(P, 1)
        if cfg.padT:
            Lq = newlabel("pad")
            r_ = Ins(".raw"); r_.text = f"{Lq}:\n  s_sleep 2\n  s_memrealtime s[100:101]\n  s_waitcnt lgkmcnt(0)\n  s_sub_u32 s100, s100, s96\n  s_cmp_lt_u32 s100, {cfg.padT}\n  s_cbranch_scc1 {Lq}"
            P.ins.append(r_)
        P("s_endpgm")
        raw = Ins(".raw"); raw.text = text_of(slow).rstrip("\n")
        P.ins.append(raw)
        return P, S2

    names = {"p1t1": names_p1t1, "p1t2": names_p1t2}
    for typ in range(2):
        P, S2 = p2_rest(typ)
        r, _ = finalize(P, st2, log)
        segs.append(r)
        names[f"p2t{typ+1}"] = S2.names

    hdr = open("cdna_kernels/" + NAME + ".s.ref").read().split("\n")
    head = [l for l in hdr if l.startswith(";") and "@launch" not in l and "Override launch" not in l and "grid=ceil" not in l]
    out = "\n".join(head) + f"\n; @launch grid=(256,1,1) block=(512,1,1) lds={LDS_BYTES}\n"
    out += """; Generated by my own script (work/gen11.py). One persistent launch, 256 WGs x 8 waves, 1 WG per CU.
; waves 0-3: LN + [x @ (wqkv|w_gate|w_up)] 128x320 tile (MFMA 32x32x16, weights via LDS-DMA ring + transposing LDS reads),
"""
    out += f""".amdgcn_target "amdgcn-amd-amdhsa--gfx950"
.text
.globl {NAME}_kernel
.p2align 8
.type {NAME}_kernel,@function
{NAME}_kernel:
"""
    for sgm in segs:
        out += text_of(sgm)
    out = re.sub(r"@(L_\w+:)@", lambda m: str(VQ_AT[m.group(1)]), out)
    out += f"""L_end:
  s_endpgm
L_codeend:
{"".join(fb_text)}
.section .rodata,"a"
.p2align 6
.amdhsa_kernel {NAME}_kernel
  .amdhsa_next_free_vgpr 256
  .amdhsa_next_free_sgpr 102
  .amdhsa_accum_offset 256
  .amdhsa_group_segment_fixed_size 0
  .amdhsa_kernarg_size 88
  .amdhsa_user_sgpr_count 2
  .amdhsa_user_sgpr_kernarg_segment_ptr 1
  .amdhsa_system_sgpr_workgroup_id_x 1
.end_amdhsa_kernel
"""
    return out, names, log


if __name__ == "__main__":
    cfg = Cfg()
    outp = "cdna_kernels/" + NAME + ".s"
    for a in sys.argv[1:]:
        if a.startswith("out="): outp = a[4:]
        else:
            k, val = a.split("=")
            setattr(cfg, k, [int(c) for c in val] if isinstance(getattr(cfg, k), list) else type(getattr(cfg, k))(int(val)))
    text, names, log = gen(cfg)
    open(outp, "w").write(text)
    import json
    json.dump(names, open(outp + ".names.json", "w"))
    print("written", outp, len(text), "bytes;", log)
```

```python
import sys, math, re
from asmlib import *

NAME = "parallel_sum__linear_kernel_hedgehog__glu_gated_glu__prompt"

class Cfg:
    stamps = 0
    map84 = True
    LA = 5
    cap = 3
    spin = 1 << 16
    skew = True
    codepf = True
    nob2 = False
    dbgstage = -1
    now = False
    sleep = 1
    nosm = False
    allb = -1
    phib = 9
    vprio = 0
    kvst = 17
    kvfl = 10
    b2lag = 2
    per1 = [0,0,2,2,2,2,2,2, 4,0,2,2,1,1,0,0,2,0]
    wdelay = 0
    ofirst = 0
    cap2 = 5
    spin2 = 65536
    touch = -1
    tmajor = 0
    padT = 0
    jitter = 0
    hsm = 0
    pre1 = 2
    wt2 = 0
    omode = 1
    wfirst = 0
    wflate = 1
    w1late = 0
    pf2 = [0]
    xd = 3
    rotm = 1
    kprio = 1
    o64 = 1
    eprio = 0
    eala = 2
    nfin1 = 99
    tl = 4
    kvb = 1
    qb = 6
    skipb = 99
    skipw = 99
    nc = 0
    t2e = 2
    stag2 = 2
    stag1 = 2
    fastslow = 1
    thr = 4
    thrn = 6
    hold = 0
    nfin = 2
    ntx = 0
    ntw = 0
    ntb = 0
    tlb = 0
    warm = 20
    rt = 0
    b2hit = 0
    nopz = 0
    outsc = 1
    pg0 = 6
    pgs = 1
    slotst = 0
    per2 = [0,0,2,2,2,2,2,2, 2,2,2,1,1,0,0,1,0,0]
    kvn = 3
    flagA = 262
    smend2 = 16
    capC = 5
    hprio = 0
    ala = 8
    dbgout = False
    fla = 3

H_OFF = 0
KVP_OFF = 0xA00000
KVHEAD = 1152
KVREC = 4 * KVHEAD
FLAGH_OFF = 0xB00000
FLAGKV_OFF = 0xB80000
STAMP_OFF = 0xC00000
WS_BYTES = 0x1000000

SLOT = 16384
XBASE = 4 * SLOT
PHI = 6 * SLOT
VIMG = 8 * SLOT
SCR = 9 * SLOT
WPHI = SCR
KVF = SCR + 2048
ZL = SCR + 10240
LFLAG = SCR + 10752
WF = SCR + 11264
STX = SCR + 14336
XN = 4 * SLOT
XB0 = 2 * SLOT
LDS_BYTES = 10 * SLOT

SX, SWS, SDBG, SQKV, SG, SU, SD, SO, SPHI, SOUT = [f"s[{b}:{b+3}]" for b in range(28, 68, 4)]
sW, sRB, sJ, sTYPE, sROT, sR2, sC2, sNONCE = [f"s{i}" for i in range(68, 76)]
sT0, sT1, sT2, sT3, sT4, sT5 = [f"s{i}" for i in range(76, 82)]
sMASK = "s[82:83]"
sMASK2 = "s[84:85]"
sCNT = "s86"
sHI = "s87"
sC1 = "s3"
sC2K = "s26"
sC3 = "s27"

NT = ["", " nt"]
LOG2E = 0x3FB8AA3B
NLOG2E = 0xBFB8AA3B

def v(a, n=1):
    return f"v{a}" if n == 1 else f"v[{a}:{a+n-1}]"

def srd(P, name, plo, nbytes):
    b = int(name[2:name.index(":")])
    P(f"s_mov_b32 s{b}, s{plo}")
    P(f"s_mov_b32 s{b+1}, s{plo+1}")
    P(f"s_mov_b32 s{b+2}, {nbytes:#x}")
    P(f"s_mov_b32 s{b+3}, 0x20000")

_lbl = [0]
def newlabel(p):
    _lbl[0] += 1
    return f"L_{p}_{_lbl[0]}"

class Stamps:
    def __init__(self, cfg, regs):
        self.cfg = cfg; self.regs = regs; self.n = 0; self.names = []
    def __call__(self, P, name):
        if not self.cfg.stamps or self.cfg.stamps == 2: return
        assert self.n < len(self.regs), "too many stamps"
        P("s_memrealtime s[100:101]" if self.cfg.rt else "s_memtime s[100:101]")
        i = P("s_waitcnt lgkmcnt(0)"); i.pin = True
        P(f"s_mov_b32 {self.regs[self.n]}, s100")
        self.n += 1; self.names.append(name)
    def fork(self):
        s = Stamps(self.cfg, self.regs); s.n = self.n; s.names = list(self.names); return s
    def dump(self, P, role):
        if not self.cfg.stamps: return
        P(f"s_lshl_b32 {sT0}, s2, 3")
        P(f"s_add_u32 {sT0}, {sT0}, {sW}")
        P(f"s_add_u32 {sT0}, {sT0}, {4*role}")
        P(f"s_lshl_b32 {sT0}, {sT0}, 7")
        P(f"s_add_u32 {sT0}, {sT0}, {STAMP_OFF}")
        P("v_mov_b32 v12, 0")
        P("s_memrealtime s[100:101]")
        i = P("s_waitcnt lgkmcnt(0)"); i.pin = True
        P("v_mov_b32 v13, s96")
        P(f"buffer_store_dword v13, v12, {SWS}, {sT0} offen offset:120")
        P("s_nop 1")
        P("v_mov_b32 v13, s100")
        P(f"buffer_store_dword v13, v12, {SWS}, {sT0} offen offset:124")
        P("s_nop 1")
        for k in range(self.n):
            P(f"v_mov_b32 v13, {self.regs[k]}")
            P(f"buffer_store_dword v13, v12, {SWS}, {sT0} offen offset:{4*k}")
            P("s_nop 1")


def poll_global(P, cfg, vflag, vaddr, srdname, soff, need, maxv, smask, tok=None):
    L, OK = newlabel("poll"), newlabel("ok")
    P(f"s_mov_b32 {sCNT}, {cfg.spin}")
    P(f"s_add_u32 {sT5}, {sNONCE}, {need}")
    P(f"v_subrev_u32 {vflag}, {sT5}, {vflag}")
    P.label(L)
    P(f"v_cmp_lt_u32 vcc, {maxv-need}, {vflag}")
    P("s_nop 1")
    P(f"s_and_b64 vcc, vcc, {smask}")
    P(f"s_cbranch_scc0 {OK}")
    P(f"s_sleep {cfg.sleep}")
    P.ins.append(Ins(f".raw"))
    P.ins[-1].text = f"  buffer_load_dword {vflag}, {vaddr}, {srdname}, {soff} offen sc1\n  s_waitcnt vmcnt(0)\n  v_subrev_u32 {vflag}, {sT5}, {vflag}\n  s_sub_u32 {sCNT}, {sCNT}, 1\n  s_cbranch_scc0 {L}"
    P.label(OK)


def poll_nonce(P, cfg, vtmp):
    L, OK = newlabel("np"), newlabel("nok")
    P(f"s_mov_b32 {sCNT}, {cfg.spin}")
    P(f"v_readfirstlane_b32 {sNONCE}, {vtmp}")
    P.label(L)
    P("s_nop 0")
    P(f"s_cmp_lg_u32 {sNONCE}, 0")
    P(f"s_cbranch_scc1 {OK}")
    P("s_sleep 1")
    P.ins.append(Ins(".raw"))
    P.ins[-1].text = f"  buffer_load_dword {vtmp}, off, {SDBG}, 0 sc1\n  s_waitcnt vmcnt(0)\n  v_readfirstlane_b32 {sNONCE}, {vtmp}\n  s_sub_u32 {sCNT}, {sCNT}, 1\n  s_cbranch_scc0 {L}"
    P.label(OK)
    P("s_nop 1")


def poll_lds(P, cfg, vtmp4, vaddr, off):
    L, OK = newlabel("lp"), newlabel("lok")
    P(f"s_mov_b32 {sCNT}, {cfg.spin * 32}")
    i = P("s_waitcnt lgkmcnt(0)")
    P.label(L)
    P.ins.append(Ins(".raw"))
    P.ins[-1].text = (f"  ds_read_b128 {v(vtmp4,4)}, {vaddr} offset:{off}\n  s_waitcnt lgkmcnt(0)\n"
                      f"  v_and_b32 {v(vtmp4)}, {v(vtmp4)}, {v(vtmp4+1)}\n  v_and_b32 {v(vtmp4+2)}, {v(vtmp4+2)}, {v(vtmp4+3)}\n"
                      f"  v_and_b32 {v(vtmp4)}, {v(vtmp4)}, {v(vtmp4+2)}\n  s_nop 0\n  v_readfirstlane_b32 {sT5}, {v(vtmp4)}\n  s_nop 1\n"
                      f"  s_cmp_lg_u32 {sT5}, 0\n  s_cbranch_scc1 {OK}\n  s_sleep 1\n  s_sub_u32 {sCNT}, {sCNT}, 1\n  s_cbranch_scc0 {L}")
    P.label(OK)


def weave(groups, tasks, cap):
    q = []
    for rel, dl, lst in tasks:
        for i in lst:
            q.append((i, rel, dl))
    out = []
    n = len(groups)
    for gi, grp in enumerate(groups):
        while q and q[0][2] <= gi:
            out.append(q.pop(0)[0])
        out.extend(grp)
        extra = sum(1 for i in grp[1:] if i.kind in ("sopp", "wait", "salu"))
        budget = max(cap - extra, 1)
        acc = 0
        for (i, rel, dl) in q:
            acc += i.cost
            if dl <= n and dl > gi:
                budget = max(budget, math.ceil(acc / (dl - gi)))
        valu_done = False
        while q and q[0][1] <= gi and budget > 0:
            i = q[0][0]
            if i.kind in ("ds", "vmem") and valu_done:
                break
            if i.cost > budget and valu_done:
                break
            q.pop(0)
            out.append(i)
            budget -= i.cost
            if i.kind == "valu":
                valu_done = True
    rest = [x[0] for x in q]
    return out, rest


X0 = 128
def XR(t): return X0 + 4 * t
SET = [32 + 16 * i for i in range(6)]
FR0 = 12
TA = [4, 5, 6, 7]
vL16, vRS, vMR = 1, 2, 3

def p1_common(P):
    P("v_lshrrev_b32 v8, 5, v0")
    P("v_lshlrev_b32 v8, 10, v8")
    P("v_bfe_u32 v9, v0, 2, 2")
    P("v_lshl_add_u32 v8, v9, 7, v8")
    P("v_bfe_u32 v9, v0, 3, 1")
    P("v_lshl_add_u32 v8, v9, 6, v8")
    P("v_and_b32 v9, 3, v0")
    P("v_lshl_add_u32 v8, v9, 3, v8")
    P("v_bfe_u32 v9, v0, 4, 1")


def p1_taddr(P, kind):
    if kind == "pair":
        P(f"v_lshlrev_b32 v{TA[0]}, 5, v9")
        P(f"v_xor_b32 v{TA[0]}, v{TA[0]}, v8")
        P(f"v_xor_b32 v{TA[1]}, 64, v{TA[0]}")
        P(f"v_xor_b32 v{TA[2]}, {8192+32}, v{TA[0]}")
        P(f"v_xor_b32 v{TA[3]}, {8192+96}, v{TA[0]}")
    else:
        P(f"v_mul_u32_u24 v{TA[0]}, {8192+32}, v9")
        P(f"v_xor_b32 v{TA[0]}, v{TA[0]}, v8")
        for t in range(1, 4):
            P(f"v_xor_b32 v{TA[t]}, {32*t}, v{TA[0]}")


TG1 = [2, 3]
sTM = "s89"
def tag_setup(P, T, smask, consumer=False):
    P(f"s_mul_i32 {sT0}, {sNONCE}, 0x9e3779b1")
    P(f"s_lshr_b32 {sT5}, {sT0}, 15")
    P(f"s_xor_b32 {sT0}, {sT0}, {sT5}")
    P(f"s_and_b32 {sT0}, {sT0}, 0xfffdfffd")
    P(f"s_or_b32 {sT0}, {sT0}, 0x00010001")
    P(f"s_mov_b32 {smask}, 0x00010001")
    P(f"v_and_b32 v{T[0]}, 7, v0")
    P(f"v_lshlrev_b32 v{T[0]}, 2, v{T[0]}")
    P(f"v_bfe_u32 v{T[0]}, {sT0}, v{T[0]}, 4")
    P(f"v_lshl_or_b32 v{T[0]}, v{T[0]}, 15, v{T[0]}")
    P(f"v_lshrrev_b32 v{T[1]}, 2, v{T[0]}")
    if consumer:
        P(f"v_and_b32 v{T[0]}, {smask}, v{T[0]}")
        P(f"v_and_b32 v{T[1]}, {smask}, v{T[1]}")
        P(f"v_xor_b32 v{T[1]}, {smask}, v{T[1]}")


def sigmoid_task(S, ks_sreg, ks_imm, tok):
    P = Prog()
    for i in range(8): P(f"v_mul_f32 v{S+i}, {sC1}, v{S+i}")
    for i in range(8): P(f"v_exp_f32 v{S+i}, v{S+i}")
    for i in range(8): P(f"v_add_f32 v{S+i}, 1.0, v{S+i}")
    for i in range(8): P(f"v_rcp_f32 v{S+i}, v{S+i}")
    for i in range(8): P(f"v_mul_f32 v{S+8+i}, v{S+8+i}, v{S+i}")
    for k in range(4): P(f"v_cvt_pk_bf16_f32 v{S+k}, v{S+8+2*k}, v{S+9+2*k}")
    for k in range(2): P(f"v_bfi_b32 v{S+2*k}, {sTM}, v{TG1[k]}, v{S+2*k}")
    P(f"buffer_store_dwordx4 {v(S,4)}, v{vL16}, {SWS}, {ks_sreg} offen offset:{ks_imm} sc1", tok=tok)
    return P.ins


def flag_task(toks, val):
    P = Prog()
    P(f"s_add_u32 {sT0}, {sNONCE}, {val}")
    P(f"v_mov_b32 v11, {sT0}")
    P(f"v_lshlrev_b32 v10, 26, v0")
    P.wait(*toks)
    P(f"buffer_store_dword v11, v10, {SWS}, s88 offen sc1")
    return P.ins


def softmax_core(P, Pr, T, tmp, sC2K=sC2K):
    mx, mn, s1, s2 = tmp if isinstance(tmp, (list, tuple)) else (tmp, tmp + 1, tmp + 2, tmp + 3)
    P(f"v_max3_f32 v{mx}, v{Pr}, v{Pr+1}, v{Pr+2}")
    P(f"v_min3_f32 v{mn}, v{Pr}, v{Pr+1}, v{Pr+2}")
    for k in range(3, 15, 2):
        P(f"v_max3_f32 v{mx}, v{mx}, v{Pr+k}, v{Pr+k+1}")
        P(f"v_min3_f32 v{mn}, v{mn}, v{Pr+k}, v{Pr+k+1}")
    P(f"v_max_f32 v{mx}, v{mx}, v{Pr+15}")
    P(f"v_min_f32 v{mn}, v{mn}, v{Pr+15}")
    P(f"v_mul_f32 v{mx}, {sC2K}, v{mx}")
    P(f"v_mul_f32 v{mn}, {sC2K}, v{mn}")
    for k in range(16):
        P(f"v_fma_f32 v{T+k}, v{Pr+k}, {sC2K}, -v{mx}")
        P(f"v_fma_f32 v{Pr+k}, -v{Pr+k}, {sC2K}, v{mn}")
    for k in range(16):
        P(f"v_exp_f32 v{T+k}, v{T+k}")
        P(f"v_exp_f32 v{Pr+k}, v{Pr+k}")
    P(f"v_add_f32 v{s1}, v{T}, v{T+1}")
    P(f"v_add_f32 v{s2}, v{Pr}, v{Pr+1}")
    for k in range(2, 16):
        P(f"v_add_f32 v{s1}, v{s1}, v{T+k}")
        P(f"v_add_f32 v{s2}, v{s2}, v{Pr+k}")


def softmax_pk(P, Pr, T, tm, sc):
    mx, mn = tm, tm + 1
    P(f"v_max3_f32 v{mx}, v{Pr}, v{Pr+1}, v{Pr+2}")
    P(f"v_min3_f32 v{mn}, v{Pr}, v{Pr+1}, v{Pr+2}")
    for k in range(3, 15, 2):
        P(f"v_max3_f32 v{mx}, v{mx}, v{Pr+k}, v{Pr+k+1}")
        P(f"v_min3_f32 v{mn}, v{mn}, v{Pr+k}, v{Pr+k+1}")
    P(f"v_max_f32 v{mx}, v{mx}, v{Pr+15}")
    P(f"v_min_f32 v{mn}, v{mn}, v{Pr+15}")
    P(f"v_pk_mul_f32 {v(mx,2)}, {v(mx,2)}, {sc} op_sel_hi:[1,0]")
    for k in range(0, 16, 2):
        P(f"v_pk_fma_f32 {v(T+k,2)}, {v(Pr+k,2)}, {sc}, {v(mx,2)} op_sel_hi:[1,0,0] neg_lo:[0,0,1] neg_hi:[0,0,1]")
        P(f"v_pk_fma_f32 {v(Pr+k,2)}, {v(Pr+k,2)}, {sc}, {v(mx,2)} op_sel:[0,0,1] op_sel_hi:[1,0,1] neg_lo:[1,0,0] neg_hi:[1,0,0]")
    for k in range(16):
        P(f"v_exp_f32 v{T+k}, v{T+k}")
        P(f"v_exp_f32 v{Pr+k}, v{Pr+k}")
    a, b = tm + 2, tm + 4
    P(f"v_pk_add_f32 {v(a,2)}, {v(T,2)}, {v(T+2,2)}")
    P(f"v_pk_add_f32 {v(b,2)}, {v(Pr,2)}, {v(Pr+2,2)}")
    for k in range(4, 16, 2):
        P(f"v_pk_add_f32 {v(a,2)}, {v(a,2)}, {v(T+k,2)}")
        P(f"v_pk_add_f32 {v(b,2)}, {v(b,2)}, {v(Pr+k,2)}")
    P(f"v_add_f32 v{mx}, v{a}, v{a+1}")
    P(f"v_add_f32 v{mn}, v{b}, v{b+1}")
    P(f"v_rcp_f32 v{mx}, v{mx}")
    P(f"v_rcp_f32 v{mn}, v{mn}")
    for k in range(0, 16, 2):
        P(f"v_pk_mul_f32 {v(T+k,2)}, {v(T+k,2)}, {v(mx,2)} op_sel_hi:[1,0]")
    for k in range(8):
        P(f"v_cvt_pk_bf16_f32 v{T+k}, v{T+2*k}, v{T+2*k+1}")
    for k in range(0, 16, 2):
        P(f"v_pk_mul_f32 {v(Pr+k,2)}, {v(Pr+k,2)}, {v(mx,2)} op_sel:[0,1] op_sel_hi:[1,1]")
    for k in range(8):
        P(f"v_cvt_pk_bf16_f32 v{Pr+k}, v{Pr+2*k}, v{Pr+2*k+1}")


def wphi_frags(P, lane, F, A, t0, t1):
    P(f"v_and_b32 v{t0}, 1, v{lane}")
    P(f"v_lshlrev_b32 v{t0}, 9, v{t0}")
    P(f"v_lshrrev_b32 v{t1}, 5, v{lane}")
    P(f"v_lshl_add_u32 v{t0}, v{t1}, 7, v{t0}")
    P(f"v_bfe_u32 v{t1}, v{lane}, 2, 2")
    P(f"v_lshl_add_u32 v{t0}, v{t1}, 5, v{t0}")
    P(f"v_bfe_u32 v{t1}, v{lane}, 4, 1")
    P(f"v_lshl_add_u32 v{t0}, v{t1}, 4, v{t0}")
    P(f"v_bfe_u32 v{t1}, v{lane}, 1, 1")
    P(f"v_lshl_add_u32 v{t0}, v{t1}, 3, v{t0}")
    P(f"v_add_u32 v{t0}, {WPHI}, v{t0}")
    for p in range(2):
        P(f"ds_read_b64_tr_b16 {v(F+4*p,2)}, v{t0} offset:{p*1024}")
        P(f"ds_read_b64_tr_b16 {v(F+4*p+2,2)}, v{t0} offset:{p*1024+256}")
    P(f"s_mov_b32 s82, 0x0f0f0f0f")
    P(f"s_mov_b32 s83, 0x0f0f0f0f")
    for p in range(2):
        for k in range(4):
            P(f"v_cndmask_b32 v{A+8*p+k}, 0, v{F+4*p+k}, {sMASK}")
            P(f"v_cndmask_b32 v{A+8*p+4+k}, v{F+4*p+k}, 0, {sMASK}")


def gen(cfg):
    segs = []
    log = []
    LA = cfg.LA

    P = Prog()
    P("s_cmp_ge_u32 s2, 256")
    P("s_cbranch_scc1 L_end")
    if cfg.jitter:
        Lj, Le = "L_jit", "L_jite"
        r_ = Ins(".raw"); r_.text = f"  s_mul_i32 s70, s2, {cfg.jitter}\n  s_bfe_u32 s70, s70, 0x40003\n{Lj}:\n  s_cmp_eq_u32 s70, 0\n  s_cbranch_scc1 {Le}\n  s_sleep 24\n  s_sub_u32 s70, s70, 1\n  s_branch {Lj}\n{Le}:"
        P.ins.append(r_)
    P("s_load_dwordx16 s[4:19], s[0:1], 0")
    P("s_load_dwordx4 s[20:23], s[0:1], 64")
    P("s_load_dwordx2 s[24:25], s[0:1], 80")
    if cfg.stamps:
        P("s_memrealtime s[98:99]" if cfg.rt else "s_memtime s[98:99]")
    if cfg.stamps or cfg.padT:
        P("s_memrealtime s[96:97]")
    if cfg.codepf:
        P("s_getpc_b64 s[100:101]")
        P.label("L_pcref")
        P(f"s_lshr_b32 {sT0}, s2, 3")
        P(f"s_lshl_b32 {sT0}, {sT0}, 12")
        P(f"s_min_u32 {sT0}, {sT0}, L_codeend-L_pcref-4096")
        P(f"s_add_u32 s100, s100, {sT0}")
        P("s_addc_u32 s101, s101, 0")
        P("v_lshlrev_b32 v1, 3, v0")
        P("global_load_dword v252, v1, s[100:101]")
    P("v_lshrrev_b32 v1, 6, v0")
    P("v_and_b32 v0, 63, v0")
    P(f"v_readfirstlane_b32 {sT4}, v1")
    P(f"s_and_b32 {sT0}, s2, 7")
    P(f"s_lshr_b32 {sT1}, s2, 3")
    if cfg.map84:
        P(f"s_and_b32 {sRB}, {sT0}, 1")
        P(f"s_lshl_b32 {sRB}, {sRB}, 3")
        P(f"s_lshr_b32 {sT2}, {sT1}, 2")
        P(f"s_add_u32 {sRB}, {sRB}, {sT2}")
        P(f"s_bfe_u32 {sTYPE}, {sT1}, 0x10001")
        P(f"s_and_b32 {sJ}, {sT0}, 6")
        P(f"s_and_b32 {sT2}, {sT1}, 1")
        P(f"s_add_u32 {sJ}, {sJ}, {sT2}")
        if cfg.rotm == 0:
            P(f"s_and_b32 {sT2}, {sT1}, 3")
            P(f"s_lshl_b32 {sT2}, {sT2}, 1")
        elif cfg.rotm == 1:
            P(f"s_and_b32 {sT2}, {sT1}, 1")
            P(f"s_lshl_b32 {sT2}, {sT2}, 2")
        elif cfg.rotm == 2:
            P(f"s_and_b32 {sT2}, {sT1}, 3")
            P(f"s_lshl_b32 {sT2}, {sT2}, 1")
            P(f"s_bfe_u32 {sT3}, {sT0}, 0x10001")
            P(f"s_add_u32 {sT2}, {sT2}, {sT3}")
        P(f"s_add_u32 {sROT}, {sRB}, {sT2}")
        P(f"s_and_b32 {sROT}, {sROT}, 7")
    else:
        P(f"s_and_b32 {sRB}, {sT0}, 3")
        P(f"s_lshl_b32 {sRB}, {sRB}, 2")
        P(f"s_lshr_b32 {sT2}, {sT1}, 3")
        P(f"s_add_u32 {sRB}, {sRB}, {sT2}")
        P(f"s_bfe_u32 {sTYPE}, {sT1}, 0x10002")
        P(f"s_and_b32 {sJ}, {sT0}, 4")
        P(f"s_and_b32 {sT3}, {sT1}, 3")
        P(f"s_add_u32 {sJ}, {sJ}, {sT3}")
        P(f"s_lshl_b32 {sT2}, {sT2}, 1")
        P(f"s_add_u32 {sROT}, {sT1}, {sT2}")
        P(f"s_and_b32 {sROT}, {sROT}, 7")
    P(f"s_lshl_b32 {sR2}, {sT0}, 2")
    P(f"s_lshr_b32 {sT2}, {sT1}, 3")
    P(f"s_add_u32 {sR2}, {sR2}, {sT2}")
    P(f"s_and_b32 {sC2}, {sT1}, 7")
    P(f"s_and_b32 {sW}, {sT4}, 3")
    P(f"v_lshlrev_b32 v{vL16}, 4, v0")
    P(f"s_mov_b32 {sHI}, 0xffff0000")
    P(f"s_cmp_ge_u32 {sT4}, 4")
    P("s_cbranch_scc1 L_p2")
    pro, st0 = finalize(P, None, log)
    segs.append(pro)

    stamp_regs = [f"s{i}" for i in range(40, 56)]
    P = Prog()
    ST = Stamps(cfg, stamp_regs)
    if cfg.stamps:
        ST.regs = ["s98"] + stamp_regs; ST.n = 1; ST.names = ["start"]
    NXB = 7
    P("v_lshrrev_b32 v36, 3, v0")
    P("v_lshlrev_b32 v36, 10, v36")
    P("v_lshrrev_b32 v37, 4, v0")
    P("v_and_b32 v38, 7, v0")
    P("v_xor_b32 v38, v38, v37")
    P("v_lshl_add_u32 v32, v38, 4, v36")
    P("v_xor_b32 v33, 64, v32")
    P(f"v_add_u32 v33, {8*1024-1024}, v33")
    P(f"v_add_u32 v34, {16*1024-2048}, v32")
    P(f"v_add_u32 v35, {16*1024-2048}, v33")
    P(f"s_lshl_b32 {sT0}, {sRB}, 2")
    P(f"s_add_u32 {sT0}, {sT0}, {sW}")
    P(f"s_lshl_b32 {sT1}, {sT0}, 15")
    P(f"s_mul_i32 {sT2}, {sW}, {NXB*4096}")
    P(f"s_add_u32 {sT2}, {sT2}, {XB0}")
    P("s_waitcnt lgkmcnt(0)")
    srd(P, SX, 4, 2048 * 1024)
    def xdma(b):
        P(f"s_add_u32 {sT3}, {sROT}, {b}")
        P(f"s_and_b32 {sT3}, {sT3}, 7")
        P(f"s_lshl_b32 {sT3}, {sT3}, 7")
        P(f"s_add_u32 m0, {sT2}, {(b % NXB) * 4096}")
        P(f"s_add_u32 {sT3}, {sT3}, {sT1}")
        for q in range(4):
            P(f"buffer_load_dwordx4 v{32+q}, {SX}, {sT3} offen offset:{q*1024}{NT[cfg.ntx]} lds", tok=f"x{b}")
    for b in range(cfg.xd): xdma(b)
    srd(P, SWS, 24, WS_BYTES)
    srd(P, SDBG, 22, 256)
    P(f"s_mul_i32 s27, {sT0}, {144*1024}")
    P(f"s_lshl_b32 {sT4}, {sT0}, 5")
    P(f"s_lshl_b32 {sT5}, {sTYPE}, 3")
    P(f"s_add_u32 {sT4}, {sT4}, {sT5}")
    P(f"s_add_u32 {sT4}, {sT4}, {sJ}")
    P(f"s_lshl_b32 {sT4}, {sT4}, 7")
    P(f"s_add_u32 s88, {sT4}, {FLAGH_OFF}")
    P(f"s_mov_b32 {sC1}, {NLOG2E:#x}")
    P(f"s_mov_b32 {sC2K}, {LOG2E:#x}")
    P("v_and_b32 v36, 31, v0")
    P("v_lshlrev_b32 v37, 7, v36")
    P("v_bfe_u32 v38, v0, 1, 3")
    P("v_lshrrev_b32 v39, 5, v0")
    P("v_xor_b32 v38, v38, v39")
    P("v_lshl_add_u32 v37, v38, 4, v37")
    P(f"v_add_u32 v40, {sT2}, v37")
    for t in range(1, 4):
        P(f"v_xor_b32 v{40+t}, {32*t}, v40")
    p1_common(P)
    p1_taddr(P, "pair")
    P("v_mov_b32 v44, 0x3f803f80")
    for k in range(4): P(f"v_mov_b32 v{48+k}, 0")
    def dots(bb):
        for r in range(16):
            reg = XR(4 * bb) + r
            P(f"v_dot2c_f32_bf16 v{48+2*(r&1)}, v{reg}, v44")
            P(f"v_dot2c_f32_bf16 v{49+2*(r&1)}, v{reg}, v{reg}")
    NC = cfg.nc
    def ln_task(t):
        tb = 96 + 8 * (t & 3)
        U, F, C = Prog(), Prog(), Prog()
        for d in range(4):
            if t // 4 >= NC:
                U(f"v_lshlrev_b32 v{tb+2*d}, 16, v{XR(t)+d}")
                U(f"v_and_b32 v{tb+2*d+1}, {sHI}, v{XR(t)+d}")
                F(f"v_fma_f32 v{tb+2*d}, v{tb+2*d}, v{vRS}, -v{vMR}")
                F(f"v_fma_f32 v{tb+2*d+1}, v{tb+2*d+1}, v{vRS}, -v{vMR}")
            else:
                F(f"v_fma_mix_f32 v{tb+2*d}, v{XR(t)+d}, v{vRS}, -v{vMR} op_sel_hi:[1,0,0]")
                F(f"v_fma_mix_f32 v{tb+2*d+1}, v{XR(t)+d}, v{vRS}, -v{vMR} op_sel:[1,0,0] op_sel_hi:[1,0,0]")
            C(f"v_cvt_pk_bf16_f32 v{XR(t)+d}, v{tb+2*d}, v{tb+2*d+1}")
        return U.ins, F.ins, C.ins
    def tof16(bb):
        for r0 in range(0, 16, 4):
            for r in range(r0, r0 + 4):
                reg = XR(4 * bb) + r
                P(f"v_lshlrev_b32 v{56+2*(r&3)}, 16, v{reg}")
                P(f"v_and_b32 v{57+2*(r&3)}, {sHI}, v{reg}")
            for r in range(r0, r0 + 4):
                P(f"v_cvt_pk_f16_f32 v{XR(4*bb)+r}, v{56+2*(r&3)}, v{57+2*(r&3)}")
    for b in range(8):
        if b + cfg.xd < 8:
            if b + cfg.xd >= NXB: P.wait(f"xr{b+cfg.xd-NXB}")
            xdma(b + cfg.xd)
        P.wait(f"x{b}")
        for t in range(4):
            P(f"ds_read_b128 {v(XR(4*b+t),4)}, v{40+t} offset:{(b%NXB)*4096}", tok=f"xr{b}")
        if b >= 1:
            dots(b - 1)
            if b - 1 < NC: tof16(b - 1)
        if b == 2 and NC == 0:
            for t in range(3): P.extend(ln_task(t)[0])
    P.wait("xr7")
    P(f"s_mov_b32 s84, {sT1}")
    ST(P, "xdone")
    P("s_barrier")
    P(f"s_cmp_eq_u32 {sTYPE}, 1")
    P("s_cbranch_scc1 L_p1t2")
    p1a, stA = finalize(P, st0, log)
    segs.append(p1a)
    fb_text = []
    def stats_fin(P_):
        nonlocal P
        P = P_
        P(f"buffer_load_dword v11, off, {SDBG}, 0 sc1")
        dots(7)
        P("v_pk_add_f32 v[48:49], v[48:49], v[50:51]")
        P("v_mov_b32 v50, v48")
        P("v_mov_b32 v51, v49")
        P("v_permlane32_swap_b32 v48, v50")
        P("v_permlane32_swap_b32 v49, v51")
        P("v_pk_add_f32 v[48:49], v[48:49], v[50:51]")
        if NC:
            P("v_mov_b32 v52, v49")
            P("v_cmp_nge_f32 vcc, 0x4f000000, v49")
        P("v_mul_f32 v48, 0x3b000000, v48")
        P("v_mul_f32 v49, 0x3b000000, v49")
        P("v_fma_f32 v49, -v48, v48, v49")
        P("v_max_f32 v49, 0, v49")
        P("v_add_f32 v49, 0x3727c5ac, v49")
        P(f"v_rsq_f32 v{vRS}, v49")
        P(f"v_mul_f32 v{vMR}, v48, v{vRS}")
        if NC:
            Lf, Lr = newlabel("fb"), newlabel("fbr")
            P("s_cmp_lg_u64 vcc, 0")
            P(f"s_cbranch_scc1 {Lf}")
            P.label(Lr)
            T = Prog()
            T.label(Lf)
            T("v_frexp_exp_i32_f32 v53, v52")
            T("v_add_u32 v53, 1, v53")
            T("v_ashrrev_i32 v53, 1, v53")
            T("v_subrev_u32 v53, 14, v53")
            T("v_max_i32 v53, 0, v53")
            T("v_sub_u32 v54, 0, v53")
            T(f"v_ldexp_f32 v{vRS}, v{vRS}, v53")
            T("v_and_b32 v55, 31, v0")
            T("v_lshlrev_b32 v55, 10, v55")
            T("v_lshrrev_b32 v56, 5, v0")
            T("v_lshl_add_u32 v55, v56, 4, v55")
            for b in range(8):
                T(f"s_add_u32 {sT3}, {sROT}, {b}")
                T(f"s_and_b32 {sT3}, {sT3}, 7")
                T(f"s_lshl_b32 {sT3}, {sT3}, 7")
                T(f"s_add_u32 {sT3}, {sT3}, s84")
                for t in range(4):
                    T(f"buffer_load_dwordx4 {v(XR(4*b+t),4)}, v55, {SX}, {sT3} offen offset:{32*t}")
            T("s_waitcnt vmcnt(0)")
            for r in range(128):
                reg = X0 + r
                T(f"v_lshlrev_b32 v56, 16, v{reg}")
                T(f"v_and_b32 v57, {sHI}, v{reg}")
                T("v_ldexp_f32 v56, v56, v54")
                T("v_ldexp_f32 v57, v57, v54")
                T(f"{'v_cvt_pk_f16_f32' if r // 16 < NC else 'v_cvt_pk_bf16_f32'} v{reg}, v56, v57")
            T(f"s_branch {Lr}")
            fb_text.append(text_of(T.ins))
        LN = [ln_task(t) for t in range(32)]
        P.extend(LN[0][1]); P.extend(LN[0][2])
        P.extend(LN[1][1])
        return LN

    sched = []
    NM = 320
    last_read_of_stage = {}
    first_use = {}
    last_use = {}
    def add_pass4(pid, stage0, sets, skew, stag):
        order = []
        if skew == 2:
            for tp in (0, 2):
                for c in (0, 1):
                    for tl in (tp, tp + 1):
                        for kk in range(4): order.append((c, kk, tl))
        elif skew == 1:
            for tl in range(4):
                for kk in range(4): order.append((0, kk, tl))
        for c in range(skew, 8 - abs(stag)):
            for kk in range(4):
                for tl in range(4): order.append((c, kk, tl))
        if stag:
            for tl in ((0, 1, 2, 3) if stag > 0 else (1, 0, 2, 3)):
                for c in range(8 - abs(stag), 8):
                    for kk in range(4): order.append((c, kk, tl))
        for (c, kk, tl) in order:
            sched.append((stage0 + c, kk * 2048, tl, sets[tl], 4 * c + kk, c == 0 and kk == 0, pid))
    def add_pass2(pid, stage0, sets, stag=0):
        if stag == 2:
            for cc in range(2):
                for (hh, kk, tl) in [(hh, kk, tl) for hh in range(2) for kk in range(4) for tl in range(2)]:
                    sched.append((stage0 + cc, kk * 2048, 2 * hh + tl, sets[tl], 8 * cc + 4 * hh + kk, cc == 0 and hh == 0 and kk == 0, pid))
            for tl in range(2):
                for cc in (2, 3):
                    for hh in range(2):
                        for kk in range(4):
                            sched.append((stage0 + cc, kk * 2048, 2 * hh + tl, sets[tl], 8 * cc + 4 * hh + kk, False, pid))
            return
        for cc in range(4):
            o = [(hh, kk, tl) for hh in range(2) for kk in range(4) for tl in range(2)]
            if stag and cc == 3:
                o = [(hh, kk, tl) for tl in range(2) for hh in range(2) for kk in range(4)]
            for (hh, kk, tl) in o:
                sched.append((stage0 + cc, kk * 2048, 2 * hh + tl, sets[tl], 8 * cc + 4 * hh + kk, cc == 0 and hh == 0 and kk == 0, pid))
    S0, S1, S2_, S3, S4, S5 = SET
    def build_sched(typ):
        del sched[:]
        if typ == 0:
            add_pass4(0, 0, [S0, S1, S2_, S3], 0, -1)
            add_pass4(1, 8, [S0, S1, S2_, S3], 0, 1)
            add_pass2(2, 16, [S4, S5], cfg.stag1)
        else:
            add_pass2(0, 0, [S0, S1])
            add_pass4(1, 4, [S2_, S3, S4, S5], 0, 1)
            add_pass4(2, 12, [S0, S1, S2_, S3], 2, cfg.stag2)
        assert len(sched) == NM
        first_use.clear(); last_use.clear()
        for n, e in enumerate(sched):
            last_read_of_stage[e[0]] = n
            first_use.setdefault((e[6], e[3]), n)
            last_use[(e[6], e[3])] = n

    def reads(n):
        stage, off, tl, S, xt, first, pid = sched[n]
        fb = FR0 + 4 * (n % LA)
        o = ((stage % 4) if stage < 18 else stage - 16) * SLOT + off
        return [Ins(f"ds_read_b64_tr_b16 {v(fb,2)}, v{TA[tl]} offset:{o}", tok=f"fr{n}a"),
                Ins(f"ds_read_b64_tr_b16 {v(fb+2,2)}, v{TA[tl]} offset:{o+512}", tok=f"fr{n}")]

    passed = [0]
    def group(n, pre_reads=None, lim=NM):
        stage, off, tl, S, xt, first, pid = sched[n]
        fb = FR0 + 4 * (n % LA)
        g = []
        c = "0" if first else v(S, 16)
        g.append(Ins(f"v_mfma_f32_32x32x16_bf16 {v(S,16)}, {v(fb,4)}, {v(XR(xt),4)}, {c}"))
        m = n + LA
        if m < lim:
            ns = sched[m][0]
            if ns > passed[0]:
                assert ns == passed[0] + 1
                if ns >= 2:
                    g.append(Ins("WAIT", waitfor=[f"fr{last_read_of_stage[ns-2]}"]))
                if pre_reads and ns in pre_reads:
                    g.extend(pre_reads[ns])
                if ns < 18:
                    g.append(Ins("s_barrier"))
                else:
                    g.append(Ins(f"ds_write_b32 v8, v9 offset:{16*(ns-18)}"))
                    if ns == 18:
                        for t in range(4): g.append(Ins(f"v_add_u32 v{TA[t]}, 0x10000, v{TA[t]}"))
                passed[0] = ns
            g.extend(reads(m))
        if n % 2 == 1 and n + 2 < lim:
            g.append(Ins("WAIT", waitfor=[f"fr{n+2}"]))
        return g
    BIG = 10 ** 6

    def p1_rest(typ):
        P = Prog()
        S2 = ST.fork()
        passed[0] = 0
        build_sched(typ)
        def run(lo, hi, tasks, pre, cap, lim=NM):
            groups = [group(n, pre, lim) for n in range(lo, hi)]
            t2 = [(max(r - lo, 0), d - lo, l) for (r, d, l) in tasks]
            body, rest = weave(groups, t2, cap)
            P.extend(body)
            return rest
        def progsetup():
            P(f"s_lshl_b32 {sT4}, {sW}, 2")
            P(f"s_add_u32 {sT4}, {sT4}, {LFLAG}")
            P(f"v_mov_b32 v8, {sT4}")
            P(f"v_mov_b32 v9, 1")
        def ringdone():
            P(f"ds_write_b32 v8, v9 offset:32")
        def ln_pass(LN, ng, nend, lim):
            fill = []
            for t in range(32):
                for g in range(ng):
                    a, b = 4 // ng, 8 // ng
                    f = []
                    if t + 1 < 32: f += LN[t + 1][2][a * g:a * g + a]
                    if t + 2 < 32: f += LN[t + 2][1][b * g:b * g + b]
                    if t + 3 < 32: f += LN[t + 3][0][b * g:b * g + b]
                    fill.append(f)
            for n in range(nend):
                P.extend(group(n, None, lim))
                P.extend(fill[n])
            for f in fill[nend:]: P.extend(f)
        if typ == 1: P.label("L_p1t2")
        for n in range(LA): P.extend(reads(n))
        LN = stats_fin(P)
        if typ == 1:
            P(f"s_lshl_b32 {sT1}, {sJ}, 13")
            P(f"s_add_u32 {sT1}, {sT1}, s27")
            P(f"s_add_u32 {sT2}, {sT1}, 4096")
            P(f"s_lshl_b32 {sT4}, {sW}, 12")
            P(f"s_add_u32 {sT4}, {sT4}, {7*SLOT}")
            ln_pass(LN, 2, 64 - LA, NM)
            poll_nonce(P, cfg, "v11")
            S2(P, "passQ")
            p1_taddr(P, "gu")
            pre = {}; tasks = []
            if cfg.hsm:
                P(f"v_add_u32 v8, {sT4}, v{vL16}")
                P(f"v_add_u32 v9, {WF}, v{vL16}")
                Q = Prog()
                for k in range(8): Q(f"v_cvt_pk_bf16_f32 v{S1+k}, v{S1+2*k}, v{S1+2*k+1}")
                Q(f"ds_write_b128 v8, {v(S1,4)} offset:2048")
                Q(f"ds_write_b128 v8, {v(S1+4,4)} offset:3072", tok="evacQ1")
                for k in range(8): Q(f"v_cvt_pk_bf16_f32 v{S0+k}, v{S0+2*k}, v{S0+2*k+1}")
                Q(f"ds_read_b128 {v(S0+8,4)}, v9")
                Q(f"ds_read_b128 {v(S0+12,4)}, v9 offset:1024")
                tasks.append((65, 16 * cfg.qb - LA - 2, Q.ins))
                pre[cfg.qb] = [Ins("WAIT", waitfor=["evacQ1"])]
                Q = Prog()
                Q(f"v_mfma_f32_32x32x16_bf16 {v(S1,16)}, {v(S0+8,4)}, {v(S0,4)}, 0")
                Q(f"v_mfma_f32_32x32x16_bf16 {v(S1,16)}, {v(S0+12,4)}, {v(S0+4,4)}, {v(S1,16)}")
                tasks.append((78, BIG, Q.ins))
                Q = Prog()
                softmax_core(Q, S1, S0, (2, 3, 10, 11))
                Q("v_rcp_f32 v10, v10")
                Q("v_rcp_f32 v11, v11")
                Q(f"v_subrev_u32 v8, {SLOT}, v8")
                for k in range(16): Q(f"v_mul_f32 v{S0+k}, v{S0+k}, v10")
                for k in range(8): Q(f"v_cvt_pk_bf16_f32 v{S0+k}, v{S0+2*k}, v{S0+2*k+1}")
                Q(f"ds_write_b128 v8, {v(S0,4)}")
                for k in range(8): Q(f"v_mul_f32 v{S1+k}, v{S1+k}, v11")
                Q(f"ds_write_b128 v8, {v(S0+4,4)} offset:1024")
                for k in range(8, 16): Q(f"v_mul_f32 v{S1+k}, v{S1+k}, v11")
                for k in range(4): Q(f"v_cvt_pk_bf16_f32 v{S1+k}, v{S1+2*k}, v{S1+2*k+1}")
                Q(f"ds_write_b128 v8, {v(S1,4)} offset:2048")
                for k in range(4, 8): Q(f"v_cvt_pk_bf16_f32 v{S1+k}, v{S1+2*k}, v{S1+2*k+1}")
                Q(f"ds_write_b128 v8, {v(S1+4,4)} offset:3072", tok="phi0")
                tasks.append((81, 176 - LA - 2, Q.ins))
                pre[11] = [Ins("WAIT", waitfor=["phi0"])]
                rest = run(64 - LA, 172, tasks, pre, 3)
                assert not rest
                progsetup()
                tasks = []
                Q = Prog(); tag_setup(Q, TG1, sTM)
                tasks.append((0, BIG, Q.ins))
                lo_ = 172
            else:
                P(f"v_add_u32 v10, {sT4}, v{vL16}")
                progsetup()
                Q = Prog()
                for i, S in enumerate((S0, S1)):
                    for k in range(8): Q(f"v_cvt_pk_bf16_f32 v{S+k}, v{S+2*k}, v{S+2*k+1}")
                    Q(f"ds_write_b128 v10, {v(S,4)} offset:{2048*i}")
                    Q(f"ds_write_b128 v10, {v(S+4,4)} offset:{2048*i+1024}", tok=f"evacQ{i}")
                tasks.append((65, 16 * cfg.qb - LA - 2, Q.ins))
                pre[cfg.qb] = [Ins("WAIT", waitfor=["evacQ1"])]
                Q = Prog(); tag_setup(Q, TG1, sTM)
                tasks.append((90, BIG, Q.ins))
                lo_ = 64 - LA
            for i, S in enumerate((S2_, S3, S4, S5)):
                dl = first_use.get((2, S), BIG)
                tasks.append((last_use[(1, S)] + 2, dl, sigmoid_task(S, sT1, 1024 * i, f"hA{i}")))
            for i, S in enumerate((S0, S1, S2_, S3)):
                tasks.append((last_use[(2, S)] + 2, BIG, sigmoid_task(S, sT2, 1024 * i, f"hB{i}")))
            rest = run(lo_, NM, tasks, pre, cfg.cap2)
            ringdone()
            S2(P, "gemm")
            P.extend(rest)
        else:
            P(f"s_mul_i32 {sT1}, {sJ}, 6144")
            P(f"s_add_u32 {sT1}, {sT1}, s27")
            P(f"s_add_u32 {sT1}, {sT1}, {64*1024}")
            P(f"s_and_b32 {sT3}, {sJ}, 1")
            P(f"s_lshl_b32 {sT2}, {sT3}, 11")
            P(f"s_add_u32 {sT2}, {sT2}, {sT1}")
            P(f"s_xor_b32 {sT3}, {sT3}, 1")
            P(f"s_lshl_b32 {sT3}, {sT3}, 12")
            P(f"s_add_u32 {sT3}, {sT3}, {sT1}")
            P(f"s_lshl_b32 {sT4}, {sW}, 11")
            P(f"s_add_u32 {sT4}, {sT4}, {PHI}")
            ln_pass(LN, 4, 112, 128)
            poll_nonce(P, cfg, "v11")
            tasks = []
            AD = S5 + 8
            Q = Prog()
            Q(f"v_add_u32 v3, {WF}, v{vL16}")
            Q(f"v_add_u32 v{AD+2}, {sT4}, v{vL16}")
            Q(f"ds_read_b128 {v(S5,4)}, v3")
            Q(f"ds_read_b128 {v(S5+4,4)}, v3 offset:1024")
            Q(f"v_and_b32 v2, 31, v0")
            Q(f"v_lshlrev_b32 v2, 6, v2")
            Q(f"v_bfe_u32 v11, v0, 1, 2")
            Q(f"v_lshl_add_u32 v2, v11, 4, v2")
            Q(f"v_add_u32 v2, {sT4}, v2")
            Q(f"v_and_b32 v11, 32, v0")
            Q(f"v_xor_b32 v{AD}, v2, v11")
            Q(f"v_add_u32 v{AD}, {VIMG-PHI}, v{AD}")
            Q(f"v_xor_b32 v{AD+1}, 16, v{AD}")
            Q("v_lshl_add_u32 v2, v11, 8, v2")
            Q("v_xor_b32 v3, 16, v2")
            Q("v_xor_b32 v10, 32, v2")
            Q("v_xor_b32 v11, 48, v2")
            tasks.append((112, BIG, Q.ins))
            Q = Prog()
            for k in range(8): Q(f"v_cvt_pk_bf16_f32 v{S1+k}, v{S1+2*k}, v{S1+2*k+1}")
            Q(f"ds_write_b128 v{AD+2}, {v(S1,4)} offset:{2*8192}")
            Q(f"ds_write_b128 v{AD+2}, {v(S1+4,4)} offset:{3*8192}", tok="evacK")
            tasks.append((last_use[(0, S1)] + 2, BIG, Q.ins))
            Q = Prog()
            for k in range(8): Q(f"v_cvt_pk_bf16_f32 v{S0+k}, v{S0+2*k}, v{S0+2*k+1}")
            tasks.append((last_use[(0, S0)] + 2, BIG, Q.ins))
            Q = Prog()
            for k in range(8): Q(f"v_cvt_pk_bf16_f32 v{S2_+k}, v{S2_+2*k}, v{S2_+2*k+1}")
            tasks.append((last_use[(0, S2_)] + 2, BIG, Q.ins))
            rest = run(112, 128, tasks, {}, cfg.cap + 1, lim=128)
            P.extend(rest)
            P(f"v_mfma_f32_32x32x16_bf16 {v(S4,16)}, {v(S5,4)}, {v(S0,4)}, 0")
            P(f"v_mfma_f32_32x32x16_bf16 {v(S4,16)}, {v(S5+4,4)}, {v(S0+4,4)}, {v(S4,16)}")
            P.wait("evacK")
            P("s_barrier")
            passed[0] = 8
            S2(P, "passKV")
            for k in range(8): P(f"v_cvt_pk_bf16_f32 v{S3+k}, v{S3+2*k}, v{S3+2*k+1}")
            for i, S in enumerate((S2_, S3)):
                P(f"ds_write_b128 v{AD}, {v(S,4)} offset:{i*8192}")
                P(f"ds_write_b128 v{AD+1}, {v(S+4,4)} offset:{i*8192}")
            p1_taddr(P, "gu")
            Q = Prog()
            softmax_pk(Q, S4, S1, AD + 2, "s[26:27]")
            P.extend(Q.ins[:-16])
            P(f"ds_write_b128 v2, {v(S1,4)}")
            P(f"ds_write_b128 v3, {v(S1+4,4)}")
            for n in range(128, 128 + LA): P.extend(reads(n))
            P.extend(Q.ins[-16:])
            P(f"ds_write_b128 v10, {v(S4,4)}")
            P(f"ds_write_b128 v11, {v(S4+4,4)}", tok="phi0")
            if cfg.kvb:
                P.wait("phi0"); P("s_barrier")
            S2(P, "burst")
            pre = {9: [Ins("WAIT", waitfor=["phi0"])]}
            g4 = (S0, S1, S2_, S3)
            E = [(last_use[(1, S)] + 2, BIG, sigmoid_task(S, sT2, 1024 * i, f"hB{i}")) for i, S in enumerate(g4)]
            Q = Prog(); tag_setup(Q, TG1, sTM)
            rest = run(128, 256 - LA, [(150, BIG, Q.ins)] + E[:1], pre, cfg.cap)
            S2(P, "passG")
            p1_taddr(P, "pair")
            progsetup()
            tasks = [(0, BIG, rest)] + E[1:]
            tasks += [(last_use[(2, S)] + 2, BIG, sigmoid_task(S, sT3, 1024 * i, f"hC{i}")) for i, S in enumerate((S4, S5))]
            rest = run(256 - LA, NM, tasks, {}, cfg.capC)
            ringdone()
            S2(P, "gemm")
            P.extend(rest)
        if cfg.hold: P("ds_write_b32 v8, v9 offset:64")
        S2(P, "end")
        S2.dump(P, 0)
        P("s_endpgm")
        r, _ = finalize(P, stA, log)
        return r, S2.names
    p1t1, names_p1t1 = p1_rest(0)
    p1t2, names_p1t2 = p1_rest(1)
    segs.append(p1t1); segs.append(p1t2)

    VW = [2, 3, 4, 5]; VB = [6, 7]; TB = [8, 9]; VA = [10, 11]
    ACC = 16; RING = 80; B2R = 112
    sJ0, sJ1 = "s88", "s89"
    sKK = ["s90", "s91", "s92", "s93"]
    sHB2 = sT5
    p2_stamp_regs = [f"s{i}" for i in list(range(16, 22)) + [25, 60, 61, 62, 63, 36, 37, 38, 39]]

    P = Prog()
    P.label("L_p2")
    ST2 = Stamps(cfg, p2_stamp_regs)
    if cfg.stamps:
        ST2.regs = ["s98"] + p2_stamp_regs; ST2.n = 1; ST2.names = ["start"]
    P("v_lshrrev_b32 v12, 3, v0")
    P("v_and_b32 v13, 7, v0")
    P("v_lshlrev_b32 v13, 4, v13")
    P("v_bfe_u32 v14, v0, 4, 1")
    P("v_lshlrev_b32 v14, 6, v14")
    P("v_xor_b32 v13, v13, v14")
    def wvoff(P, pitch, kind="norm"):
        P(f"s_lshl_b32 {sT0}, {sW}, 4")
        P(f"v_add_u32 v14, {sT0}, v12")
        P(f"v_mul_u32_u24 v14, {pitch}, v14")
        if kind == "norm":
            P(f"v_add_u32 v{VW[0]}, v14, v13")
            P(f"v_xor_b32 v15, 32, v13")
            P(f"v_add_u32 v{VW[2]}, v14, v15")
        else:
            P(f"v_lshrrev_b32 v15, 1, v13")
            P(f"v_and_b32 v15, 32, v15")
            P(f"v_add_u32 v14, v14, v15")
            P(f"v_and_b32 v15, 16, v13")
            P(f"v_add_u32 v{VW[0]}, v14, v15")
            P(f"v_mov_b32 v{VW[2]}, v{VW[0]}")
        P(f"v_add_u32 v{VW[1]}, {8*pitch-1024}, v{VW[0]}")
        P(f"v_add_u32 v{VW[3]}, {8*pitch-1024}, v{VW[2]}")
    P("s_waitcnt lgkmcnt(0)")
    srd(P, SQKV, 6, 512 * 3072)
    srd(P, SX, 4, 2048 * 1024)
    srd(P, SG, 14, 512 * 3584)
    srd(P, SU, 16, 512 * 3584)
    P(f"s_cmp_eq_u32 {sTYPE}, 1")
    P("s_cbranch_scc1 L_p2t2")
    p2pro, st2 = finalize(P, st0, log)
    segs.append(p2pro)

    def p2_rest(typ):
        P = Prog()
        S2 = ST2.fork()
        if typ == 1: P.label("L_p2t2")
        sCL = "s3"
        sM0 = "s27"
        passes = [(0, 8, "KV"), (8, 8, "G4"), (16, 4, "G2")] if typ == 0 else [(0, 4, "Q"), (4, 8, "Ga"), (12, 8, "Gb")]

        def set_pass(kind):
            if kind in ("KV", "Q"):
                wvoff(P, 3072)
                P(f"s_lshl_b32 {sCL}, {sJ}, 7")
                if kind == "KV":
                    P(f"s_add_u32 {sCL}, {sCL}, 1024")
                    P(f"v_add_u32 v{VW[2]}, 1024, v{VW[2]}")
                    P(f"v_add_u32 v{VW[3]}, 1024, v{VW[3]}")
            elif kind == "G4":
                wvoff(P, 3584)
                P(f"s_mul_i32 {sCL}, {sJ}, 192")
                P(f"s_and_b32 {sT0}, {sJ}, 1")
                P(f"s_lshl_b32 {sT0}, {sT0}, 6")
                P(f"s_add_u32 {sCL}, {sCL}, {sT0}")
                P(f"s_add_u32 {sCL}, {sCL}, 2048")
            elif kind == "G2":
                P(f"s_lshl_b32 {sT0}, {sW}, 4")
                P(f"v_add_u32 v14, {sT0}, v12")
                P(f"v_mul_u32_u24 v14, 3584, v14")
                P(f"v_lshrrev_b32 v15, 1, v13")
                P(f"v_and_b32 v15, 32, v15")
                P(f"v_add_u32 v14, v14, v15")
                P(f"v_and_b32 v15, 16, v13")
                P(f"v_add_u32 v14, v14, v15")
                P(f"v_add_u32 v15, {8*3584-1024}, v14")
                P(f"s_mul_i32 s26, {sJ}, 192")
                P(f"s_and_b32 {sT0}, {sJ}, 1")
                P(f"s_xor_b32 {sT0}, {sT0}, 1")
                P(f"s_lshl_b32 {sT0}, {sT0}, 7")
                P(f"s_add_u32 s26, s26, {sT0}")
                P(f"s_add_u32 s26, s26, 2048")
            elif kind == "Ga":
                wvoff(P, 3584)
                P(f"s_lshl_b32 {sCL}, {sJ}, 8")
            elif kind == "Gb":
                P(f"s_add_u32 {sCL}, {sCL}, 128")

        seen_pass = set()
        def wchunk(s, sides=(0, 1)):
            s0, ns, kind = [p for p in passes if p[0] <= s < p[0] + p[1]][0]
            if kind not in seen_pass:
                set_pass(kind); seen_pass.add(kind)
            isqkv = kind in ("KV", "Q")
            pitch = 3072 if isqkv else 3584
            for side in sides:
                b = (s - s0) if ns == 8 else 2 * (s - s0) + side
                if side == 0 or ns == 4:
                    P(f"s_add_u32 {sT0}, {sROT}, {b}")
                    P(f"s_and_b32 {sT0}, {sT0}, 7")
                    P(f"s_mul_i32 {sT0}, {sT0}, {64*pitch}")
                    P(f"s_add_u32 {sT1}, {sT0}, {'s26' if kind == 'G2' else sCL}")
                if s >= cfg.skipw: P(f"s_mov_b32 {sT1}, 0x7f000000")
                P(f"s_add_u32 m0, {sM0}, {((s % 4) if s < 18 else s - 12) * SLOT + side * 8192}")
                if kind == "G2":
                    for mat in range(2):
                        mk = "s[100:101]" if (mat ^ side) == 0 else "s[84:85]"
                        P(f"s_mov_b64 exec, {mk}")
                        for q in range(2):
                            P(f"buffer_load_dwordx4 v{14+q}, {SU if mat else SG}, {sT1} offen offset:{1024*q}{NT[cfg.ntw]} lds", tok=f"w{s}")
                    P("s_mov_b64 exec, -1")
                else:
                    sr = SQKV if isqkv else (SU if side else SG)
                    for q in range(2):
                        P(f"buffer_load_dwordx4 v{VW[2*side+q]}, {sr}, {sT1} offen offset:{1024*q}{NT[cfg.ntw]} lds", tok=f"w{s}")

        P(f"s_lshl_b32 {sM0}, {sW}, 11")
        if cfg.wfirst: wchunk(0)
        srd(P, SPHI, 8, 32 * 512)
        srd(P, SWS, 24, WS_BYTES)
        srd(P, SDBG, 22, 256)
        srd(P, SD, 18, 1792 * 1024)
        srd(P, SO, 10, 512 * 1024)
        srd(P, SOUT, 20, 2048 * 1024)
        P(f"s_mov_b32 s24, {LOG2E:#x}")
        P(f"s_lshl_b32 {sJ0}, {sW}, 1")
        P(f"s_add_u32 {sJ0}, {sJ0}, {sC2}")
        P(f"s_add_u32 {sJ1}, {sJ0}, 1")
        P(f"s_and_b32 {sJ0}, {sJ0}, 7")
        P(f"s_and_b32 {sJ1}, {sJ1}, 7")
        P(f"s_lshr_b32 {sT0}, {sC2}, 1")
        P(f"s_add_u32 {sT0}, {sT0}, {sR2}")
        for t in range(4):
            P(f"s_add_u32 {sKK[t]}, {sT0}, {t}")
            P(f"s_and_b32 {sKK[t]}, {sKK[t]}, 3")
        P(f"s_mul_i32 {sHB2}, {sR2}, {2*144*1024}")
        P(f"s_lshl_b32 {sT0}, {sC2}, 7")
        P(f"v_lshl_add_u32 v{VB[0]}, v12, 10, v13")
        P(f"v_add_u32 v{VB[0]}, {sT0}, v{VB[0]}")
        P(f"v_add_u32 v{VB[1]}, {7*1024}, v{VB[0]}")
        P("v_lshrrev_b32 v14, 5, v0")
        P("v_lshlrev_b32 v14, 9, v14")
        P("v_bfe_u32 v15, v0, 2, 2")
        P("v_lshl_add_u32 v14, v15, 7, v14")
        P("v_bfe_u32 v15, v0, 3, 1")
        P("v_lshl_add_u32 v14, v15, 6, v14")
        P("v_bfe_u32 v15, v0, 4, 1")
        P("v_lshl_add_u32 v14, v15, 5, v14")
        P("v_and_b32 v15, 3, v0")
        P("v_lshl_add_u32 v14, v15, 3, v14")
        P(f"s_and_b32 {sT0}, {sW}, 1")
        P(f"s_lshl_b32 {sT0}, {sT0}, 6")
        P(f"v_xor_b32 v14, {sT0}, v14")
        P(f"s_lshl_b32 {sT0}, {sW}, 12")
        P(f"s_add_u32 {sT0}, {sT0}, {4*SLOT}")
        P(f"v_add_u32 v{TB[0]}, {sT0}, v14")
        P(f"v_xor_b32 v{TB[1]}, 64, v{TB[0]}")
        P(f"s_lshr_b32 {sT0}, {sW}, 1")
        P(f"s_mul_i32 {sT1}, {sT0}, {144*1024}")
        P(f"s_sub_u32 {sT2}, {144*1024}, {sT1}")
        P(f"s_add_u32 {sT1}, {sT1}, {sHB2}")
        P(f"s_add_u32 {sT2}, {sT2}, {sHB2}")
        P(f"v_add_u32 v{VA[0]}, {sT1}, v1")
        P(f"v_add_u32 v{VA[1]}, {sT2}, v1")

        def kind_slots(cls, kind, nt=4):
            return [(cls, kind, jsel, t) for jsel in range(2) for t in range(nt)]
        slots = kind_slots(1, "A") + kind_slots(2, "B1") + kind_slots(2, "O") + kind_slots(2, "C1", 2) + kind_slots(2, "B2")
        assert len(slots) == 36
        KB = {(k, j): f"s{4 + 2*i + j}" for i, k in enumerate(("A", "B2", "B1", "C1", "O")) for j in range(2)}
        sKK1 = ["s14", "s15"]
        for j, sj in enumerate((sJ0, sJ1)):
            P(f"s_lshl_b32 {KB['A', j]}, {sj}, 13")
            P(f"s_add_u32 {KB['B2', j]}, {KB['A', j]}, 4096")
            P(f"s_lshl_b32 {KB['O', j]}, {sj}, 12")
            P(f"s_mul_i32 {sT0}, {sj}, 6144")
            P(f"s_and_b32 {sT1}, {sj}, 1")
            P(f"s_lshl_b32 {sT2}, {sT1}, 11")
            P(f"s_add_u32 {KB['B1', j]}, {sT0}, {sT2}")
            P(f"s_add_u32 {KB['B1', j]}, {KB['B1', j]}, {64*1024}")
            P(f"s_lshl_b32 {sT2}, {sT1}, 12")
            P(f"s_sub_u32 {KB['C1', j]}, {sT0}, {sT2}")
            P(f"s_add_u32 {KB['C1', j]}, {KB['C1', j]}, {68*1024}")
        for t in range(4): P(f"s_lshl_b32 {sKK[t]}, {sKK[t]}, 10")
        for t in range(2): P(f"s_and_b32 {sKK1[t]}, {sKK[t]}, 1024")
        P(f"s_lshl_b32 s99, {sW}, 12")

        def ks_to(P, sg, dst):
            cls, kind, jsel, t = slots[sg]
            P(f"s_add_u32 {dst}, {KB[kind, jsel]}, {sKK1[t] if kind == 'C1' else sKK[t]}")

        stagepos = {}
        def b2pos(sg):
            if sg < 18: return stagepos[sg]
            k = sg - 18
            return [8, 4, 5, 2, 3, 0, 1, 6, 7][k // 2] * SLOT + (k % 2) * 2048

        thr_on = [False]
        def throttle():
            if thr_on[0] and cfg.thr: P(f"s_waitcnt vmcnt({cfg.thr})")
        vmlog = []
        def b2dma(sg, P_=None):
            if P_ is None:
                throttle(); vmlog.append(("b", sg))
                b2dma_(P, sg)
            else:
                b2dma_(P_, sg)
        def b2dma_(P, sg):
            ks_to(P, sg, sT2)
            P(f"s_add_u32 m0, s99, {b2pos(sg)}")
            if cfg.b2hit: P(f"s_and_b32 {sT2}, {sT2}, 0x7fff")
            P(f"s_lshl_b32 {sT2}, {sT2}, 4")
            sr = SO if slots[sg][1] == "O" and not cfg.b2hit else SD
            if sg >= cfg.skipb: P(f"s_mov_b32 {sT2}, 0x7f000000")
            for q in range(2):
                P(f"buffer_load_dwordx4 v{VB[q]}, {sr}, {sT2} offen offset:{1024*q}{NT[cfg.ntb]} lds", tok=f"b{sg}")

        def b2touch(sg):
            junk = 16 if typ == 0 else 232
            ks_to(P, sg, sT2)
            P(f"s_lshl_b32 {sT2}, {sT2}, 4")
            sr = SO if slots[sg][1] == "O" else SD
            for q in range(2):
                P(f"buffer_load_dword v{junk+touchn[0]%16}, v{VB[q]}, {sr}, {sT2} offen offset:{1024*q}")
                touchn[0] += 1
        touchn = [0]
        tb_base = [4 * SLOT]
        def b2read(sg, regs):
            pos = b2pos(sg)
            want = (pos // (4 * SLOT)) * 4 * SLOT
            if want != tb_base[0]:
                d = want - tb_base[0]
                for ct in range(2):
                    if d > 0: P(f"v_add_u32 v{TB[ct]}, {d}, v{TB[ct]}")
                    else: P(f"v_subrev_u32 v{TB[ct]}, {-d}, v{TB[ct]}")
                tb_base[0] = want
            o = pos - want
            P.wait(f"b{sg}")
            for ct in range(2):
                P(f"ds_read_b64_tr_b16 {v(regs[ct],2)}, v{TB[ct]} offset:{o}")
                P(f"ds_read_b64_tr_b16 {v(regs[ct]+2,2)}, v{TB[ct]} offset:{o+1024}", tok=f"br{sg}")

        per = cfg.per2 if typ == 1 else cfg.per1
        def poswin(pos, final):
            sl = pos // SLOT
            if sl == 8: return (0, 5) if not final else ((10, 99) if typ == 0 else (0, 99))
            if sl in (4, 5): return (0, 99)
            if sl == 2: return (16, 99)
        occupant = {}
        stg = [8 * SLOT, 8 * SLOT + 2048, 4 * SLOT, 4 * SLOT + 2048, 5 * SLOT, 5 * SLOT + 2048]
        todo_reg = sorted(range(18), key=lambda x: (x >= 15 and typ == 1, slots[x][3] != 0, x)) if cfg.tmajor else list(range(18))
        todo_fin = list(range(18, 26))
        readdone = set()
        pend_reads = []
        defer = {15: 99, 16: 99, 17: 99} if typ == 1 else {}
        extra = {}
        first = {}
        last = {}
        def vpart(lst):
            if cfg.vprio: P(f"s_setprio {cfg.vprio}")
            P.extend(lst)
            if cfg.vprio: P("s_setprio 0")
        def split(smi, nparts):
            tot = sum(i.cost for i in smi)
            parts = [[] for _ in range(nparts)]
            acc = 0
            for i in smi:
                parts[min(nparts - 1, acc * nparts // tot)].append(i); acc += i.cost
            return parts

        fillv = "0x3f803f80" if typ == 0 else "0"
        for k in range(4): P(f"v_mov_b32 v{16+k}, {fillv}")
        for k in range(4): P(f"v_mov_b32 v{20+k}, 0")
        P(f"v_add_u32 v14, {sM0}, v1")
        P(f"v_add_u32 v14, {KVF}, v14")
        P(f"ds_write_b128 v14, v[16:19]")
        P(f"ds_write_b128 v14, v[16:19] offset:1024")
        P(f"v_add_u32 v14, {ZL}, v1")
        P(f"ds_write_b128 v14, v[20:23]")
        if typ == 0:
            KF = 16; A1 = 24; PP = 32; TT = 48; TM = 96; VF = 64
            P(f"s_lshl_b32 {sT0}, {sW}, 11")
            P(f"s_add_u32 {sT0}, {sT0}, {PHI+16384}")
            P("v_and_b32 v100, 31, v0")
            P("v_lshlrev_b32 v100, 6, v100")
            P("v_bfe_u32 v14, v0, 1, 2")
            P("v_lshl_add_u32 v100, v14, 4, v100")
            P("v_lshrrev_b32 v14, 5, v0")
            P("v_lshl_add_u32 v100, v14, 13, v100")
            P(f"v_add_u32 v100, {sT0}, v100")
            for q in range(1, 4): P(f"v_xor_b32 v{100+q}, {16*q}, v100")
            P(f"v_add_u32 v111, {sT0}, v1")
            P("v_lshrrev_b32 v14, 5, v0")
            P("v_lshlrev_b32 v14, 9, v14")
            P("v_bfe_u32 v15, v0, 2, 2")
            P("v_lshl_add_u32 v14, v15, 6, v14")
            P("v_and_b32 v15, 1, v0")
            P("v_lshl_add_u32 v14, v15, 5, v14")
            P("v_bfe_u32 v15, v0, 4, 1")
            P("v_lshl_add_u32 v14, v15, 4, v14")
            P("v_bfe_u32 v15, v0, 1, 1")
            P("v_lshl_add_u32 v14, v15, 3, v14")
            P("v_bfe_u32 v15, v0, 3, 1")
            P("v_lshlrev_b32 v15, 4, v15")
            P("v_xor_b32 v14, v14, v15")
            P(f"s_and_b32 {sT0}, {sW}, 1")
            P(f"s_lshl_b32 {sT0}, {sT0}, 4")
            P(f"v_xor_b32 v106, {sT0}, v14")
            P(f"s_lshr_b32 {sT0}, {sW}, 1")
            P(f"s_lshl_b32 {sT0}, {sT0}, 13")
            P(f"s_add_u32 {sT0}, {sT0}, {VIMG}")
            P(f"v_mov_b32 v96, {sT0}")
            P(f"v_mov_b32 v97, {KVF}")
            P("s_mov_b32 s82, 0x0000ffff")
            P("s_mov_b32 s83, 0x0000ffff")
            P(f"v_cndmask_b32 v96, v97, v96, {sMASK}")
            P(f"v_add_u32 v106, v96, v106")
            P(f"v_xor_b32 v107, 32, v106")
            P(f"s_lshl_b32 {sT0}, {sW}, 13")
            P(f"s_add_u32 {sT0}, {sT0}, {PHI}")
            P(f"v_add_u32 v104, {sT0}, v14")
            P(f"v_xor_b32 v105, 32, v104")
            P("v_and_b32 v14, 31, v0")
            P("v_lshrrev_b32 v15, 5, v0")
            P("v_lshlrev_b32 v108, 4, v14")
            P("v_lshl_add_u32 v108, v15, 8, v108")
            P("v_add_u32 v109, 512, v108")
            P("v_lshlrev_b32 v96, 5, v15")
            P("v_add_u32 v96, 1024, v96")
            P("v_add_u32 v97, 16, v96")
            P("v_cmp_eq_u32 vcc, 16, v14")
            P("v_cndmask_b32 v108, v108, v96, vcc")
            P("v_cndmask_b32 v109, v109, v97, vcc")
            P("v_mov_b32 v96, 0x7f000000")
            P("v_cmp_lt_u32 vcc, 16, v14")
            P("v_cndmask_b32 v108, v108, v96, vcc")
            P("v_cndmask_b32 v109, v109, v96, vcc")
            P(f"s_lshl_b32 {sT0}, {sJ}, 4")
            P(f"s_add_u32 {sT0}, {sT0}, {sRB}")
            P(f"s_lshl_b32 {sT0}, {sT0}, 2")
            P(f"s_add_u32 {sT0}, {sT0}, {sW}")
            P(f"s_mul_i32 s94, {sT0}, {KVHEAD}")
            P(f"s_add_u32 s94, s94, {KVP_OFF}")
            P(f"s_lshl_b32 s95, {sT0}, 7")
            P(f"s_add_u32 s95, s95, {FLAGKV_OFF}")
        else:
            P(f"s_lshl_b32 {sT0}, {sRB}, 2")
            P(f"s_add_u32 {sT0}, {sT0}, {sW}")
            P(f"s_mul_i32 s94, {sT0}, {144*1024}")
            P(f"s_lshl_b32 {sT1}, {sJ}, 12")
            P(f"s_add_u32 s94, s94, {sT1}")
            P(f"s_add_u32 s94, s94, {112*1024}")
            P(f"s_lshl_b32 s95, {sT0}, 5")
            P(f"s_add_u32 s95, s95, {sJ}")
            P(f"s_lshl_b32 s95, s95, 7")
            P(f"s_add_u32 s95, s95, {FLAGH_OFF + 16*128}")
        def mallwarm(which="gudo"):
            if cfg.wt2 and typ == 0: return
            for rep in range(2 if cfg.wt2 else 1):
                if cfg.wt2:
                    P(f"s_xor_b32 {sT0}, s2, {16*rep}")
                    P(f"s_lshl_b32 {sT0}, {sT0}, 2")
                else:
                    P(f"s_lshl_b32 {sT0}, s2, 2")
                P(f"s_add_u32 {sT0}, {sT0}, {sW}")
                P(f"s_mul_i32 {sT1}, {sT0}, 1792")
                P(f"s_lshl_b32 {sT2}, {sT0}, 9")
                P(f"s_mul_i32 {sT3}, {sT0}, 1536")
                P("v_lshlrev_b32 v14, 5, v0")
                P("v_lshlrev_b32 v15, 3, v0")
                j0 = 232 + 8 * rep
                for q, (ch, sr) in enumerate((("g", SG), ("u", SU), ("d", SD))):
                    if ch in which: P(f"buffer_load_dword v{j0+q}, v14, {sr}, {sT1} offen")
                if "o" in which: P(f"buffer_load_dword v{j0+3}, v15, {SO}, {sT2} offen")
                if "q" in which: P(f"buffer_load_dword v{j0+4}, v14, {SQKV}, {sT3} offen")
        def wf_build():
            P.wait("wphi")
            wphi_frags(P, 0, 32, 16, 14, 15)
            if typ == 0 or cfg.hsm:
                P(f"v_add_u32 v14, {WF}, v1")
                for q in range(2): P(f"ds_write_b128 v14, {v(16+4*q,4)} offset:{q*1024}", tok="wf")
        def early():
            Ln = newlabel("nn")
            P(f"s_or_b32 {sT0}, s2, {sW}")
            P(f"s_cmp_lg_u32 {sT0}, 0")
            P(f"s_cbranch_scc1 {Ln}")
            P.ins.append(Ins(".raw"))
            P.ins[-1].text = (f"  s_memrealtime s[100:101]\n  s_waitcnt lgkmcnt(0)\n  s_or_b32 {sT0}, s100, 1\n  v_mov_b32 v240, {sT0}\n  v_mov_b32 v241, 0\n"
                              f"  v_lshlrev_b32 v242, 26, v0\n  buffer_atomic_cmpswap v[240:241], v242, {SDBG}, 0 offen sc1\n  s_nop 1")
            P.label(Ln)
            P(f"s_lshl_b32 {sT1}, {sJ}, 11")
            P(f"s_mov_b32 m0, {WPHI}")
            P(f"buffer_load_dwordx4 v1, {SPHI}, {sT1} offen lds")
            P(f"buffer_load_dwordx4 v1, {SPHI}, {sT1} offen offset:1024 lds", tok="wphi")
            if not cfg.wfirst: wchunk(0)
        if cfg.tlb:
            P("v_lshlrev_b32 v244, 18, v0")
            P(f"v_add_u32 v244, {0x3ff80}, v244")
            P(f"buffer_load_dword v245, v244, {SWS}, 0 offen")
            P("v_lshlrev_b32 v244, 16, v0")
            for q, sr in enumerate((SOUT, SD, SO, SG, SU, SQKV)):
                P(f"buffer_load_dword v{246+q}, v244, {sr}, 0 offen")
        for _ in range(cfg.wdelay): P("s_sleep 8")
        if cfg.warm == -2: mallwarm("gudoq")
        early()
        if not cfg.w1late: wchunk(1)
        if cfg.warm == -3: mallwarm("gudo")
        if cfg.warm == -4:
            mallwarm("gu"); last.setdefault(0, []).append(lambda: mallwarm("do"))
        if cfg.wflate:
            extra.setdefault(1, []).append(wf_build)
            if typ == 0 or cfg.hsm: last.setdefault(1, []).append(lambda: P.wait("wf"))
        else:
            wf_build()
            if typ == 0: P.wait("wf")
        P("s_waitcnt lgkmcnt(0)")

        def pubflag(tok, val, sadr, t0, t1):
            P(f"s_add_u32 {sT1}, {sNONCE}, {val}")
            P(f"v_mov_b32 v{t0}, {sT1}")
            P(f"v_lshlrev_b32 v{t1}, 26, v0")
            P.wait(tok)
            P(f"buffer_store_dword v{t0}, v{t1}, {SWS}, {sadr} offen sc1")

        if typ == 0:
            def t1_b():
                for hh in range(2):
                    P(f"ds_read_b128 {v(KF+4*hh,4)}, v111 offset:{hh*8192}")
            def t1_burst():
                P("s_setprio 2")
                P(f"v_mfma_f32_32x32x16_bf16 {v(PP,16)}, {v(A1,4)}, {v(KF,4)}, 0")
                P(f"v_mfma_f32_32x32x16_bf16 {v(PP,16)}, {v(A1+4,4)}, {v(KF+4,4)}, {v(PP,16)}")
                Q = Prog()
                softmax_pk(Q, PP, TT, 64, "s[24:25]")
                P.extend(Q.ins[:-16])
                P(f"ds_write_b128 v100, {v(TT,4)}")
                P(f"ds_write_b128 v101, {v(TT+4,4)}")
                P.extend(Q.ins[-16:])
                P(f"ds_write_b128 v102, {v(PP,4)}")
                P(f"ds_write_b128 v103, {v(PP+4,4)}", tok="phi1")
                P("s_setprio 0")
            def t1_rd():
                for ks in range(8):
                    a, b = 32 + 4 * ks, VF + 4 * ks
                    P(f"ds_read_b64_tr_b16 {v(a,2)}, v104 offset:{ks*1024}")
                    P(f"ds_read_b64_tr_b16 {v(a+2,2)}, v105 offset:{ks*1024+256}")
                    P(f"ds_read_b64_tr_b16 {v(b,2)}, v106 offset:{ks*1024}")
                    P(f"ds_read_b64_tr_b16 {v(b+2,2)}, v107 offset:{ks*1024+256}", tok="kvrd")
            def t1_kv():
                D = 16
                P("s_setprio 2")
                for ks in range(8):
                    a, b = 32 + 4 * ks, VF + 4 * ks
                    P(f"v_mfma_f32_32x32x16_bf16 {v(D,16)}, {v(a,4)}, {v(b,4)}, {'0' if ks == 0 else v(D,16)}")
            def t1_st():
                D = 16
                for k in range(8): P(f"v_cvt_pk_bf16_f32 v{D+k}, v{D+2*k}, v{D+2*k+1}")
                P(f"buffer_store_dwordx4 {v(D,4)}, v108, {SWS}, s94 offen sc1")
                P(f"buffer_store_dwordx4 {v(D+4,4)}, v109, {SWS}, s94 offen sc1", tok="kvst")
                P("s_setprio 0")
            first[8] = [t1_b]
            extra[8] = [t1_burst]
            if cfg.kvb:
                extra[8] += [lambda: P.wait("phi1"), lambda: P("s_barrier"), lambda: P("s_setprio 2"), t1_rd, t1_kv, t1_st]
            else:
                last[8] = [lambda: P.wait("phi1")]
                first[9] = [t1_rd]
                extra[9] = [t1_kv, t1_st]
            first[cfg.kvfl] = [lambda: pubflag("kvst", 1, "s95", 96, 97)]
            def t1_masks():
                P("s_mov_b32 s100, 0x33333333"); P("s_mov_b32 s101, 0x33333333")
                P("s_mov_b32 s84, 0xcccccccc"); P("s_mov_b32 s85, 0xcccccccc")
            for s_ in range(10, 16): first.setdefault(s_, []).append(t1_masks)
        else:
            A = 16; QF = 32; PP = [48, 64]; TT = 16; TM = 32; PH = 80
            def t2_b():
                P(f"s_add_u32 {sT0}, s99, {7*SLOT}")
                P(f"v_add_u32 v14, {sT0}, v1")
                for q in range(2 if cfg.hsm else 0, 4): P(f"ds_read_b128 {v(QF+4*q,4)}, v14 offset:{q*1024}", tok="qrd")
            def t2_m():
                P("s_setprio 2")
                for p in range(1 if cfg.hsm else 0, 2):
                    P(f"v_mfma_f32_32x32x16_bf16 {v(PP[p],16)}, {v(A+8*p,4)}, {v(QF+8*p,4)}, 0")
                    P(f"v_mfma_f32_32x32x16_bf16 {v(PP[p],16)}, {v(A+8*p+4,4)}, {v(QF+8*p+4,4)}, {v(PP[p],16)}")
                P("s_setprio 0")
            Q = Prog()
            for p in range(1 if cfg.hsm else 0, 2):
                softmax_core(Q, PP[p], TT, TM, "s24")
                s1, s2 = TM + 2, TM + 3
                Q(f"v_rcp_f32 v{s1}, v{s1}")
                Q(f"v_rcp_f32 v{s2}, v{s2}")
                for k in range(16):
                    Q(f"v_mul_f32 v{TT+k}, v{TT+k}, v{s1}")
                    Q(f"v_mul_f32 v{PP[p]+k}, v{PP[p]+k}, v{s2}")
                for k in range(8):
                    Q(f"v_cvt_pk_bf16_f32 v{PH+16*p+k}, v{TT+2*k}, v{TT+2*k+1}")
                    Q(f"v_cvt_pk_bf16_f32 v{PH+16*p+8+k}, v{PP[p]+2*k}, v{PP[p]+2*k+1}")
            nparts = cfg.smend2 - cfg.qb + 1
            parts = split(Q.ins, nparts)
            first[cfg.qb] = [t2_b]
            for q in range(nparts):
                extra[cfg.qb + q] = [lambda q=q: vpart(parts[q])]
            extra[cfg.qb].insert(0, t2_m)
            if cfg.hsm:
                def t2_p():
                    P(f"s_add_u32 {sT0}, s99, {6*SLOT}")
                    P(f"v_add_u32 v14, {sT0}, v1")
                    for q in range(4): P(f"ds_read_b128 {v(PH+4*q,4)}, v14 offset:{q*1024}", tok="prd")
                first.setdefault(11, []).append(t2_p)
                last.setdefault(11, []).append(lambda: P.wait("prd"))
            dst = [16 + 4 * i for i in range(16)]
            KD, KI, KZ = 232, 248, 252
            def kvflagload():
                P("v_and_b32 v15, 15, v0")
                P("v_lshlrev_b32 v15, 9, v15")
                P("v_lshrrev_b32 v14, 4, v0")
                P("v_lshl_add_u32 v15, v14, 26, v15")
                P(f"s_lshl_b32 s26, {sJ}, 6")
                P(f"s_add_u32 s26, s26, {sW}")
                P(f"s_mul_i32 s84, s26, {KVHEAD}")
                P(f"s_add_u32 s84, s84, {KVP_OFF}")
                P(f"s_mul_i32 s85, {sRB}, {KVREC}")
                P(f"s_lshl_b32 s26, s26, 7")
                P(f"s_add_u32 s26, s26, {FLAGKV_OFF}")
                P(f"buffer_load_dword v14, v15, {SWS}, s26 offen sc1")
                P("v_and_b32 v12, 31, v0")
                P("v_lshrrev_b32 v13, 5, v0")
                P("v_lshlrev_b32 v13, 3, v13")
                P("v_sub_u32 v12, v12, v13")
                P("v_and_b32 v13, 1, v12")
                P("v_lshlrev_b32 v13, 4, v13")
                P(f"s_movk_i32 {sT0}, 0x3f80")
                P(f"v_lshlrev_b32 v13, v13, {sT0}")
                P("v_lshrrev_b32 v12, 1, v12")
                for k in range(4):
                    P(f"v_cmp_eq_u32 vcc, {k}, v12")
                    P(f"v_cndmask_b32 v{KI+k}, 0, v13, vcc")
            def kvissue():
                P("s_mov_b32 s82, 0xffff")
                P("s_mov_b32 s83, 0")
                poll_global(P, cfg, "v14", "v15", SWS, "s26", 1, 1, sMASK)
                S2(P, "kvflag") if not cfg.slotst else None
                P("v_lshrrev_b32 v15, 2, v0")
                P(f"v_mul_u32_u24 v15, {KVREC}, v15")
                P("v_and_b32 v13, 3, v0")
                P("v_lshl_add_u32 v15, v13, 4, v15")
                for i in range(16):
                    P(f"s_add_u32 {sT3}, s84, s85")
                    P(f"buffer_load_dwordx4 {v(dst[i],4)}, v1, {SWS}, {sT3} offen sc1")
                    P(f"s_add_u32 s85, s85, {KVREC}")
                    P(f"s_cmp_eq_u32 s85, {16*KVREC}")
                    P(f"s_cselect_b32 s85, 0, s85")
                    if i == 1: P(f"buffer_load_dwordx4 {v(KZ,4)}, v15, {SWS}, s84 offen offset:1024 sc1")
                P("v_lshlrev_b32 v13, 4, v13")
                P("v_bfe_u32 v15, v0, 4, 1")
                P("v_lshl_add_u32 v13, v15, 2, v13")
                P("v_lshrrev_b32 v14, 5, v0")
                P("v_lshl_add_u32 v13, v14, 1, v13")
                P(f"s_lshl_b32 {sT0}, {sW}, 6")
                P(f"s_add_u32 {sT0}, {sT0}, {ZL}")
                P(f"v_add_u32 v13, {sT0}, v13")
                P("v_and_b32 v12, 15, v0")
                P("v_lshlrev_b32 v12, 4, v12")
                P("v_lshl_add_u32 v12, v14, 3, v12")
                P("v_lshl_add_u32 v12, v15, 11, v12")
                P(f"s_lshr_b32 {sT0}, {sW}, 1")
                P(f"s_lshl_b32 {sT0}, {sT0}, 12")
                P(f"s_and_b32 {sT1}, {sW}, 1")
                P(f"s_mul_i32 {sT1}, {sT1}, 768")
                P(f"s_add_u32 {sT0}, {sT0}, {sT1}")
                P(f"s_add_u32 {sT0}, {sT0}, {KVF}")
                P(f"v_add_u32 v12, {sT0}, v12")
            def kvsum(hook=None):
                P("s_setprio 2")
                Z = 16
                Qz = Prog()
                for k in range(4):
                    Qz(f"v_lshlrev_b32 v{Z+2*k}, 16, v{KZ+k}")
                    Qz(f"v_and_b32 v{Z+1+2*k}, {sHI}, v{KZ+k}")
                for rr in (4, 8):
                    for k in range(8):
                        Qz(f"v_add_f32_dpp v{Z+k}, v{Z+k}, v{Z+k} row_ror:{rr} row_mask:0xf bank_mask:0xf")
                for k in range(0, 8, 2): Qz(f"v_permlane32_swap_b32 v{Z+k}, v{Z+1+k}")
                for k in range(0, 8, 2): Qz(f"v_add_f32 v{Z+k}, v{Z+k}, v{Z+1+k}")
                Qz(f"v_permlane16_swap_b32 v{Z}, v{Z+2}")
                Qz(f"v_permlane16_swap_b32 v{Z+4}, v{Z+6}")
                Qz(f"v_add_f32 v{Z}, v{Z}, v{Z+2}")
                Qz(f"v_add_f32 v{Z+4}, v{Z+4}, v{Z+6}")
                Qz(f"v_cvt_pk_bf16_f32 v{Z}, v{Z}, v{Z+4}")
                zi = Qz.ins
                for i in range(16):
                    P(f"v_mfma_f32_32x32x16_bf16 {v(KD,16)}, {v(KI,4)}, {v(dst[i],4)}, {'0' if i == 0 else v(KD,16)}")
                    if hook: hook(i)
                    if i >= 2:
                        P.extend(zi[:3]); zi = zi[3:]
                P.extend(zi)
                P(f"ds_write_b16 v13, v{Z}")
                P(f"ds_write_b16_d16_hi v13, v{Z} offset:8")
                for k in range(4): P(f"v_cvt_pk_bf16_f32 v{KD+k}, v{KD+2*k}, v{KD+2*k+1}")
                P(f"ds_write_b64 v12, {v(KD,2)}")
                P(f"ds_write_b64 v12, {v(KD+2,2)} offset:1024", tok="kvf")
                if not cfg.kprio: P("s_setprio 0")
            def o_addr():
                P(f"v_add_u32 v12, {KVF}, v1")
                P("v_lshrrev_b32 v13, 5, v0")
                P("v_lshlrev_b32 v13, 6, v13")
                P(f"v_add_u32 v13, {ZL}, v13")
                P(f"v_mov_b32 v14, {ZL+256}")
                P("s_mov_b32 s82, 0x0000ffff")
                P("s_mov_b32 s83, 0xffff0000")
                P(f"v_cndmask_b32 v13, v14, v13, {sMASK}")
            def o_pair(p, hook=None):
                KVR, ZR, NUM, DEN = 16, 32, 48, 64
                for jj in range(4):
                    P(f"ds_read_b128 {v(ZR+4*jj,4)}, v13 offset:{p*128+jj*16}")
                for jj in range(4):
                    P(f"ds_read_b128 {v(KVR+4*jj,4)}, v12 offset:{p*4096+jj*1024}")
                P("s_setprio 2")
                for jj in range(4):
                    P(f"v_mfma_f32_32x32x16_bf16 {v(DEN,16)}, {v(ZR+4*jj,4)}, {v(PH+16*p+4*jj,4)}, {'0' if jj == 0 else v(DEN,16)}")
                for jj in range(4):
                    P(f"v_mfma_f32_32x32x16_bf16 {v(NUM,16)}, {v(KVR+4*jj,4)}, {v(PH+16*p+4*jj,4)}, {'0' if jj == 0 else v(NUM,16)}")
                if hook: hook()
                for h in range(2):
                    P(f"v_add_f32 v{DEN+8*h}, 0x358637bd, v{DEN+8*h}")
                for h in range(2):
                    P(f"v_rcp_f32 v{DEN+8*h}, v{DEN+8*h}")
                for k in range(16):
                    P(f"v_mul_f32 v{NUM+k}, v{NUM+k}, v{DEN+8*(k>>3)}")
                for k in range(8): P(f"v_cvt_pk_bf16_f32 v{NUM+k}, v{NUM+2*k}, v{NUM+2*k+1}")
                for k in range(4): P(f"v_bfi_b32 v{NUM+2*k}, s3, v{2+(k&1)}, v{NUM+2*k}")
                P(f"buffer_store_dwordx4 {v(NUM,4)}, v1, {SWS}, s94 offen offset:{2048*p} sc1")
                P(f"buffer_store_dwordx4 {v(NUM+4,4)}, v1, {SWS}, s94 offen offset:{2048*p+1024} sc1", tok=f"o{p}")
                if p == 1 or not cfg.kprio: P("s_setprio 0")
            def o_both(h0, h1):
                ZR, KVR, DEN, NUM = 16, 32, 48, 64
                P("s_setprio 2")
                for jj in range(4): P(f"ds_read_b128 {v(ZR+4*jj,4)}, v13 offset:{jj*16}")
                for jj in range(4): P(f"ds_read_b128 {v(KVR+4*jj,4)}, v12 offset:{jj*1024}")
                def fin(p, N, D):
                    Q = Prog()
                    for h in range(2): Q(f"v_add_f32 v{D+8*h}, 0x358637bd, v{D+8*h}")
                    for h in range(2): Q(f"v_rcp_f32 v{D+8*h}, v{D+8*h}")
                    for k in range(16): Q(f"v_mul_f32 v{N+k}, v{N+k}, v{D+8*(k>>3)}")
                    for k in range(8): Q(f"v_cvt_pk_bf16_f32 v{N+k}, v{N+2*k}, v{N+2*k+1}")
                    for k in range(4): Q(f"v_bfi_b32 v{N+2*k}, s3, v{2+(k&1)}, v{N+2*k}")
                    Q(f"buffer_store_dwordx4 {v(N,4)}, v1, {SWS}, s94 offen offset:{2048*p} sc1")
                    Q(f"buffer_store_dwordx4 {v(N+4,4)}, v1, {SWS}, s94 offen offset:{2048*p+1024} sc1", tok=f"o{p}")
                    return Q.ins
                for jj in range(4):
                    P(f"v_mfma_f32_32x32x16_bf16 {v(DEN,16)}, {v(ZR+4*jj,4)}, {v(PH+4*jj,4)}, {'0' if jj == 0 else v(DEN,16)}")
                    P(f"ds_read_b128 {v(ZR+4*jj,4)}, v13 offset:{128+jj*16}")
                for jj in range(4):
                    P(f"v_mfma_f32_32x32x16_bf16 {v(NUM,16)}, {v(KVR+4*jj,4)}, {v(PH+4*jj,4)}, {'0' if jj == 0 else v(NUM,16)}")
                    P(f"ds_read_b128 {v(KVR+4*jj,4)}, v12 offset:{4096+jj*1024}")
                D1 = PH
                f0 = fin(0, NUM, DEN)
                for jj in range(4):
                    P(f"v_mfma_f32_32x32x16_bf16 {v(D1,16)}, {v(ZR+4*jj,4)}, {v(PH+16+4*jj,4)}, {'0' if jj == 0 else v(D1,16)}")
                    n_ = 4 if jj == 0 else (0 if jj == 1 else 5)
                    P.extend(f0[:n_]); f0 = f0[n_:]
                N1 = ZR
                for jj in range(4):
                    P(f"v_mfma_f32_32x32x16_bf16 {v(N1,16)}, {v(KVR+4*jj,4)}, {v(PH+16+4*jj,4)}, {'0' if jj == 0 else v(N1,16)}")
                    P.extend(f0[:5]); f0 = f0[5:]
                P.extend(f0)
                free[:] = [PH + 16, PH + 20, PH + 24, PH + 28, PH, PH + 4, PH + 8, PH + 12]
                h0()
                P.extend(fin(1, N1, D1))
                h1()
                P("s_setprio 0")
            ks_ = cfg.kvst
            assert cfg.smend2 < ks_
            extra.setdefault(ks_ - 1, []).append(kvflagload)
            if ks_ <= 16: extra[ks_] = [kvissue]

        if cfg.touch >= 0:
            tl = [24, 26, 28, 32] + ([20] if typ == 1 else [])
            last.setdefault(cfg.touch, []).append(lambda: [b2touch(x) for x in tl])
        if 0 <= cfg.warm < 10:
            last.setdefault(cfg.warm, []).append(mallwarm)
        elif cfg.warm >= 10:
            a_, b_ = cfg.warm // 10 - 1, cfg.warm % 10
            last.setdefault(a_, []).append(lambda: mallwarm("gu"))
            last.setdefault(b_, []).append(lambda: mallwarm("do"))
        def codepf2():
            L = newlabel("pc")
            P("s_getpc_b64 s[100:101]")
            P.label(L)
            P(f"s_lshr_b32 {sT0}, s2, 3")
            P(f"s_lshl_b32 {sT0}, {sT0}, 2")
            P(f"s_add_u32 {sT0}, {sT0}, {sW}")
            P(f"s_mul_i32 {sT0}, {sT0}, 640")
            P(f"s_min_u32 {sT0}, {sT0}, L_codeend-L_pcref-1024")
            P(f"s_sub_u32 s100, s100, {L}-L_pcref")
            P("s_subb_u32 s101, s101, 0")
            P(f"s_add_u32 s100, s100, {sT0}")
            P("s_addc_u32 s101, s101, 0")
            P(f"global_load_dword v237, v1, s[100:101]")
        for st_ in cfg.pf2:
            if st_: last.setdefault(st_, []).append(codepf2)
        TG2 = [14, 15]
        free = [RING + 4 * i for i in range(8)]
        areg = {}
        breg = {sg: [B2R + 8 * sg, B2R + 8 * sg + 4] for sg in range(18)}
        checked = [0]
        flagged = [0]
        nxt_a = [0]
        def p2setup():
            P("v_and_b32 v4, 31, v0")
            P("v_lshlrev_b32 v4, 10, v4")
            P("v_lshrrev_b32 v5, 5, v0")
            P("v_lshl_add_u32 v4, v5, 4, v4")
            P(f"s_lshl_b32 {sT0}, {sR2}, 1")
            P(f"s_lshr_b32 {sT1}, {sW}, 1")
            P(f"s_add_u32 {sT0}, {sT0}, {sT1}")
            P(f"s_lshl_b32 {sT0}, {sT0}, 15")
            P(f"s_lshl_b32 {sT1}, {sC2}, 7")
            P(f"s_add_u32 {sT0}, {sT0}, {sT1}")
            P(f"s_and_b32 {sT1}, {sW}, 1")
            P(f"s_lshl_b32 {sT1}, {sT1}, 6")
            P(f"s_add_u32 {sT0}, {sT0}, {sT1}")
            P(f"v_add_u32 v4, {sT0}, v4")
        def resload():
            P(f"buffer_load_dwordx4 v[32:35], v4, {SX}, 0 offen")
            P(f"buffer_load_dwordx4 v[36:39], v4, {SX}, 0 offen offset:32")
        def residual():
            P(f"s_mov_b32 {sT1}, 0xffff0000")
            for jj in range(2):
                b = 32 + 4 * jj
                P(f"v_permlane32_swap_b32 v{b}, v{b+2}")
                P(f"v_permlane32_swap_b32 v{b+1}, v{b+3}")
            for k in range(8):
                P(f"v_lshlrev_b32 v{ACC+2*k}, 16, v{32+k}")
                P(f"v_and_b32 v{ACC+2*k+1}, {sT1}, v{32+k}")
        def aload_ins(Px, sg):
            ks_to(Px, sg, sT2)
            if slots[sg][1] == "O": Px(f"s_add_u32 {sT2}, {sT2}, {112*1024}")
            for rt in range(2):
                Px(f"buffer_load_dwordx4 {v(areg[sg][rt],4)}, v{VA[rt]}, {SWS}, {sT2} offen sc1")
        def aload(sg):
            throttle()
            areg[sg] = [free.pop(0), free.pop(0)]
            vmlog.append(("a", sg))
            aload_ins(P, sg)
        first.setdefault(16, []).append(p2setup)
        if typ == 1 and cfg.kprio: first[16].append(lambda: tag_setup(P, [2, 3], 's3'))
        wextra = {10: (18, (0,)), 11: (18, (1,)), 12: (19, (0,)), 13: (19, (1,))} if typ == 0 else {13: (18, (0, 1)), 14: (19, (0, 1))}

        b2log = []
        for s in range(18):
            P.wait(*([f"w{s}"] if s < 17 else ["w17", "w18", "w19"]))
            P("s_barrier")
            if s == 17: break
            if s == 0 or (cfg.allb >= 0 and cfg.allb <= s < cfg.allb + 8): S2(P, f"B{s}")
            if s == 0:
                if cfg.w1late: wchunk(1)
                wchunk(2); wchunk(3)
            if s == 1:
                P(f"buffer_load_dword v110, off, {SDBG}, 0 sc1")
            if s == 3:
                poll_nonce(P, cfg, "v110")
            for f in first.get(s, []): f()
            if s + 2 < 18 and s >= 2:
                wchunk(s + 2)
            if s in wextra: wchunk(*wextra[s])
            for f in extra.get(s, []): f()
            lag = cfg.b2lag
            todo = [sg for (sg, st_) in pend_reads if st_ <= s - lag and s >= defer.get(sg, 0)]
            pend_reads = [(sg, st_) for (sg, st_) in pend_reads if sg not in todo]
            for sg in todo:
                b2read(sg, breg[sg]); readdone.add(sg)
            n_issue = per[s]
            while n_issue > 0:
                n_issue -= 1
                cand = None
                if todo_reg:
                    for pos in stg:
                        lo, hi = poswin(pos, False)
                        oc = occupant.get(pos)
                        if lo <= s <= hi and (oc is None or oc in readdone):
                            cand = (todo_reg.pop(0), pos); break
                if cand is None:
                    for sg in todo_fin:
                        pos = b2pos(sg)
                        lo, hi = poswin(pos, True)
                        oc = occupant.get(pos)
                        stg_ok = (pos not in stg) or (not todo_reg) or (s > poswin(pos, False)[1])
                        if lo <= s <= hi and (oc is None or oc in readdone) and stg_ok:
                            todo_fin.remove(sg); cand = (sg, pos); break
                if cand is None: break
                sg, pos = cand
                oc = occupant.get(pos)
                if oc is not None: P.wait(f"br{oc}")
                occupant[pos] = sg
                if sg < 18:
                    stagepos[sg] = pos
                    pend_reads.append((sg, s))
                b2dma(sg)
                b2log.append((s, sg))
            for f in last.get(s, []): f()
            if typ == 0 and s == 7:
                for pos in stg[:2]:
                    assert occupant.get(pos) in readdone
                    P.wait(f"br{occupant[pos]}")
        S2(P, "ringend")
        thr_on[0] = True
        assert not todo_reg
        if cfg.stamps: P("s_mov_b32 s97, s98")
        P(f"v_mov_b32 v5, {LFLAG}")
        fin_all = todo_fin + [26, 27]
        lateq = list(range(32, 36)) if typ == 0 else list(range(28, 36))
        def fin_issue(n, only=None):
            for _ in range(n):
                c = [x for x in fin_all if only is None or x in only]
                if not c: return
                sg = c[0]; fin_all.remove(sg)
                oc = occupant.get(b2pos(sg))
                if oc is not None: P.wait(f"br{oc}")
                b2dma(sg); b2log.append((20, sg))
        if typ == 1:
            thr_on[0] = False
            if cfg.kprio: P("s_setprio 2")
            if cfg.kvst == 17: kvissue()
            kvsum(lambda i: fin_issue(1, (24, 25, 26, 27)) if (cfg.t2e and i >= 8 and i % 2 == 0) else None)
            thr_on[0] = True
            P(f"s_lshl_b32 {sT0}, {sW}, 2")
            P(f"v_add_u32 v14, {sT0}, v5")
            P("v_mov_b32 v15, 1")
            P.wait("kvf")
            P("ds_write_b32 v14, v15 offset:48")
        for sg, _ in pend_reads:
            b2read(sg, breg[sg]); readdone.add(sg)
        if typ == 1:
            if not cfg.kprio: tag_setup(P, [2, 3], "s3")
            poll_lds(P, cfg, 12, "v5", 48)
            if cfg.t2e: poll_lds(P, cfg, 12, "v5", 16)
            S2(P, "kvx") if not cfg.slotst else None
            o_addr()
            thr_on[0] = False
            if cfg.omode == 0:
                o_pair(0, lambda: [aload(0), aload(1)] + ([fin_issue(cfg.t2e)] if cfg.t2e else []))
                o_pair(1, lambda: [aload(2), aload(3)] + ([fin_issue(cfg.t2e)] if cfg.t2e else []))
            else:
                o_both(lambda: [aload(0), aload(1)], lambda: [aload(2), aload(3)])
                fin_issue(2 * cfg.t2e)
            thr_on[0] = True
            S2(P, "odone")
            if cfg.t2e:
                fin_all += lateq[:4]; lateq = lateq[4:]
            fin_issue(cfg.nfin)
        else:
            for sg in range(4): aload(sg)
            fin_issue(cfg.nfin1)
            lateq = list(range(28, 36))
            if not cfg.eprio and cfg.pre1 >= 1:
                poll_lds(P, cfg, 12, "v5", 0)
                for x in (28, 29): b2dma(lateq.pop(0))
            if not cfg.eprio and cfg.pre1 >= 2:
                poll_lds(P, cfg, 12, "v5", 16)
                for x in (30, 31): b2dma(lateq.pop(0))
        print("B2 plan typ", typ, b2log)
        nxt_a[0] = 4
        tag_setup(P, TG2, "s3", True)
        nxt_b = [18]
        BLA = 3
        ALA = cfg.ala
        slow = []
        def tagops(Q, sg):
            for r in areg[sg]:
                Q(f"v_xor_b32 v{r}, v{r}, v{TG2[0]}")
                Q(f"v_xor_b32 v{r+2}, v{r+2}, v{TG2[1]}")
            r0, r1 = areg[sg]
            Q(f"v_bitop3_b32 v2, v{r0}, v{r0+2}, v{r0} bitop3:0xf3")
            Q(f"v_bitop3_b32 v2, v{r1}, v{r1+2}, v2 bitop3:0xfb")
            Q("v_and_b32 v2, s3, v2")
            Q("v_cmp_ne_u32 vcc, 0, v2")
        def tagcheck(sg):
            Q = Prog()
            Ls, Lc = newlabel("slow"), newlabel("cont")
            tagops(Q, sg)
            B = Prog()
            B("s_cmp_lg_u64 vcc, 0")
            B(f"s_cbranch_scc1 {Ls}")
            B.label(Lc)
            T = Prog()
            Lp, Ld = newlabel("sp"), newlabel("sd")
            T.label(Ls)
            T(f"s_mov_b32 {sCNT}, {cfg.spin2}")
            if cfg.stamps: T("s_add_u32 s97, s97, 1")
            T.label(Lp)
            T(f"s_sleep {cfg.sleep}")
            aload_ins(T, sg)
            T("s_waitcnt vmcnt(0)")
            tagops(T, sg)
            T("s_nop 1")
            T("s_cmp_lg_u64 vcc, 0")
            T(f"s_cbranch_scc0 {Ld}")
            T(f"s_sub_u32 {sCNT}, {sCNT}, 1")
            T(f"s_cbranch_scc0 {Lp}")
            T.label(Ld)
            if cfg.fastslow and sg >= 4:
                for kind_, x in vmlog[vmlog.index(("a", sg)) + 1:]:
                    if kind_ == "a": aload_ins(T, x)
                    elif kind_ == "b": b2dma(x, T)
                    else:
                        T(f"buffer_load_dwordx4 {v(x[0],4)}, v4, {SX}, 0 offen")
                        T(f"buffer_load_dwordx4 {v(x[1],4)}, v4, {SX}, 0 offen offset:32")
                T(f"s_waitcnt vmcnt(@{Lc}:@)")
            else:
                for x in range(sg + 1, nxt_a[0]): aload_ins(T, x)
                T("s_waitcnt vmcnt(0)")
            T(f"s_branch {Lc}")
            slow.extend(T.ins)
            return Q.ins, B.ins
        deferred = {0: [], 2: [], 3: []}
        c0, b0 = tagcheck(0)
        P.extend(c0); P.extend(b0)
        for sg in range(36):
            if cfg.slotst and sg % 4 == 0: S2(P, f"s{sg}")
            if sg == (cfg.thrn if typ == 1 or not cfg.eprio else cfg.eprio + 2): thr_on[0] = False
            if typ == 0 and cfg.eprio and sg == 0: P("s_setprio 1")
            if typ == 0 and cfg.eprio and sg == cfg.eprio: P("s_setprio 0")
            fill = Prog()
            P_save = P.ins
            P.ins = fill.ins
            if sg >= 1 and sg - 1 < 36 - cfg.tl:
                free.extend(areg[sg - 1]); free.extend(breg[sg - 1])
            if cfg.hold and sg == cfg.hold:
                poll_lds(P, cfg, free[0], "v5", 64)
            while nxt_b[0] < 36 and nxt_b[0] <= sg + BLA:
                r = [free.pop(0), free.pop(0)]
                breg[nxt_b[0]] = r
                b2read(nxt_b[0], r); nxt_b[0] += 1
            cnt = 0
            while nxt_a[0] < 36 and len(free) >= 4 and nxt_a[0] <= (sg + ALA if (typ == 1 or not cfg.eprio or sg >= cfg.eprio) else max(7, sg + cfg.eala)) and cnt < 2:
                aload(nxt_a[0]); nxt_a[0] += 1; cnt += 1
            pg0 = cfg.pg0 if typ == 1 or not cfg.eprio else max(cfg.pg0, cfg.eprio + 1)
            if sg == pg0:
                poll_lds(P, cfg, free[0], "v5", 32)
            if fin_all and sg >= 1:
                fin_issue(1)
            elif sg > pg0 and lateq and (sg - pg0) % cfg.pgs == 0:
                b2dma(lateq.pop(0))
            if sg == 30:
                rres = [free.pop(0), free.pop(0)]
                vmlog.append(("r", rres))
                P(f"buffer_load_dwordx4 {v(rres[0],4)}, v4, {SX}, 0 offen")
                P(f"buffer_load_dwordx4 {v(rres[1],4)}, v4, {SX}, 0 offen offset:32")
            P.ins = P_save
            mf = []
            for rt in range(2):
                for ct in range(2):
                    q = ct + 2 * rt
                    a = ACC + 16 * q
                    c = "0" if sg == 0 else v(a, 16)
                    mf.append(Ins(f"v_mfma_f32_32x32x16_bf16 {v(a,16)}, {v(breg[sg][ct],4)}, {v(areg[sg][rt],4)}, {c}"))
            f = fill.ins
            tc, tb_ = tagcheck(sg + 1) if sg + 1 < 36 else ([], [])
            if any(x.kind == "label" for x in f):
                parts_ = [[], f, [], []]
            else:
                n3 = -(-len(f) // 3)
                parts_ = [[], f[:n3], f[n3:2 * n3], f[2 * n3:]]
            tcs = [tc[:4], tc[4:6], tc[6:8], tb_]
            if sg >= 36 - cfg.tl:
                k1 = [i for i, (rt, ct) in enumerate([(0, 0), (0, 1), (1, 0), (1, 1)]) if ct + 2 * rt == 1][0]
                P.extend(mf[k1:k1 + 1]); P.extend(f); P.extend(tc); P.extend(tb_)
                for q in (2, 3, 0): deferred[q].append(mf[q])
            else:
                for k in range(4):
                    P.extend(mf[k:k + 1]); P.extend(parts_[k]); P.extend(tcs[k])
        P(f"s_add_u32 {sT0}, s99, {4*SLOT}")
        P(f"v_add_u32 v12, {sT0}, v1")
        wr = {q: [Ins(f"ds_write_b128 v12, {v(ACC+16*q+4*k,4)} offset:{q*SLOT+k*1024}") for k in range(4)] for q in (1, 2, 3)}
        if cfg.tl:
            pendw = []
            for q, prevq in ((2, 1), (3, 2), (0, 3)):
                for i, m in enumerate(deferred[q]):
                    P.extend([m])
                    if i == 1: pendw += wr[prevq]
                    if pendw: P.extend([pendw.pop(0)])
                    if pendw and i >= 2: P.extend([pendw.pop(0)])
            P.extend(pendw)
        else:
            for q in range(1, 4): P.extend(wr[q])
        S2(P, "mainend")
        for q in range(1, 4):
            P(f"v_xor_b32 v{12+q}, {q*4096}, v12")
        if cfg.o64:
            P("v_bfe_u32 v6, v0, 4, 1")
            P(f"v_mul_u32_u24 v6, {16384-32}, v6")
            P("v_sub_u32 v6, v4, v6")
        for b in rres:
            P(f"v_permlane32_swap_b32 v{b}, v{b+2}")
            P(f"v_permlane32_swap_b32 v{b+1}, v{b+3}")
        for k in range(8):
            src = rres[k // 4] + (k % 4)
            P(f"v_lshlrev_b32 v2, 16, v{src}")
            P(f"v_and_b32 v3, {sHI}, v{src}")
            P(f"v_pk_add_f32 {v(ACC+2*k,2)}, {v(ACC+2*k,2)}, v[2:3]")
        P("s_waitcnt lgkmcnt(0)")
        P("s_barrier")
        for q in range(1, 4):
            for k in range(4):
                P(f"ds_read_b128 {v(ACC+16*q+4*k,4)}, v{12+q} offset:{q*SLOT+k*1024}")
        for q in range(1, 4):
            for k in range(0, 16, 2):
                P(f"v_pk_add_f32 {v(ACC+k,2)}, {v(ACC+k,2)}, {v(ACC+16*q+k,2)}")
        for k in range(8): P(f"v_cvt_pk_bf16_f32 v{ACC+k}, v{ACC+2*k}, v{ACC+2*k+1}")
        for jj in range(2):
            b = ACC + 4 * jj
            P(f"v_permlane32_swap_b32 v{b}, v{b+2}")
            P(f"v_permlane32_swap_b32 v{b+1}, v{b+3}")
            if not cfg.o64:
                P(f"buffer_store_dwordx4 {v(b,4)}, v4, {SOUT}, 0 offen offset:{32*jj}{['', ' sc1', ' sc0 sc1', ' nt'][cfg.outsc]}")
        if cfg.o64:
            for k in range(4): P(f"v_permlane16_swap_b32 v{ACC+k}, v{ACC+4+k}")
            P(f"s_mov_b32 {sT0}, 16384")
            P(f"buffer_store_dwordx4 {v(ACC,4)}, v6, {SOUT}, 0 offen{['', ' sc1', ' sc0 sc1', ' nt'][cfg.outsc]}")
            P(f"buffer_store_dwordx4 {v(ACC+4,4)}, v6, {SOUT}, {sT0} offen{['', ' sc1', ' sc0 sc1', ' nt'][cfg.outsc]}")
        S2(P, "end")
        if cfg.stamps and S2.n < len(S2.regs):
            P(f"s_mov_b32 {S2.regs[S2.n]}, s97"); S2.n += 1; S2.names.append("nslow")
        S2.dump(P, 1)
        if cfg.padT:
            Lq = newlabel("pad")
            r_ = Ins(".raw"); r_.text = f"{Lq}:\n  s_sleep 2\n  s_memrealtime s[100:101]\n  s_waitcnt lgkmcnt(0)\n  s_sub_u32 s100, s100, s96\n  s_cmp_lt_u32 s100, {cfg.padT}\n  s_cbranch_scc1 {Lq}"
            P.ins.append(r_)
        P("s_endpgm")
        raw = Ins(".raw"); raw.text = text_of(slow).rstrip("\n")
        P.ins.append(raw)
        return P, S2

    names = {"p1t1": names_p1t1, "p1t2": names_p1t2}
    for typ in range(2):
        P, S2 = p2_rest(typ)
        r, _ = finalize(P, st2, log)
        segs.append(r)
        names[f"p2t{typ+1}"] = S2.names

    hdr = open("cdna_kernels/" + NAME + ".s.ref").read().split("\n")
    head = [l for l in hdr if l.startswith(";") and "@launch" not in l and "Override launch" not in l and "grid=ceil" not in l]
    out = "\n".join(head) + f"\n; @launch grid=(256,1,1) block=(512,1,1) lds={LDS_BYTES}\n"
    out += """; Generated by my own script (work/gen11.py). One persistent launch, 256 WGs x 8 waves, 1 WG per CU.
; waves 0-3: LN + [x @ (wqkv|w_gate|w_up)] 128x320 tile (MFMA 32x32x16, weights via LDS-DMA ring + transposing LDS reads),
"""
    out += f""".amdgcn_target "amdgcn-amd-amdhsa--gfx950"
.text
.globl {NAME}_kernel
.p2align 8
.type {NAME}_kernel,@function
{NAME}_kernel:
"""
    for sgm in segs:
        out += text_of(sgm)
    out = re.sub(r"@(L_\w+:)@", lambda m: str(VQ_AT[m.group(1)]), out)
    out += f"""L_end:
  s_endpgm
L_codeend:
{"".join(fb_text)}
.section .rodata,"a"
.p2align 6
.amdhsa_kernel {NAME}_kernel
  .amdhsa_next_free_vgpr 256
  .amdhsa_next_free_sgpr 102
  .amdhsa_accum_offset 256
  .amdhsa_group_segment_fixed_size 0
  .amdhsa_kernarg_size 88
  .amdhsa_user_sgpr_count 2
  .amdhsa_user_sgpr_kernarg_segment_ptr 1
  .amdhsa_system_sgpr_workgroup_id_x 1
.end_amdhsa_kernel
"""
    return out, names, log


if __name__ == "__main__":
    cfg = Cfg()
    outp = "cdna_kernels/" + NAME + ".s"
    for a in sys.argv[1:]:
        if a.startswith("out="): outp = a[4:]
        else:
            k, val = a.split("=")
            setattr(cfg, k, [int(c) for c in val] if isinstance(getattr(cfg, k), list) else type(getattr(cfg, k))(int(val)))
    text, names, log = gen(cfg)
    open(outp, "w").write(text)
    import json
    json.dump(names, open(outp + ".names.json", "w"))
    print("written", outp, len(text), "bytes;", log)
```
